```python
import torch

def _softmax(x, axis=-1):
    return torch.softmax(x, dim=axis)
def _gelu(x):
    return torch.nn.functional.gelu(x, approximate="tanh")
def _silu(x):
    return torch.nn.functional.silu(x)
def _sigmoid(x):
    return torch.sigmoid(x)
def _layernorm(x, axis=-1, eps=1e-5):
    m = x.mean(dim=axis, keepdim=True)
    v = x.var(dim=axis, keepdim=True, unbiased=False)
    return (x - m) / torch.sqrt(v + eps)
def _scatter_add(tgt, idx, src, axis=0):
    return tgt.clone().index_add_(axis, idx, src)
def _segment_sum(src, seg, n):
    out = torch.zeros((n,) + src.shape[1:], dtype=src.dtype)
    return out.index_add_(0, seg, src)
def _pad(x, pw):
    flat = tuple(v for pair in reversed(pw) for v in pair)
    return torch.nn.functional.pad(x, flat)

kernel_name = 'gather_scatter__graph_attention_gat__graph'

def setup_inputs():

    _w = (lambda a: (lambda t: t.to(torch.bfloat16) if t.is_floating_point() else t)(torch.as_tensor(a)))
    N, deg, D = 10000, 16, 256
    H = 4
    E = N * deg
    return {
        "x": _w((lambda *s: torch.randn(*s, dtype=torch.bfloat16) * 0.4)(N, D) * 0.1),
        "src": _w((lambda lo, hi, *s: torch.randint(lo, hi, s))(0, N, E).to(torch.int64)),
        "dst": _w((lambda lo, hi, *s: torch.randint(lo, hi, s))(0, N, E).to(torch.int64)),
        "w": _w((lambda *s: torch.randn(*s, dtype=torch.bfloat16) * 1.6)(H, D, D) * (1.0 / D ** 0.5)),
        "a_src": _w((lambda *s: torch.randn(*s, dtype=torch.bfloat16) * 1.6)(H, D) * 0.1),
        "a_dst": _w((lambda *s: torch.randn(*s, dtype=torch.bfloat16) * 1.6)(H, D) * 0.1),
    }

def reference(x, src, dst, w, a_src, a_dst):
    N, D = x.shape
    H = w.shape[0]
    h = torch.einsum('nd,hdf->nhf', x, w)
    hs = h[src]
    hd = h[dst]
    e = torch.einsum('ehf,hf->eh', hs, a_src) + torch.einsum('ehf,hf->eh', hd, a_dst)
    e = torch.where(e > 0, e, 0.2 * e)
    exp_e = torch.exp(e)
    denom = _segment_sum(exp_e, dst, N) + 1e-9
    alpha = exp_e / denom[dst]
    out = _segment_sum(alpha[:, :, None] * hs, dst, N)
    return out.mean(1)
```

```python
import re

class Asm:
    def __init__(self):
        self.lines = []
        self._lab = 0
    def __call__(self, s=''):
        for l in s.split('\n'):
            self.lines.append(l.strip() if not l.strip().startswith(';') else l)
    def label(self, base):
        self._lab += 1
        return f'L_{base}_{self._lab}'
    def text(self):
        out = []
        for l in self.lines:
            if l.endswith(':') or l.startswith('.') or l.startswith(';') or l == '':
                out.append(l)
            else:
                out.append('    ' + l)
        return '\n'.join(out) + '\n'

def vr(a, n=1):
    return f'v{a}' if n == 1 else f'v[{a}:{a+n-1}]'
def sr(a, n=1):
    return f's{a}' if n == 1 else f's[{a}:{a+n-1}]'

_reg = re.compile(r'\b([vs])(\d+)\b|\b([vs])\[(\d+):(\d+)\]')
def regs(tok):
    out = set()
    for m in _reg.finditer(tok):
        if m.group(1):
            out.add((m.group(1), int(m.group(2))))
        else:
            for i in range(int(m.group(4)), int(m.group(5)) + 1):
                out.add((m.group(3), i))
    if re.search(r'\bvcc\b', tok): out.add(('s', 106)); out.add(('s', 107))
    if re.search(r'\bm0\b', tok): out.add(('s', 124))
    if re.search(r'\bexec\b', tok): out.add(('s', 126)); out.add(('s', 127))
    return out

TRANS = ('v_exp_f32', 'v_log_f32', 'v_rcp_f32', 'v_rsq_f32', 'v_sqrt_f32', 'v_sin_f32', 'v_cos_f32')

class I:
    pass

def parse(line):
    s = line.split(';')[0].strip()
    if not s or s.endswith(':') or s.startswith('.'):
        return None
    parts = s.split(None, 1)
    op = parts[0]
    ops = [o.strip() for o in parts[1].split(',')] if len(parts) > 1 else []
    i = I(); i.op = op; i.text = s; i.ops = ops
    i.valu = op.startswith('v_') and not op.startswith('v_mfma')
    i.mfma = op.startswith('v_mfma')
    i.vmem = op.startswith('buffer_') or op.startswith('global_')
    i.ds = op.startswith('ds_')
    i.salu = op.startswith('s_')
    i.dpp = 'row_' in s or 'quad_perm' in s or '_dpp' in op
    i.trans = any(op.startswith(t) for t in TRANS)
    i.dot = op.startswith('v_dot')
    d = set(); r = set()
    if i.valu or i.mfma:
        nd = 1
        if op.startswith(('v_add_co', 'v_sub_co', 'v_addc_co', 'v_subb_co')): nd = 2
        for o in ops[:nd]: d |= regs(o)
        for o in ops[nd:]: r |= regs(o)
        if op.startswith('v_cmpx'): d |= {('s', 126), ('s', 127)}
        if op.startswith(('v_fmac', 'v_dot2c', 'v_writelane')): r |= regs(ops[0])
        if 'permlane' in op and 'swap' in op:
            d |= regs(ops[1]); r |= regs(ops[0])
        if op.startswith('v_cndmask') and len(ops) == 3: r |= {('s', 106), ('s', 107)}
        if i.dpp: r |= regs(ops[0])
    elif i.vmem:
        if 'load' in op and ' lds' not in s:
            d |= regs(ops[0])
            for o in ops[1:]: r |= regs(o)
        else:
            for o in ops: r |= regs(o)
            if ' lds' in s: r |= {('s', 124)}
    elif i.ds:
        if op.startswith(('ds_read', 'ds_bpermute', 'ds_permute', 'ds_swizzle')) or '_rtn' in op:
            d |= regs(ops[0])
            for o in ops[1:]: r |= regs(o)
        else:
            for o in ops: r |= regs(o)
    elif i.salu:
        if op.startswith(('s_cmp', 's_bitcmp', 's_cbranch', 's_branch', 's_waitcnt', 's_nop', 's_barrier', 's_sleep', 's_endpgm', 's_setprio')):
            for o in ops: r |= regs(o)
        else:
            if ops: d |= regs(ops[0])
            for o in ops[1:]: r |= regs(o)
            if 'saveexec' in op: d |= {('s', 126), ('s', 127)}; r |= {('s', 126), ('s', 127)}
    i.d = d; i.r = r
    i.ws = 1
    if op == 's_nop': i.ws = int(ops[0], 0) + 1
    return i

def check(lines, verbose=True):
    ins = []
    for n, l in enumerate(lines):
        p = parse(l)
        if p is not None:
            p.n = n; ins.append(p)
    probs = []
    V = lambda S: {x for x in S if x[0] == 'v'}
    S_ = lambda S: {x for x in S if x[0] == 's'}
    for k, c in enumerate(ins):
        dist = 0
        for j in range(k - 1, max(-1, k - 24), -1):
            p = ins[j]
            need = 0; why = ''
            def bump(n, w):
                nonlocal need, why
                if n > need: need = n; why = w
            if p.valu and c.mfma and V(p.d) & c.r: bump(2, 'VALU->MFMA')
            if p.mfma:
                if (c.valu or c.vmem or c.ds) and (p.d & (c.r | c.d)): bump(8, 'MFMA D->VALU/VMEM/DS')
                if c.mfma:
                    ab = regs(c.ops[1]) | regs(c.ops[2])
                    if p.d & ab: bump(8, 'MFMA D->MFMA A/B')
                    cc = regs(c.ops[3])
                    if (p.d & cc) and not (p.d == cc): bump(6, 'MFMA D->MFMA C partial')
                if c.valu and (regs(p.ops[3]) & c.d): bump(3, 'MFMA C WAR')
            if p.trans and c.valu and not c.trans and (p.d & c.r): bump(1, 'trans->VALU')
            if p.trans and c.mfma and (p.d & c.r): bump(2, 'trans->MFMA')
            if p.valu and c.dpp and V(p.d) & c.r: bump(2, 'VALU->DPP')
            if p.valu and c.op.startswith(('v_readlane', 'v_readfirstlane')) and V(p.d) & c.r: bump(1, 'VALU->readlane')
            if p.valu and 'permlane' in c.op and V(p.d) & c.r: bump(2, 'VALU->permlane')
            if p.valu and c.vmem and (S_(p.d) - {('s',126),('s',127)}) & c.r: bump(5, 'VALU sgpr->VMEM')
            if p.valu and c.valu and (S_(p.d) - {('s',126),('s',127)}) & S_(c.r):
                if c.op.startswith(('v_readlane', 'v_writelane')) and S_(p.d) & regs(c.ops[2]): bump(4, 'VALU sgpr->lanesel')
                else: bump(2, 'VALU sgpr->VALU const')
            if p.valu and ({('s',126),('s',127)} & p.d):
                if c.dpp: bump(5, 'VALU exec->DPP')
                if c.mfma: bump(4, 'VALU exec->MFMA')
                if c.op.startswith(('v_readlane', 'v_readfirstlane', 'v_writelane')) or 'permlane' in c.op: bump(4, 'cmpx->lane op')
            if p.salu and ('s', 124) in p.d and c.vmem and ' lds' in c.text: bump(1, 'm0->DMA')
            if p.dot and c.valu and (p.d & c.r) and not (c.op == p.op and regs(c.ops[-1]) >= p.d and not (p.d & (regs(c.ops[1]) | regs(c.ops[2])))): bump(3, 'dot->VALU')
            if p.vmem and 'store' in p.op and ('x4' in p.op or 'x3' in p.op) and c.valu and (regs(p.ops[0]) & c.d): bump(2, 'wide store data WAR')
            if need > dist:
                probs.append((p.n, c.n, why, need, dist, p.text, c.text))
            dist += p.ws
            if p.op in ('s_branch', 's_endpgm'): break
    if verbose:
        for pr in probs:
            print(f'HAZARD {pr[2]} need {pr[3]} have {pr[4]}: line {pr[0]+1}: {pr[5]}  -> line {pr[1]+1}: {pr[6]}')
    return probs
```

```python
import sys, argparse
from asmcore import Asm, vr, sr, check

KNAME = 'gather_scatter__graph_attention_gat__graph_kernel'
NB = 250
WS_TABLE = 0
WS_UTAB = 0x400000
WS_STAB = 0x410000
WS_TS = 0x500000
WS_DUMP = 0x520000
WS_SIZE = 0x4000000
RINGW = 12288
RING = 0
WR = 98304
IMG = WR
CNT = IMG + 16000
UT = IMG + 17024
AP = 131072
APG = 2560
LIST = AP + 25600
DEN = LIST + 5248
SDST = DEN + 640
GCNT = SDST + 640
MISC = GCNT + 64
LDS_SIZE = MISC + 64
assert GCNT % 64 == 0 and LDS_SIZE <= 163840
M_NONCE = MISC
M_SLOW = MISC + 8
M_SYNC = MISC + 16
S_X, S_W, S_WS, S_SRC, S_DST, S_AS, S_AD, S_DBG, S_OUT = 4, 8, 12, 16, 20, 24, 28, 32, 36
S_WAVE, S_SET, S_W3, S_HF = 40, 41, 42, 43
S_T = 44
S_SLICE = 48
S_XSO = 52
S_RING, S_SLOT, S_J, S_DELTA = 56, 57, 58, 59
S_N = 60
S_T0, S_T1, S_T2, S_T3 = 65, 66, 67, 3
S_EX = 68
S_EX2 = 70
S_KA = 72
S_TS = 90
S_C0, S_C1, S_C2, S_C3 = 92, 93, 94, 95
S_POLL = 96
S_M = 97
S_U0, S_U1, S_U2, S_U3 = 98, 99, 100, 101
V_TID, V_LANE = 0, 1
V_TR = 2
V_AW, V_AM, V_LST = 6, 7, 8
V_SWE, V_SWO = 9, 10
V_TAB = 11
V_IDX = 12
V_AF = 16
V_MF = 20
V_A, V_B, V_C, V_D, V_E, V_F, V_G = 24, 25, 26, 27, 28, 29, 30
V_TSR = 31
V_ONE = 24
V_DEN = 232
V_ACC = 32
V_W = 112
V_BF = 240

POLL_MAX = 200000


class Gen:
    def __init__(self, opt):
        self.o = opt
        self.a = Asm()
        self.nts = 0

    def ts(self, idx):
        if not self.o.get('ts'): return
        a = self.a
        a(f's_memrealtime s[{S_TS}:{S_TS+1}]')
        a('s_waitcnt lgkmcnt(0)')
        a(f'v_writelane_b32 v{V_TSR}, s{S_TS}, {idx}')

    def srd(self, r, base, size, shift=0):
        a = self.a
        if shift:
            a(f's_sub_u32 s{r}, s{base}, {shift}')
            a(f's_subb_u32 s{r+1}, s{base+1}, 0')
            a(f's_and_b32 s{r+1}, s{r+1}, 0xffff')
        else:
            a(f's_mov_b32 s{r}, s{base}')
            a(f's_and_b32 s{r+1}, s{base+1}, 0xffff')
        a(f's_mov_b32 s{r+2}, {size}')
        a(f's_mov_b32 s{r+3}, 0x20000')

    def tagcheck(self, base, acc, first, tmp):
        a = self.a
        for k in range(4):
            if first and k == 0:
                a(f'v_xor_b32 v{acc}, s{S_T+k}, v{base+k}')
            else:
                a(f'v_xor_b32 v{tmp}, s{S_T+k}, v{base+k}')
                a(f'v_or_b32 v{acc}, v{acc}, v{tmp}')

    def poll_tail(self, acc, lab_loop, lab_done):
        a = self.a
        a(f'v_and_b32 v{acc}, 0xfff, v{acc}')
        a(f'v_cmp_ne_u32 vcc, 0, v{acc}')
        a(f's_cbranch_vccz {lab_done}')
        a(f's_add_u32 s{S_POLL}, s{S_POLL}, 1')
        a(f's_cmp_gt_u32 s{S_POLL}, {POLL_MAX}')
        a(f's_cbranch_scc1 {lab_done}')
        a('s_sleep 1')
        a(f's_branch {lab_loop}')

    def read_tags(self):
        a = self.a
        a(f'v_mov_b32 v{V_A}, {M_NONCE}')
        a(f'ds_read_b64 v[{V_B+1}:{V_B+2}], v{V_A}')
        a('s_waitcnt lgkmcnt(0)')
        a(f'v_readfirstlane_b32 s{S_T0}, v{V_B+1}')
        a(f'v_readfirstlane_b32 s{S_T1}, v{V_B+2}')
        a('s_nop 1')
        a(f's_and_b32 s{S_T}, s{S_T0}, 0xfff')
        a(f's_bfe_u32 s{S_T+1}, s{S_T0}, 0xc000c')
        a(f's_and_b32 s{S_T+2}, s{S_T1}, 0xfff')
        a(f's_bfe_u32 s{S_T+3}, s{S_T1}, 0xc000c')

    def setsync(self, k, wait_for=4, other=False, signal=True, wait=True):
        a = self.a
        if other:
            a(f's_xor_b32 s{S_T0}, s{S_SET}, 1')
            a(f's_lshl_b32 s{S_T0}, s{S_T0}, 4')
        else:
            a(f's_lshl_b32 s{S_T0}, s{S_SET}, 4')
        a(f's_add_u32 s{S_T0}, s{S_T0}, {M_SYNC + 4*k}')
        a(f'v_mov_b32 v{V_A}, s{S_T0}')
        if signal:
            a('s_waitcnt lgkmcnt(0)')
            a(f'v_mov_b32 v{V_B}, 1')
            a('s_mov_b64 exec, 1')
            a(f'ds_add_u32 v{V_A}, v{V_B}')
            a('s_mov_b64 exec, -1')
        if wait:
            lp = a.label('sync')
            a(f'{lp}:')
            a(f'ds_read_b32 v{V_C}, v{V_A}')
            a('s_waitcnt lgkmcnt(0)')
            a(f'v_readfirstlane_b32 s{S_T1}, v{V_C}')
            a('s_nop 1')
            dn = a.label('syncd')
            a(f's_cmp_ge_u32 s{S_T1}, {wait_for}')
            a(f's_cbranch_scc1 {dn}')
            a(f's_add_u32 s{S_POLL}, s{S_POLL}, 1')
            a(f's_cmp_lt_u32 s{S_POLL}, {POLL_MAX*8}')
            a(f's_cbranch_scc1 {lp}')
            a(f'{dn}:')

    def lds_fill(self, base, nbytes, vq, vaddr):
        a = self.a
        n = nbytes // 16
        a(f'v_lshlrev_b32 v{vaddr}, 4, v{V_TID}')
        a(f'v_add_u32 v{vaddr}, {base}, v{vaddr}')
        r = 0
        while n > 0:
            if n >= 512:
                a(f'ds_write_b128 v{vaddr}, v[{vq}:{vq+3}] offset:{r*8192}')
            else:
                a(f'v_cmp_gt_u32 vcc, {n}, v{V_TID}')
                a(f's_and_saveexec_b64 s[{S_EX}:{S_EX+1}], vcc')
                sk = a.label('fill')
                a(f's_cbranch_execz {sk}')
                a(f'ds_write_b128 v{vaddr}, v[{vq}:{vq+3}] offset:{r*8192}')
                a(f'{sk}:')
                a(f's_mov_b64 exec, s[{S_EX}:{S_EX+1}]')
            n -= 512; r += 1

    def prologue(self):
        a = self.a; o = self.o
        a(f's_cmp_ge_u32 s2, {NB}')
        a('s_cbranch_scc1 L_end')
        a(f's_load_dwordx16 s[{S_KA}:{S_KA+15}], s[0:1], 0')
        a(f's_load_dwordx2 s[{S_KA+16}:{S_KA+17}], s[0:1], 64')
        a('s_memrealtime s[50:51]')
        a(f'v_and_b32 v{V_LANE}, 63, v0')
        a(f'v_lshrrev_b32 v{V_A}, 6, v0')
        if o.get('ts'): a(f'v_mov_b32 v{V_TSR}, 0')
        else: a('s_nop 0')
        a(f'v_readfirstlane_b32 s{S_WAVE}, v{V_A}')
        a(f'v_and_b32 v{V_A}, 15, v{V_LANE}')
        a(f'v_lshrrev_b32 v{V_B}, 4, v{V_LANE}')
        a(f's_lshr_b32 s{S_SET}, s{S_WAVE}, 2')
        a(f's_and_b32 s{S_W3}, s{S_WAVE}, 3')
        a(f's_lshr_b32 s{S_HF}, s{S_W3}, 1')
        a(f's_mul_i32 s{S_RING}, s{S_WAVE}, {RINGW}')
        a(f's_and_b32 s{S_T0}, s{S_W3}, 1')
        a(f's_lshl_b32 s{S_T1}, s{S_SET}, 1')
        a(f's_add_u32 s{S_SLICE}, s{S_T0}, s{S_T1}')
        a(f'v_lshrrev_b32 v{V_C}, 3, v{V_A}')
        a(f'v_and_b32 v{V_D}, 1, v{V_B}')
        a(f'v_lshl_or_b32 v{V_C}, v{V_D}, 1, v{V_C}')
        a(f'v_lshrrev_b32 v{V_D}, 2, v{V_A}')
        a(f'v_lshlrev_b32 v{V_D}, 7, v{V_D}')
        a(f'v_lshl_add_u32 v{V_D}, v{V_B}, 10, v{V_D}')
        a(f'v_bfe_u32 v{V_E}, v{V_A}, 1, 1')
        a(f'v_lshl_add_u32 v{V_D}, v{V_E}, 4, v{V_D}')
        a(f'v_and_b32 v{V_E}, 1, v{V_A}')
        a(f'v_lshl_add_u32 v{V_D}, v{V_E}, 3, v{V_D}')
        a(f'v_add_u32 v{V_D}, s{S_RING}, v{V_D}')
        for j in range(4):
            a(f'v_xor_b32 v{V_E}, {j}, v{V_C}')
            a(f'v_lshl_add_u32 v{V_TR+j}, v{V_E}, 5, v{V_D}')
        a(f's_mul_i32 s{S_T0}, s{S_HF}, {5*APG}')
        a(f's_add_u32 s{S_T0}, s{S_T0}, {AP}')
        a(f'v_lshlrev_b32 v{V_D}, 4, v{V_B}')
        a(f'v_add_u32 v{V_D}, s{S_T0}, v{V_D}')
        a(f's_movk_i32 s{S_T1}, 320')
        a(f'v_and_b32 v{V_E}, 3, v{V_A}')
        a(f'v_mad_u32_u24 v{V_AW}, v{V_E}, s{S_T1}, v{V_D}')
        a(f'v_lshrrev_b32 v{V_E}, 2, v{V_A}')
        a(f'v_add_u32 v{V_E}, 4, v{V_E}')
        a(f'v_mad_u32_u24 v{V_AM}, v{V_E}, s{S_T1}, v{V_D}')
        a(f'v_lshrrev_b32 v{V_C}, 3, v{V_LANE}')
        a(f'v_lshlrev_b32 v{V_LST}, 2, v{V_C}')
        a(f'v_add_u32 v{V_LST}, {LIST}, v{V_LST}')
        a(f'v_and_b32 v{V_D}, 2, v{V_C}')
        a(f'v_and_b32 v{V_E}, 7, v{V_LANE}')
        a(f'v_xor_b32 v{V_E}, v{V_E}, v{V_D}')
        a(f'v_lshlrev_b32 v{V_SWE}, 4, v{V_E}')
        a(f'v_xor_b32 v{V_SWO}, 64, v{V_SWE}')
        a(f's_mov_b32 s{S_M}, 0xfffffe00')
        a(f's_mov_b32 s{S_POLL}, 0')
        a(f's_lshl_b32 s{S_T0}, s{S_SLICE}, 7')
        for c in range(4):
            a(f's_add_u32 s{S_XSO+c}, s{S_T0}, {4096 - c*1024}')
        a('s_waitcnt lgkmcnt(0)')
        k = S_KA
        self.srd(S_X, k+0, 5120000+4096, shift=4096)
        self.srd(S_SRC, k+2, 640000)
        self.srd(S_DST, k+4, 640000)
        self.srd(S_W, k+6, 524288)
        self.srd(S_AS, k+8, 2048)
        self.srd(S_AD, k+10, 2048)
        self.srd(S_OUT, k+12, 5120000)
        self.srd(S_DBG, k+14, 256)
        self.srd(S_WS, k+16, WS_SIZE)
        self.ts(0)

    def lds_init(self):
        a = self.a
        for i in range(4): a(f'v_mov_b32 v{104+i}, 0xfffff000')
        for i in range(4): a(f'v_mov_b32 v{108+i}, 0')
        self.lds_fill(IMG, 16000, 104, 103)
        self.lds_fill(CNT, 1024, 108, 103)
        self.lds_fill(AP, 25600, 108, 103)
        self.lds_fill(DEN, LDS_SIZE - DEN, 108, 103)
        for i in range(4): a(f'v_mov_b32 v{104+i}, 0x40000000')
        self.lds_fill(LIST, 5248, 104, 103)
        a('s_waitcnt lgkmcnt(0)')

    def set0_early(self):
        a = self.a; o = self.o
        sk = a.label('nopub')
        a(f's_or_b32 s{S_T0}, s2, s{S_WAVE}')
        a(f's_cmp_lg_u32 s{S_T0}, 0')
        a(f's_cbranch_scc1 {sk}')
        a(f's_and_b32 s{S_U0}, s50, 0xfff')
        a(f's_bfe_u32 s{S_U1}, s50, 0xc000c')
        a(f's_lshr_b32 s{S_U2}, s50, 24')
        a(f's_lshl_b32 s{S_T0}, s51, 8')
        a(f's_or_b32 s{S_U2}, s{S_U2}, s{S_T0}')
        a(f's_bfe_u32 s{S_U3}, s51, 0xc0004')
        for reg, mul, add in ((S_U1, 5, 0x123), (S_U2, 9, 0x456), (S_U3, 13, 0x789)):
            a(f's_mul_i32 s{S_T0}, s{S_U0}, {mul}')
            a(f's_add_u32 s{reg}, s{reg}, s{S_T0}')
            a(f's_add_u32 s{reg}, s{reg}, {add}')
            a(f's_and_b32 s{reg}, s{reg}, 0xfff')
        a(f's_lshl_b32 s{S_U1}, s{S_U1}, 12')
        a(f's_or_b32 s{S_U0}, s{S_U0}, s{S_U1}')
        a(f's_bitset1_b32 s{S_U0}, 31')
        a(f's_lshl_b32 s{S_U3}, s{S_U3}, 12')
        a(f's_or_b32 s{S_U2}, s{S_U2}, s{S_U3}')
        a(f's_bitset1_b32 s{S_U2}, 31')
        a(f'v_mov_b32 v38, s{S_U0}')
        a(f'v_mov_b32 v39, s{S_U2}')
        a('s_mov_b64 exec, 1')
        a(f'buffer_store_dwordx2 v[38:39], off, s[{S_DBG}:{S_DBG+3}], 0 sc1')
        a('s_mov_b64 exec, -1')
        a(f'{sk}:')
        a(f's_mul_i32 s{S_T0}, s2, 2560')
        a(f'v_lshlrev_b32 v{V_A}, 3, v{V_TID}')
        a(f'buffer_load_dwordx2 v[32:33], v{V_A}, s[{S_DST}:{S_DST+3}], s{S_T0} offen')
        a(f'buffer_load_dwordx2 v[34:35], v{V_A}, s[{S_SRC}:{S_SRC+3}], s{S_T0} offen')
        sk = a.label('no3')
        a(f's_cmp_ge_u32 s{S_WAVE}, 2')
        a(f's_cbranch_scc1 {sk}')
        a(f'v_lshlrev_b32 v{V_A}, 2, v{V_TID}')
        a(f'buffer_load_dword v36, v{V_A}, s[{S_DST}:{S_DST+3}], s{S_T0} offen offset:2048')
        a(f'buffer_load_dword v37, v{V_A}, s[{S_SRC}:{S_SRC+3}], s{S_T0} offen offset:2048')
        a(f'{sk}:')
        self.lds_init()
        a('s_barrier')
        a('s_waitcnt vmcnt(0)')
        self.ts(1)
        sk = a.label('nop0')
        a(f's_cmp_lg_u32 s{S_WAVE}, 0')
        a(f's_cbranch_scc1 {sk}')
        a(f'buffer_load_dwordx2 v[38:39], off, s[{S_DBG}:{S_DBG+3}], 0 sc1')
        a(f'{sk}:')
        a(f's_mov_b32 s{S_C0}, -40')
        a(f's_mov_b32 s{S_C1}, {CNT}')
        a(f's_mov_b32 s{S_C2}, {IMG}')
        a(f'v_mov_b32 v{V_G}, 1')
        def rnd(vd, vs, t):
            a(f'v_mul_u32_u24 v{t}, 0xcccd, v{vd}')
            a(f'v_lshrrev_b32 v{t}, 21, v{t}')
            a(f'v_mad_i32_i24 v{t+1}, v{t}, s{S_C0}, v{vd}')
            a(f'v_lshlrev_b32 v{t+2}, 18, v{vs}')
            a(f'v_lshl_or_b32 v{t+1}, v{t+1}, 12, v{t+2}')
            a(f'v_lshl_add_u32 v{t+3}, v{t}, 2, s{S_C1}')
            a(f'v_lshl_add_u32 v{t+2}, v{t}, 6, s{S_C2}')
            a(f'ds_add_rtn_u32 v{t+3}, v{t+3}, v{V_G}')
        def wr(t):
            a(f'v_cmpx_gt_u32 vcc, 16, v{t+3}')
            a(f'v_lshl_add_u32 v{t+2}, v{t+3}, 2, v{t+2}')
            a(f'ds_write_b32 v{t+2}, v{t+1}')
            a('s_mov_b64 exec, -1')
        rnd(32, 34, 40); rnd(33, 35, 44)
        sk = a.label('no3b')
        a(f's_cmp_ge_u32 s{S_WAVE}, 2')
        a(f's_cbranch_scc1 {sk}')
        rnd(36, 37, 48)
        a('s_waitcnt lgkmcnt(0)')
        wr(48)
        a(f'{sk}:')
        a('s_waitcnt lgkmcnt(0)')
        wr(40); wr(44)
        sk = a.label('nop1'); lp = a.label('npoll'); dn = a.label('ndone')
        a(f's_cmp_lg_u32 s{S_WAVE}, 0')
        a(f's_cbranch_scc1 {sk}')
        a(f'{lp}:')
        a('s_waitcnt vmcnt(0)')
        a(f'v_readfirstlane_b32 s{S_T0}, v38')
        a(f'v_readfirstlane_b32 s{S_T1}, v39')
        a('s_nop 1')
        a(f's_and_b32 s{S_T0}, s{S_T0}, s{S_T1}')
        a(f's_bitcmp1_b32 s{S_T0}, 31')
        a(f's_cbranch_scc1 {dn}')
        a(f's_add_u32 s{S_POLL}, s{S_POLL}, 1')
        a(f's_cmp_gt_u32 s{S_POLL}, {POLL_MAX}')
        a(f's_cbranch_scc1 {dn}')
        a(f'buffer_load_dwordx2 v[38:39], off, s[{S_DBG}:{S_DBG+3}], 0 sc1')
        a(f's_branch {lp}')
        a(f'{dn}:')
        a(f'v_mov_b32 v{V_A}, {M_NONCE}')
        a(f'ds_write_b64 v{V_A}, v[38:39]')
        a(f'{sk}:')
        a('s_waitcnt lgkmcnt(0)')
        a('s_barrier')
        self.ts(2)
        self.read_tags()
        a(f'v_lshlrev_b32 v{V_F}, 4, v{V_TID}')
        a(f's_mov_b32 s{S_C0}, {WS_UTAB}')
        a(f's_mov_b32 s{S_C1}, {WS_UTAB+4096}')
        lp = a.label('upoll'); dn = a.label('udone')
        a(f'{lp}:')
        a(f'buffer_load_dwordx4 v[40:43], v{V_F}, s[{S_WS}:{S_WS+3}], s{S_C0} offen sc1')
        a(f'buffer_load_dwordx4 v[44:47], v{V_F}, s[{S_WS}:{S_WS+3}], s{S_C1} offen sc1')
        a('s_waitcnt vmcnt(0)')
        self.tagcheck(40, V_A, True, V_B)
        self.tagcheck(44, V_A, False, V_B)
        self.poll_tail(V_A, lp, dn)
        a(f'{dn}:')
        self.ts(3)
        a(f's_mov_b32 s{S_C0}, 0xfffff000')
        for i in range(8): a(f'v_and_b32 v{40+i}, s{S_C0}, v{40+i}')
        a(f'v_cvt_pk_bf16_f32 v40, v40, v42')
        a(f'v_cvt_pk_bf16_f32 v41, v41, v43')
        a(f'v_cvt_pk_bf16_f32 v44, v44, v46')
        a(f'v_cvt_pk_bf16_f32 v45, v45, v47')
        a(f'v_lshrrev_b32 v{V_A}, 7, v{V_TID}')
        a(f'v_mul_u32_u24 v{V_A}, 528, v{V_A}')
        a(f'v_and_b32 v{V_B}, 127, v{V_TID}')
        a(f'v_lshl_add_u32 v{V_A}, v{V_B}, 2, v{V_A}')
        a(f'v_add_u32 v{V_A}, {UT}, v{V_A}')
        a(f'ds_write_b32 v{V_A}, v40')
        a(f'ds_write_b32 v{V_A}, v41 offset:2112')
        a(f'ds_write_b32 v{V_A}, v44 offset:1056')
        a(f'ds_write_b32 v{V_A}, v45 offset:{1056+2112}')
        a(f'v_lshlrev_b32 v{V_F}, 6, v{V_TID}')
        a(f's_mul_i32 s{S_C0}, s2, 16000')
        a(f'v_cmp_gt_u32 vcc, 250, v{V_TID}')
        a(f's_mov_b64 s[{S_EX2}:{S_EX2+1}], vcc')
        for i in range(16): a(f'v_mov_b32 v{48+i}, 0xfffff000')
        lp = a.label('epoll'); dn = a.label('edone')
        first = True
        a(f's_mov_b64 exec, s[{S_EX2}:{S_EX2+1}]')
        for i in range(4):
            a(f'buffer_load_dwordx4 v[{48+4*i}:{51+4*i}], v{V_F}, s[{S_WS}:{S_WS+3}], s{S_C0} offen offset:{16*i} sc1')
        a('s_mov_b64 exec, -1')
        a('s_waitcnt lgkmcnt(0)')
        a('s_barrier')
        self.ts(4)
        a(f's_mov_b64 exec, s[{S_EX2}:{S_EX2+1}]')
        a(f'{lp}:')
        a('s_waitcnt vmcnt(0)')
        for i in range(4): self.tagcheck(48+4*i, V_A, i == 0, V_B)
        a(f'v_and_b32 v{V_A}, 0xfff, v{V_A}')
        a(f'v_cmp_ne_u32 vcc, 0, v{V_A}')
        a(f's_cbranch_vccz {dn}')
        a(f's_add_u32 s{S_POLL}, s{S_POLL}, 1')
        a(f's_cmp_gt_u32 s{S_POLL}, {POLL_MAX}')
        a(f's_cbranch_scc1 {dn}')
        a('s_sleep 1')
        for i in range(4):
            a(f'buffer_load_dwordx4 v[{48+4*i}:{51+4*i}], v{V_F}, s[{S_WS}:{S_WS+3}], s{S_C0} offen offset:{16*i} sc1')
        a(f's_branch {lp}')
        a(f'{dn}:')
        self.ts(5)
        a(f's_mov_b32 s{S_C0}, 0xfffc0000')
        a(f's_mov_b32 s{S_C1}, {GCNT}')
        a(f's_mov_b32 s{S_C2}, 0x1e00')
        a(f'v_mov_b32 v{V_G}, 1')
        def p1(k0):
            for k in range(k0, k0+8):
                a(f'v_cmpx_gt_u32 vcc, s{S_C0}, v{48+k}')
                a(f'v_lshrrev_b32 v{V_A}, 12, v{48+k}')
                a(f'v_and_or_b32 v{V_A}, v{V_A}, 60, s{S_C1}')
                a(f'ds_add_rtn_u32 v{64+(k&7)}, v{V_A}, v{V_G}')
            a(f's_mov_b64 exec, s[{S_EX2}:{S_EX2+1}]')
            a('s_waitcnt lgkmcnt(0)')
            for k in range(k0, k0+8):
                a(f'v_cmpx_gt_u32 vcc, s{S_C0}, v{48+k}')
                a(f'v_lshrrev_b32 v{V_A}, 5, v{48+k}')
                a(f'v_and_b32 v{V_A}, 0x1e00, v{V_A}')
                a(f'v_min_u32 v{V_B}, 0x7f, v{64+(k&7)}')
                a(f'v_lshl_add_u32 v{V_A}, v{V_B}, 2, v{V_A}')
                a(f'v_add_u32 v{V_A}, {LIST}, v{V_A}')
                a(f'v_lshrrev_b32 v{V_B}, 9, v{48+k}')
                a(f'ds_write_b32 v{V_A}, v{V_B}')
            a(f's_mov_b64 exec, s[{S_EX2}:{S_EX2+1}]')
        p1(0)
        sk = a.label('norare')
        a(f'v_cmp_gt_u32 vcc, s{S_C0}, v56')
        a(f's_cbranch_vccz {sk}')
        p1(8)
        a(f'v_lshrrev_b32 v{V_A}, 12, v63')
        a(f'v_cmp_eq_u32 vcc, 0xffffe, v{V_A}')
        a(f's_and_saveexec_b64 s[{S_EX}:{S_EX+1}], vcc')
        sk2 = a.label('noovf')
        a(f's_cbranch_execz {sk2}')
        a(f'v_mov_b32 v{V_A}, {M_SLOW}')
        a(f'ds_write_b32 v{V_A}, v{V_G}')
        a(f'{sk2}:')
        a(f'{sk}:')
        a('s_mov_b64 exec, -1')
        a('s_waitcnt lgkmcnt(0)')
        a('s_barrier')
        self.ts(6)
        units = 4
        a(f'v_cmp_gt_u32 vcc, 32, v{V_LANE}')
        a(f's_mov_b64 s[{S_EX2}:{S_EX2+1}], vcc')
        def unit_setup(u):
            if u == 0:
                a(f's_mov_b32 s{S_U0}, s{S_WAVE}'); a(f's_mov_b32 s{S_U1}, s{S_WAVE}')
                a(f's_mov_b32 s{S_U2}, 0'); a(f's_mov_b32 s{S_U3}, 63')
            elif u == 1:
                a(f's_add_u32 s{S_U0}, s{S_WAVE}, 4'); a(f's_mov_b32 s{S_U1}, s{S_U0}')
                a(f's_mov_b32 s{S_U2}, 0'); a(f's_mov_b32 s{S_U3}, 63')
            elif u == 2:
                a(f's_add_u32 s{S_T0}, s{S_WAVE}, 8')
                a(f's_lshl_b32 s{S_T1}, s{S_WAVE}, 2')
                a(f's_sub_u32 s{S_T1}, s{S_T1}, 4')
                a(f's_add_u32 s{S_T2}, s{S_T1}, 1')
                a(f's_cmp_lt_u32 s{S_WAVE}, 2')
                a(f's_cselect_b32 s{S_U0}, s{S_T0}, s{S_T1}')
                a(f's_cselect_b32 s{S_U1}, s{S_T0}, s{S_T2}')
                a(f's_cselect_b32 s{S_U2}, 0, 64')
                a(f's_cselect_b32 s{S_U3}, 63, 31')
            elif u == 3:
                a(f's_lshl_b32 s{S_T0}, s{S_WAVE}, 1')
                a(f's_cmp_lt_u32 s{S_WAVE}, 2')
                a(f's_cselect_b32 s{S_U0}, s{S_T0}, 6')
                a(f's_add_u32 s{S_U1}, s{S_U0}, 1')
                a(f's_cmp_eq_u32 s{S_WAVE}, 3')
                a(f's_cselect_b32 s{S_U2}, 128, 64')
                a(f's_mov_b32 s{S_U3}, 31')
        def unit_addr(u, vle, vaa, vcnt):
            a(f'v_mov_b32 v{V_C}, s{S_U1}')
            a(f'v_mov_b32 v{V_D}, s{S_U0}')
            a(f'v_cndmask_b32 v{V_C}, v{V_C}, v{V_D}, s[{S_EX2}:{S_EX2+1}]')
            a(f'v_and_b32 v{V_D}, s{S_U3}, v{V_LANE}')
            a(f'v_add_u32 v{V_D}, s{S_U2}, v{V_D}')
            a(f'v_lshl_add_u32 v{V_E}, v{V_C}, 2, s{S_C1}')
            a(f'ds_read_b32 v{vcnt}, v{V_E}')
            a(f'v_lshlrev_b32 v{V_E}, 9, v{V_C}')
            a(f'v_lshl_add_u32 v{V_E}, v{V_D}, 2, v{V_E}')
            a(f'v_add_u32 v{V_E}, {LIST}, v{V_E}')
            a(f'ds_read_b32 v{vle}, v{V_E}')
            a(f'v_mul_u32_u24 v{V_E}, {APG}, v{V_C}')
            a(f'v_lshl_add_u32 v{vaa}, v{V_D}, 1, v{V_E}')
            a(f'v_add_u32 v{vaa}, {AP}, v{vaa}')
            return
        RANK0 = 84
        a(f's_mov_b32 s{S_C1}, {GCNT}')
        for u in range(units):
            unit_setup(u)
            unit_addr(u, 32+u, 72+u, 80+u)
            a(f'v_mov_b32 v{RANK0+u}, v{V_D}')
        a('s_waitcnt lgkmcnt(0)')
        for u in range(units): a(f'v_min_u32 v{80+u}, 0x80, v{80+u}')
        a(f's_mov_b32 s{S_C0}, {WS_STAB}')
        a(f's_mov_b32 s{S_C2}, {SDST}')
        def unit_loads(u):
            a(f'v_cmpx_gt_u32 vcc, v{80+u}, v{RANK0+u}')
            a(f'v_lshrrev_b32 v{V_A}, 5, v{32+u}')
            a(f'v_and_b32 v{88+u}, 0x3fff0, v{V_A}')
            a(f'v_lshlrev_b32 v{V_A}, 1, v{32+u}')
            a(f'v_and_b32 v{V_A}, 0x3f0, v{V_A}')
            a(f'v_add_u32 v{76+u}, s{S_C2}, v{V_A}')
            a(f'buffer_load_dwordx4 v[{40+4*u}:{43+4*u}], v{88+u}, s[{S_WS}:{S_WS+3}], s{S_C0} offen sc1')
            a(f'ds_read_b128 v[{56+4*u}:{59+4*u}], v{76+u}')
            a('s_mov_b64 exec, -1')
        for u in range(units): unit_loads(u)
        self.ts(7)
        self.steptab()
        self.xprologue()
        a(f's_waitcnt vmcnt({4*self.R}) lgkmcnt(0)')
        lp = a.label('spoll'); dn = a.label('sdone')
        a(f'{lp}:')
        a(f'v_mov_b32 v{V_F}, 0')
        for u in range(units):
            a(f'v_cmpx_gt_u32 vcc, v{80+u}, v{RANK0+u}')
            self.tagcheck(40+4*u, V_F, False, V_B)
            a('s_mov_b64 exec, -1')
        a(f'v_and_b32 v{V_F}, 0xfff, v{V_F}')
        a(f'v_cmp_ne_u32 vcc, 0, v{V_F}')
        a(f's_cbranch_vccz {dn}')
        a(f's_add_u32 s{S_POLL}, s{S_POLL}, 1')
        a(f's_cmp_gt_u32 s{S_POLL}, {POLL_MAX}')
        a(f's_cbranch_scc1 {dn}')
        a('s_sleep 1')
        for u in range(units):
            a(f'v_cmpx_gt_u32 vcc, v{80+u}, v{RANK0+u}')
            a(f'buffer_load_dwordx4 v[{40+4*u}:{43+4*u}], v{88+u}, s[{S_WS}:{S_WS+3}], s{S_C0} offen sc1')
            a('s_mov_b64 exec, -1')
        a('s_waitcnt vmcnt(0)')
        a(f's_branch {lp}')
        a(f'{dn}:')
        self.ts(8)
        a(f's_mov_b32 s{S_C0}, 0xfffff000')
        a(f's_mov_b32 s{S_C1}, 0xffff0000')
        a(f's_movk_i32 s{S_C2}, 320')
        for u in range(units): self._unit_weights(u, 40+4*u, 56+4*u, 32+u, 72+u, 76+u, RANK0)
        self.rare_c_units(unit_addr, RANK0)
        a('s_waitcnt lgkmcnt(0)')
        a('s_barrier')
        self.ts(9)

    def rare_c_units(self, unit_addr, RANK0):
        a = self.a
        sk = a.label('noC')
        a(f'v_lshlrev_b32 v{V_A}, 2, v{V_LANE}')
        a(f'v_add_u32 v{V_A}, {GCNT}, v{V_A}')
        a(f'v_cmp_gt_u32 vcc, 10, v{V_LANE}')
        a(f's_and_saveexec_b64 s[{S_EX}:{S_EX+1}], vcc')
        a(f'ds_read_b32 v{V_B}, v{V_A}')
        a('s_waitcnt lgkmcnt(0)')
        a(f'v_cmp_lt_u32 vcc, 0x60, v{V_B}')
        a(f's_mov_b64 exec, s[{S_EX}:{S_EX+1}]')
        a(f's_cbranch_vccz {sk}')
        for rep in range(2):
            if rep == 1:
                sk1 = a.label('noC2')
                a(f's_cmp_lg_u32 s{S_WAVE}, 0')
                a(f's_cbranch_scc1 {sk1}')
                a(f's_mov_b32 s{S_U0}, 8')
            else:
                a(f's_lshl_b32 s{S_U0}, s{S_WAVE}, 1')
            a(f's_add_u32 s{S_U1}, s{S_U0}, 1')
            a(f's_mov_b32 s{S_U2}, 96'); a(f's_mov_b32 s{S_U3}, 31')
            a(f's_mov_b32 s{S_C1}, {GCNT}')
            unit_addr(0, 32, 72, 80)
            a(f'v_mov_b32 v{RANK0}, v{V_D}')
            a('s_waitcnt lgkmcnt(0)')
            a(f'v_min_u32 v80, 0x80, v80')
            a(f's_mov_b32 s{S_C0}, {WS_STAB}')
            a(f's_mov_b32 s{S_C2}, {SDST}')
            a(f'v_cmpx_gt_u32 vcc, v80, v{RANK0}')
            a(f'v_lshrrev_b32 v{V_A}, 5, v32')
            a(f'v_and_b32 v88, 0x3fff0, v{V_A}')
            a(f'v_lshlrev_b32 v{V_A}, 1, v32')
            a(f'v_and_b32 v{V_A}, 0x3f0, v{V_A}')
            a(f'v_add_u32 v76, s{S_C2}, v{V_A}')
            a(f'ds_read_b128 v[56:59], v76')
            lp = a.label('cpoll'); dn = a.label('cdone')
            ex = a.label('cempty')
            a(f's_cbranch_execz {ex}')
            a(f'{lp}:')
            a(f'buffer_load_dwordx4 v[40:43], v88, s[{S_WS}:{S_WS+3}], s{S_C0} offen sc1')
            a('s_waitcnt vmcnt(0) lgkmcnt(0)')
            self.tagcheck(40, V_F, True, V_B)
            self.poll_tail(V_F, lp, dn)
            a(f'{dn}:')
            a(f'{ex}:')
            a('s_mov_b64 exec, -1')
            a(f's_mov_b32 s{S_C0}, 0xfffff000')
            a(f's_mov_b32 s{S_C1}, 0xffff0000')
            a(f's_movk_i32 s{S_C2}, 320')
            self._unit_weights(0, 40, 56, 32, 72, 76, RANK0)
            if rep == 1: a(f'{sk1}:')
        a(f'{sk}:')

    def _unit_weights(self, u, sv, dv, le, aa, da, RANK0):
        a = self.a
        a(f'v_cmpx_gt_u32 vcc, v{80+u}, v{RANK0+u}')
        for h in range(4): a(f'v_and_b32 v{sv+h}, s{S_C0}, v{sv+h}')
        for h in range(4): a(f'v_add_f32 v{sv+h}, v{sv+h}, v{dv+h}')
        for h in range(4): a(f'v_mul_f32 v{dv+h}, 0x3e4ccccd, v{sv+h}')
        for h in range(4): a(f'v_max_f32 v{sv+h}, v{sv+h}, v{dv+h}')
        for h in range(4): a(f'v_exp_f32 v{sv+h}, v{sv+h}')
        a(f'v_bfe_u32 v{V_A}, v{le}, 3, 2')
        a(f'v_cvt_pk_bf16_f32 v{dv}, v{sv}, v{sv+1}')
        a(f'v_cvt_pk_bf16_f32 v{dv+1}, v{sv+2}, v{sv+3}')
        a(f'v_mad_u32_u24 v{V_A}, v{V_A}, s{S_C2}, v{aa}')
        a(f'v_mov_b32 v{V_B}, -1')
        a(f'ds_write_b16 v{aa}, v{dv}')
        a(f'ds_write_b16_d16_hi v{aa}, v{dv} offset:320')
        a(f'ds_write_b16 v{aa}, v{dv+1} offset:640')
        a(f'ds_write_b16_d16_hi v{aa}, v{dv+1} offset:960')
        a(f'ds_write_b16 v{V_A}, v{V_B} offset:1280')
        a('s_mov_b64 exec, -1')

    def set1_early(self):
        a = self.a; o = self.o
        a(f's_sub_u32 s{S_U0}, s{S_WAVE}, 4')
        a(f's_lshl_b32 s{S_T0}, s2, 1')
        a(f's_add_u32 s{S_T0}, s{S_T0}, s{S_U0}')
        a(f's_add_u32 s{S_T1}, s2, 500')
        a(f's_cmp_lt_u32 s{S_U0}, 2')
        a(f's_cselect_b32 s{S_U1}, s{S_T0}, s{S_T1}')
        a(f's_cselect_b32 s{S_U2}, 1, 0')
        a(f's_cmp_eq_u32 s{S_U0}, 2')
        a(f's_cselect_b32 s{S_T0}, 1, 0')
        a(f's_cmp_lt_u32 s2, 12')
        a(f's_cselect_b32 s{S_T1}, s{S_T0}, 0')
        a(f's_or_b32 s{S_U2}, s{S_U2}, s{S_T1}')
        sk = a.label('nou')
        a(f's_cmp_eq_u32 s{S_U2}, 0')
        a(f's_cbranch_scc1 {sk}')
        a(f's_lshl_b32 s{S_T0}, s{S_U1}, 10')
        a(f's_lshr_b32 s{S_T1}, s{S_U1}, 7')
        a(f's_lshl_b32 s{S_T1}, s{S_T1}, 9')
        a(f'v_lshlrev_b32 v{V_A}, 3, v{V_LANE}')
        a(f'buffer_load_dwordx2 v[32:33], v{V_A}, s[{S_W}:{S_W+3}], s{S_T0} offen')
        a(f'buffer_load_dwordx2 v[34:35], v{V_A}, s[{S_W}:{S_W+3}], s{S_T0} offen offset:512')
        a(f'buffer_load_dwordx2 v[36:37], v{V_A}, s[{S_AS}:{S_AS+3}], s{S_T1} offen')
        a(f'buffer_load_dwordx2 v[38:39], v{V_A}, s[{S_AD}:{S_AD+3}], s{S_T1} offen')
        a(f'{sk}:')
        sk = a.label('nox')
        a(f's_cmp_gt_u32 s{S_U0}, 2')
        a(f's_cbranch_scc1 {sk}')
        a(f's_mul_i32 s{S_T0}, s2, 40')
        a(f's_lshl_b32 s{S_T1}, s{S_U0}, 4')
        a(f's_add_u32 s{S_T0}, s{S_T0}, s{S_T1}')
        a(f's_lshl_b32 s{S_T0}, s{S_T0}, 9')
        a(f's_add_u32 s{S_T0}, s{S_T0}, 4096')
        a(f'v_and_b32 v{V_A}, 15, v{V_LANE}')
        a(f'v_lshlrev_b32 v{V_A}, 9, v{V_A}')
        a(f'v_lshrrev_b32 v{V_B}, 4, v{V_LANE}')
        a(f'v_lshl_add_u32 v{V_A}, v{V_B}, 4, v{V_A}')
        for t in range(8):
            a(f'buffer_load_dwordx4 v[{40+4*t}:{43+4*t}], v{V_A}, s[{S_X}:{S_X+3}], s{S_T0} offen offset:{64*t}')
        a(f'{sk}:')
        npf = self.prefetch()
        self.lds_init()
        a('s_barrier')
        sk = a.label('nou2')
        a(f's_cmp_eq_u32 s{S_U2}, 0')
        a(f's_cbranch_scc1 {sk}')
        a(f's_waitcnt vmcnt({min(63, 8+npf)})')
        self.ts(1)
        a('v_dot2_f32_bf16 v72, v32, v36, 0')
        a('v_dot2_f32_bf16 v73, v32, v38, 0')
        a('v_dot2_f32_bf16 v74, v34, v36, 0')
        a('v_dot2_f32_bf16 v75, v34, v38, 0')
        a('v_dot2_f32_bf16 v72, v33, v37, v72')
        a('v_dot2_f32_bf16 v73, v33, v39, v73')
        a('v_dot2_f32_bf16 v74, v35, v37, v74')
        a('v_dot2_f32_bf16 v75, v35, v39, v75')
        a('s_nop 2')
        for ctl in ('row_shr:1 row_mask:0xf bank_mask:0xf bound_ctrl:1', 'row_shr:2 row_mask:0xf bank_mask:0xf bound_ctrl:1',
                    'row_shr:4 row_mask:0xf bank_mask:0xf bound_ctrl:1', 'row_shr:8 row_mask:0xf bank_mask:0xf bound_ctrl:1',
                    'row_bcast:15 row_mask:0xa bank_mask:0xf', 'row_bcast:31 row_mask:0xc bank_mask:0xf'):
            for r in range(72, 76):
                a(f'v_add_f32_dpp v{r}, v{r}, v{r} {ctl}')
        for r in range(72, 76):
            a(f'v_mul_f32 v{r}, 0x3fb8aa3b, v{r}')
        for r in range(72, 76):
            a(f'v_add_u32 v{r}, 0x800, v{r}')
        a(f'{sk}:')
        a('s_barrier')
        self.ts(2)
        self.read_tags()
        a(f's_mov_b32 s{S_C0}, 0xfffff000')
        sk = a.label('nou3')
        a(f's_cmp_eq_u32 s{S_U2}, 0')
        a(f's_cbranch_scc1 {sk}')
        for k in range(4):
            a(f'v_and_b32 v{72+k}, s{S_C0}, v{72+k}')
        for k in range(4):
            a(f'v_or_b32 v{72+k}, s{S_T+k}, v{72+k}')
        a(f's_lshl_b32 s{S_T0}, s{S_U1}, 4')
        a(f's_add_u32 s{S_T0}, s{S_T0}, {WS_UTAB}')
        a('s_mov_b32 exec_lo, 0')
        a('s_mov_b32 exec_hi, 0x80000000')
        a(f'buffer_store_dwordx4 v[72:75], off, s[{S_WS}:{S_WS+3}], s{S_T0} sc1')
        a('s_mov_b64 exec, -1')
        a(f'{sk}:')
        a(f'v_subrev_u32 v{V_F}, 256, v{V_TID}')
        a(f'v_lshlrev_b32 v{V_A}, 4, v{V_F}')
        a(f'v_add_u32 v{V_A}, {IMG}, v{V_A}')
        a(f'v_lshrrev_b32 v{V_B}, 2, v{V_F}')
        a(f'v_lshlrev_b32 v{V_C}, 2, v{V_B}')
        a(f'v_add_u32 v{V_C}, {CNT}, v{V_C}')
        for i in range(4):
            a(f'ds_read_b128 v[{76+4*i}:{79+4*i}], v{V_A} offset:{4096*i}')
            a(f'ds_read_b32 v{92+i}, v{V_C} offset:{256*i}')
        a(f'v_mul_u32_u24 v{V_B}, 16000, v{V_B}')
        a(f'v_and_b32 v{V_D}, 3, v{V_F}')
        a(f'v_lshl_add_u32 v{V_B}, v{V_D}, 4, v{V_B}')
        a(f'v_cmp_eq_u32 s[{S_EX2}:{S_EX2+1}], 3, v{V_D}')
        a(f'v_mov_b32 v{V_E}, 0xffffe000')
        a(f's_lshl_b32 s{S_C1}, s2, 6')
        a('s_waitcnt lgkmcnt(0)')
        for i in range(4):
            a(f'v_cmp_lt_u32 vcc, 16, v{92+i}')
            a(f's_and_b64 vcc, vcc, s[{S_EX2}:{S_EX2+1}]')
            a('s_nop 0')
            a(f'v_cndmask_b32 v{79+4*i}, v{79+4*i}, v{V_E}, vcc')
            for k in range(4):
                a(f'v_or_b32 v{76+4*i+k}, s{S_T+k}, v{76+4*i+k}')
            if i == 3:
                a(f'v_cmp_gt_u32 vcc, 232, v{V_F}')
                a(f's_and_saveexec_b64 s[{S_EX}:{S_EX+1}], vcc')
                sk = a.label('tst'); a(f's_cbranch_execz {sk}')
            a(f'buffer_store_dwordx4 v[{76+4*i}:{79+4*i}], v{V_B}, s[{S_WS}:{S_WS+3}], s{S_C1} offen sc1')
            if i == 3:
                a(f'{sk}:'); a(f's_mov_b64 exec, s[{S_EX}:{S_EX+1}]')
            else:
                a(f's_add_u32 s{S_C1}, s{S_C1}, 1024000')
        self.ts(3)
        a('s_barrier')
        self.ts(4)
        sk = a.label('nos')
        a(f's_cmp_gt_u32 s{S_U0}, 2')
        a(f's_cbranch_scc1 {sk}')
        a(f'v_and_b32 v{V_A}, 7, v{V_LANE}')
        a(f'v_mul_u32_u24 v{V_A}, 528, v{V_A}')
        a(f'v_lshrrev_b32 v{V_B}, 4, v{V_LANE}')
        a(f'v_lshl_add_u32 v{V_A}, v{V_B}, 4, v{V_A}')
        a(f'v_add_u32 v{V_A}, {UT}, v{V_A}')
        for t in range(8):
            a(f'ds_read_b128 v[{72+4*t}:{75+4*t}], v{V_A} offset:{64*t}')
        nst = (1 if True else 0)
        a(f's_waitcnt vmcnt({min(63, npf + 4)}) lgkmcnt(0)')
        for t in range(8):
            c = '0' if t == 0 else 'v[104:107]'
            a(f'v_mfma_f32_16x16x32_bf16 v[104:107], v[{72+4*t}:{75+4*t}], v[{40+4*t}:{43+4*t}], {c}')
        a(f'v_and_b32 v{V_A}, 15, v{V_LANE}')
        a(f's_lshl_b32 s{S_T0}, s{S_U0}, 4')
        a(f'v_add_u32 v{V_A}, s{S_T0}, v{V_A}')
        a(f'v_lshrrev_b32 v{V_B}, 4, v{V_LANE}')
        a(f'v_cmp_gt_u32 s[{S_EX2}:{S_EX2+1}], 40, v{V_A}')
        a(f'v_lshlrev_b32 v{V_C}, 4, v{V_A}')
        a(f's_mul_i32 s{S_T1}, s2, 640')
        a(f's_add_u32 s{S_T1}, s{S_T1}, {WS_STAB}')
        a(f'v_add_u32 v{V_D}, {SDST}, v{V_C}')
        a('s_nop 1')
        a(f'v_cmp_eq_u32 vcc, 1, v{V_B}')
        a(f's_and_b64 vcc, vcc, s[{S_EX2}:{S_EX2+1}]')
        a(f's_and_saveexec_b64 s[{S_EX}:{S_EX+1}], vcc')
        a(f'ds_write_b128 v{V_D}, v[104:107]')
        a(f's_mov_b64 exec, s[{S_EX}:{S_EX+1}]')
        for k in range(4): a(f'v_add_u32 v{108+k}, 0x800, v{104+k}')
        for k in range(4): a(f'v_and_b32 v{108+k}, s{S_C0}, v{108+k}')
        for k in range(4): a(f'v_or_b32 v{108+k}, s{S_T+k}, v{108+k}')
        a(f'v_cmp_eq_u32 vcc, 0, v{V_B}')
        a(f's_and_b64 vcc, vcc, s[{S_EX2}:{S_EX2+1}]')
        a(f's_and_saveexec_b64 s[{S_EX}:{S_EX+1}], vcc')
        a(f'buffer_store_dwordx4 v[108:111], v{V_C}, s[{S_WS}:{S_WS+3}], s{S_T1} offen sc1')
        a(f's_mov_b64 exec, s[{S_EX}:{S_EX+1}]')
        a(f'{sk}:')
        self.ts(5)
        a('s_waitcnt lgkmcnt(0)')
        a('s_barrier')
        self.ts(6)
        self.steptab()
        self.xprologue()
        a('s_waitcnt lgkmcnt(0)')
        a('s_barrier')
        self.ts(9)

    def prefetch(self):
        a = self.a; o = self.o
        n = 0
        if o.get('wpf'):
            sk = a.label('nowpf')
            a(f's_cmp_lt_u32 s{S_WAVE}, 6')
            a(f's_cbranch_scc1 {sk}')
            a(f's_lshr_b32 s{S_T0}, s2, 3')
            a(f's_lshl_b32 s{S_T0}, s{S_T0}, 1')
            a(f's_add_u32 s{S_T0}, s{S_T0}, s{S_WAVE}')
            a(f's_sub_u32 s{S_T0}, s{S_T0}, 6')
            a(f's_lshl_b32 s{S_T0}, s{S_T0}, 13')
            a(f'v_lshlrev_b32 v{V_A}, 7, v{V_LANE}')
            a(f'buffer_load_dword v254, v{V_A}, s[{S_W}:{S_W+3}], s{S_T0} offen')
            a(f'{sk}:')
        xp = o.get('xpf', 0)
        if xp:
            a(f's_lshr_b32 s{S_T0}, s2, 3')
            a(f's_mul_i32 s{S_T0}, s{S_T0}, {xp}')
            a(f's_lshl_b32 s{S_T0}, s{S_T0}, 9')
            a(f's_add_u32 s{S_T0}, s{S_T0}, 4096')
            rows_per_wave = (xp + 3) // 4
            a(f's_mul_i32 s{S_T1}, s{S_W3}, {rows_per_wave*512}')
            a(f's_add_u32 s{S_T0}, s{S_T0}, s{S_T1}')
            a(f'v_lshrrev_b32 v{V_A}, 1, v{V_LANE}')
            a(f'v_lshlrev_b32 v{V_A}, 9, v{V_A}')
            a(f'v_and_b32 v{V_B}, 1, v{V_LANE}')
            a(f'v_lshl_add_u32 v{V_A}, v{V_B}, 7, v{V_A}')
            ni = (rows_per_wave + 31) // 32
            for half in range(2):
                for i in range(ni):
                    a(f's_add_u32 s{S_T1}, s{S_T0}, {i*32*512 + half*256}')
                    a(f'buffer_load_dword v255, v{V_A}, s[{S_X}:{S_X+3}], s{S_T1} offen')
                    n += 1
        return n

    def steptab(self):
        a = self.a
        a(f's_mul_i32 s{S_T0}, s{S_HF}, 20')
        a(f's_add_u32 s{S_T0}, s{S_T0}, {GCNT}')
        a(f'v_lshlrev_b32 v{V_A}, 2, v{V_LANE}')
        a(f'v_add_u32 v{V_A}, s{S_T0}, v{V_A}')
        a(f'ds_read_b32 v{V_B}, v{V_A}')
        a(f'v_mov_b32 v{V_A}, {M_SLOW}')
        a(f'ds_read_b32 v{V_C}, v{V_A}')
        a('s_waitcnt lgkmcnt(0)')
        a(f'v_cmp_lt_u32 vcc, 0x80, v{V_B}')
        a(f's_and_b32 s{S_T1}, vcc_lo, 31')
        a(f'v_min_u32 v{V_B}, 0x80, v{V_B}')
        a(f'v_add_u32 v{V_B}, 31, v{V_B}')
        a(f'v_lshrrev_b32 v{V_B}, 5, v{V_B}')
        a('s_nop 0')
        for g in range(5): a(f'v_readlane_b32 s{S_N+g}, v{V_B}, {g}')
        a(f's_mul_i32 s{S_T2}, s{S_HF}, {5*512}')
        a(f'v_mov_b32 v{V_TAB}, 5120')
        a(f's_mov_b32 s{S_T0}, 0')
        a(f's_add_u32 s{S_U0}, s{S_N}, s{S_N+1}')
        a(f's_add_u32 s{S_U0}, s{S_U0}, s{S_N+2}')
        a(f's_add_u32 s{S_U0}, s{S_U0}, s{S_N+3}')
        a(f's_add_u32 s{S_U0}, s{S_U0}, s{S_N+4}')
        for g in range(5):
            a(f'v_subrev_u32 v{V_A}, s{S_T0}, v{V_LANE}')
            a(f'v_lshlrev_b32 v{V_A}, 7, v{V_A}')
            a(f's_add_u32 s{S_T1}, s{S_T2}, {g*512}')
            a(f'v_add_u32 v{V_A}, s{S_T1}, v{V_A}')
            a(f'v_cmp_le_u32 vcc, s{S_T0}, v{V_LANE}')
            a('s_nop 1')
            a(f'v_cndmask_b32 v{V_TAB}, v{V_TAB}, v{V_A}, vcc')
            a(f's_add_u32 s{S_T0}, s{S_T0}, s{S_N+g}')
        a(f'v_mov_b32 v{V_A}, 5120')
        a(f'v_cmp_le_u32 vcc, s{S_U0}, v{V_LANE}')
        a('s_nop 1')
        a(f'v_cndmask_b32 v{V_TAB}, v{V_TAB}, v{V_A}, vcc')

    def idx_read(self):
        a = self.a
        a(f'v_readlane_b32 s{S_T0}, v{V_TAB}, s{S_J}')
        a(f's_add_u32 s{S_J}, s{S_J}, 1')
        a('s_nop 0')
        a(f'v_add_u32 v{V_G}, s{S_T0}, v{V_LST}')
        a(f'ds_read2_b32 v[{V_IDX}:{V_IDX+1}], v{V_G} offset0:0 offset1:8')
        a(f'ds_read2_b32 v[{V_IDX+2}:{V_IDX+3}], v{V_G} offset0:16 offset1:24')

    def dma_issue(self):
        a = self.a
        for c in range(4):
            sw = V_SWE if c % 2 == 0 else V_SWO
            a(f'v_and_or_b32 v{V_IDX+c}, v{V_IDX+c}, s{S_M}, v{sw}')
        for c in range(4):
            a(f'buffer_load_dwordx4 v{V_IDX+c}, s[{S_X}:{S_X+3}], s{S_XSO+c} offen offset:{c*1024} lds')

    def xprologue(self):
        a = self.a
        a(f's_mov_b32 s{S_J}, 0')
        a('s_nop 2')
        for j in range(self.R):
            self.idx_read()
            a(f's_add_u32 m0, s{S_RING}, {j*4096}')
            a('s_waitcnt lgkmcnt(0)')
            self.dma_issue()
        self.idx_read()
        a(f's_mov_b32 s{S_SLOT}, 0')

    def aggregate(self):
        a = self.a; R = self.R
        for i in range(80): a(f'v_mov_b32 v{V_ACC+i}, 0')
        for i in range(4): a(f'v_mov_b32 v{V_ONE+i}, 0x3f803f80')
        for gg in range(5):
            nxt = a.label(f'g{gg}end')
            for i in range(4): a(f'v_mov_b32 v{V_DEN+i}, 0')
            for t in range(4):
                a(f's_cmp_le_u32 s{S_N+gg}, {t}')
                a(f's_cbranch_scc1 {nxt}')
                a(f's_waitcnt vmcnt({4*(R-1)})')
                off = gg*APG + t*64
                a(f'ds_read_b128 v[{V_AF}:{V_AF+3}], v{V_AW} offset:{off}')
                a(f'ds_read_b128 v[{V_MF}:{V_MF+3}], v{V_AM} offset:{off}')
                for j in range(4):
                    a(f'ds_read_b64_tr_b16 v[{V_BF+4*j}:{V_BF+4*j+1}], v{V_TR+j}')
                    a(f'ds_read_b64_tr_b16 v[{V_BF+4*j+2}:{V_BF+4*j+3}], v{V_TR+j} offset:512')
                a(f's_add_u32 m0, s{S_RING}, s{S_SLOT}')
                a(f's_add_u32 s{S_SLOT}, s{S_SLOT}, 4096')
                a(f's_cmp_eq_u32 s{S_SLOT}, {R*4096}')
                a(f's_cselect_b32 s{S_SLOT}, 0, s{S_SLOT}')
                a(f's_mov_b32 s{S_DELTA}, 4096')
                a(f's_cselect_b32 s{S_DELTA}, s{S_C3}, s{S_DELTA}')
                a('s_waitcnt lgkmcnt(0)')
                self.dma_issue()
                for k in range(4): a(f'v_and_b32 v{V_AF+k}, v{V_AF+k}, v{V_MF+k}')
                for j in range(4): a(f'v_add_u32 v{V_TR+j}, s{S_DELTA}, v{V_TR+j}')
                self.idx_read()
                for j in range(4):
                    acc = V_ACC + gg*16 + 4*j
                    if j == 0:
                        a(f'v_mfma_f32_16x16x32_bf16 v[{V_DEN}:{V_DEN+3}], v[{V_AF}:{V_AF+3}], v[{V_ONE}:{V_ONE+3}], v[{V_DEN}:{V_DEN+3}]')
                    a(f'v_mfma_f32_16x16x32_bf16 v[{acc}:{acc+3}], v[{V_AF}:{V_AF+3}], v[{V_BF+4*j}:{V_BF+4*j+3}], v[{acc}:{acc+3}]')
            a(f'{nxt}:')
            a('s_nop 7')
            for h in range(4): a(f'v_add_f32 v{V_DEN+h}, 0x3089705f, v{V_DEN+h}')
            for h in range(4): a(f'v_rcp_f32 v{V_DEN+h}, v{V_DEN+h}')
            for h in range(4): a(f'v_mul_f32 v{V_DEN+h}, 0x3e800000, v{V_DEN+h}')
            for j in range(4):
                for h in range(4): a(f'v_mul_f32 v{V_ACC+gg*16+4*j+h}, v{V_ACC+gg*16+4*j+h}, v{V_DEN+h}')
        a('s_waitcnt vmcnt(0) lgkmcnt(0)')

    def agg_write(self):
        a = self.a
        self.setsync(0)
        a(f'v_and_b32 v{V_C}, 15, v{V_LANE}')
        a(f'v_lshrrev_b32 v{V_A}, 4, v{V_LANE}')
        a(f'v_bfe_u32 v{V_D}, v{V_C}, 1, 2')
        a(f'v_lshrrev_b32 v{V_E}, 3, v{V_C}')
        a(f'v_lshl_add_u32 v{V_F}, v{V_E}, 2, v{V_D}')
        a(f'v_and_b32 v{V_G}, 1, v{V_C}')
        a(f's_mul_i32 s{S_U0}, s{S_SET}, {4*RINGW}')
        a(f's_and_b32 s{S_U1}, s{S_SLICE}, 1')
        end = a.label('aggw_end'); h1 = a.label('aggw_h1')
        a(f's_cmp_eq_u32 s{S_HF}, 1')
        a(f's_cbranch_scc1 {h1}')
        for hf in range(2):
            if hf == 1: a(f'{h1}:')
            for gg in range(5):
                node0 = 20*hf + 4*gg
                mt, mb = node0 >> 4, node0 & 15
                TS, QS = (1024, 256) if mt < 2 else (512, 128)
                tb = mt*16384
                ad = V_AF
                a(f'v_add_u32 v{ad}, {mb}, v{V_A}')
                a(f'v_xor_b32 v{ad}, v{ad}, v{V_F}')
                a(f'v_lshlrev_b32 v{ad}, 4, v{ad}')
                a(f'v_lshl_add_u32 v{ad}, v{V_G}, 3, v{ad}')
                a(f'v_lshl_add_u32 v{ad}, v{V_D}, {8 if QS==256 else 7}, v{ad}')
                a(f'v_lshl_add_u32 v{ad}, v{V_E}, {10 if TS==1024 else 9}, v{ad}')
                a(f's_mul_i32 s{S_T0}, s{S_U1}, {8*TS}')
                a(f's_add_u32 s{S_T0}, s{S_T0}, s{S_U0}')
                a(f'v_add_u32 v{ad}, s{S_T0}, v{ad}')
                for j in range(4):
                    acc = V_ACC + gg*16 + 4*j
                    a(f'v_cvt_pk_bf16_f32 v{V_MF}, v{acc}, v{acc+1}')
                    a(f'v_cvt_pk_bf16_f32 v{V_MF+1}, v{acc+2}, v{acc+3}')
                    a(f'ds_write_b64 v{ad}, v[{V_MF}:{V_MF+1}] offset:{tb + 2*j*TS}')
            if hf == 0: a(f's_branch {end}')
        a(f'{end}:')

    def wdma_setup(self):
        a = self.a
        a(f'v_lshrrev_b32 v{V_A}, 3, v{V_LANE}')
        a(f'v_and_b32 v{V_B}, 3, v{V_A}')
        a(f'v_lshlrev_b32 v{V_B}, 17, v{V_B}')
        a(f'v_lshrrev_b32 v{V_A}, 2, v{V_A}')
        a(f'v_lshl_add_u32 v{V_B}, v{V_A}, 9, v{V_B}')
        a(f'v_add_u32 v{V_IDX}, v{V_B}, v{V_SWE}')
        a(f'v_add_u32 v{V_IDX+1}, v{V_B}, v{V_SWO}')
        a(f's_lshl_b32 s{S_U2}, s{S_SET}, 16')
        a(f's_lshl_b32 s{S_T0}, s{S_W3}, 7')
        a(f's_add_u32 s{S_U2}, s{S_U2}, s{S_T0}')

    def wdma(self, t, ldsbase_sgpr, slotoff):
        a = self.a
        a(f's_add_u32 m0, s{ldsbase_sgpr}, {slotoff}')
        a(f's_add_u32 s{S_T0}, s{S_U2}, {t*4096}')
        for c in range(4):
            a(f'buffer_load_dwordx4 v{V_IDX + (c&1)}, s[{S_W}:{S_W+3}], s{S_T0} offen offset:{c*1024} lds')

    def wtr(self, dst, slotoff):
        a = self.a
        for j in range(4):
            a(f'ds_read_b64_tr_b16 v[{dst+4*j}:{dst+4*j+1}], v{V_TR+j} offset:{slotoff}')
            a(f'ds_read_b64_tr_b16 v[{dst+4*j+2}:{dst+4*j+3}], v{V_TR+j} offset:{slotoff+512}')

    def gemm(self):
        a = self.a; o = self.o
        npre = o.get('npre', 0)
        a(f's_lshl_b32 s{S_T0}, s{S_W3}, 13')
        a(f's_add_u32 s{S_T1}, s{S_T0}, {WR}')
        a(f's_add_u32 s{S_T2}, s{S_T0}, {AP-8192}')
        a(f's_cmp_eq_u32 s{S_W3}, 0')
        a(f's_cselect_b32 s{S_T2}, {4*RINGW+40960}, s{S_T2}')
        a(f's_cmp_eq_u32 s{S_SET}, 0')
        a(f's_cselect_b32 s{S_U3}, s{S_T1}, s{S_T2}')
        a(f's_add_u32 s{S_T0}, s{S_RING}, s{S_SLOT}')
        a(f's_sub_u32 s{S_T0}, s{S_U3}, s{S_T0}')
        for j in range(4): a(f'v_add_u32 v{V_TR+j}, s{S_T0}, v{V_TR+j}')
        self.wdma_setup()
        sk = a.label('wsync')
        a(f's_cmp_eq_u32 s{S_SET}, 0')
        a(f's_cbranch_scc1 {sk}')
        self.setsync(0, other=True, signal=False)
        a(f'{sk}:')
        stream = list(range(npre, 16))
        for i, t in enumerate(stream[:2]): self.wdma(t, S_U3, i*4096)
        a(f'v_and_b32 v{V_A}, 15, v{V_LANE}')
        a(f'v_lshrrev_b32 v{V_B}, 4, v{V_LANE}')
        a(f's_mul_i32 s{S_T0}, s{S_SET}, {4*RINGW}')
        for par in range(2):
            a(f'v_add_u32 v{V_C}, {4*par}, v{V_B}')
            a(f'v_xor_b32 v{V_D}, v{V_A}, v{V_C}')
            a(f'v_lshlrev_b32 v{V_D}, 4, v{V_D}')
            a(f'v_lshl_add_u32 v{V_D}, v{V_B}, 8, v{V_D}')
            a(f'v_add_u32 v{104+par}, s{S_T0}, v{V_D}')
            a(f'v_and_b32 v{V_D}, 7, v{V_A}')
            a(f'v_xor_b32 v{V_D}, v{V_D}, v{V_C}')
            a(f'v_lshlrev_b32 v{V_D}, 4, v{V_D}')
            a(f'v_lshl_add_u32 v{V_D}, v{V_B}, 7, v{V_D}')
            a(f'v_add_u32 v{106+par}, s{S_T0}, v{V_D}')
        self.setsync(1)
        self.ts(12)
        AB = [80, 92]
        def aggread(t, buf):
            for mt in range(3):
                if mt < 2:
                    a(f'ds_read_b128 v[{buf+4*mt}:{buf+4*mt+3}], v{104+(t&1)} offset:{mt*16384 + t*1024}')
                else:
                    a(f'ds_read_b128 v[{buf+8}:{buf+11}], v{106+(t&1)} offset:{32768 + t*512}')
        def wreg(t):
            if t < npre: return V_W + 16*t
            return V_W + 16*npre - 32 + 16*((t - npre) & 1) if npre >= 2 else V_W + 16*((t-npre) & 1)
        order = list(range(16))
        def wreg2(t):
            if t < npre: return V_W + 16*t
            return V_W + 16*((t - npre) & 1)
        def prep(t):
            if t >= npre:
                i = t - npre
                a(f's_waitcnt vmcnt({4 if i+1 < len(stream) else 0})')
                self.wtr(wreg2(t), (i & 1)*4096)
            aggread(t, AB[t & 1])
        prep(0)
        a('s_waitcnt lgkmcnt(0)')
        if 0 >= npre and len(stream) > 2: self.wdma(stream[2], S_U3, 0)
        for t in range(16):
            if t + 1 < 16:
                prep(t+1)
            w = wreg2(t); b = AB[t & 1]
            for mt in range(3):
                for j in range(4):
                    acc = V_ACC + 16*mt + 4*j
                    c = '0' if t == 0 else f'v[{acc}:{acc+3}]'
                    a(f'v_mfma_f32_16x16x32_bf16 v[{acc}:{acc+3}], v[{w+4*j}:{w+4*j+3}], v[{b+4*mt}:{b+4*mt+3}], {c}')
            if t + 1 < 16:
                a('s_waitcnt lgkmcnt(0)')
                i = t + 1 - npre
                if i >= 0 and i + 2 < len(stream): self.wdma(stream[i+2], S_U3, (i & 1)*4096)
        self.ts(13)

    def finish(self):
        a = self.a
        s1 = a.label('fin1')
        a(f's_cmp_eq_u32 s{S_SET}, 1')
        a(f's_cbranch_scc1 {s1}')
        a('s_nop 7')
        self.setsync(2)
        a(f's_mul_i32 s{S_T0}, s{S_W3}, {RINGW}')
        a(f'v_lshlrev_b32 v{V_D}, 4, v{V_LANE}')
        a(f'v_add_u32 v{V_D}, s{S_T0}, v{V_D}')
        for i in range(12):
            a(f'ds_write_b128 v{V_D}, v[{V_ACC+4*i}:{V_ACC+4*i+3}] offset:{1024*i}')
        self.setsync(3, wait=False)
        self.ts(14)
        a('s_branch L_fin')
        a(f'{s1}:')
        self.setsync(3, other=True, signal=False)
        a(f's_mul_i32 s{S_T0}, s{S_W3}, {RINGW}')
        a(f'v_lshlrev_b32 v{V_D}, 4, v{V_LANE}')
        a(f'v_add_u32 v{V_D}, s{S_T0}, v{V_D}')
        P = V_W
        for i in range(12):
            a(f'ds_read_b128 v[{P+4*i}:{P+4*i+3}], v{V_D} offset:{1024*i}')
        a(f'v_and_b32 v{V_A}, 15, v{V_LANE}')
        a(f'v_lshrrev_b32 v{V_B}, 4, v{V_LANE}')
        a(f'v_and_b32 v{V_C}, 1, v{V_B}')
        a(f'v_lshrrev_b32 v{V_E}, 1, v{V_B}')
        a(f'v_lshlrev_b32 v{V_C}, 5, v{V_C}')
        a(f'v_lshl_add_u32 v{V_C}, v{V_E}, 4, v{V_C}')
        a(f'v_lshl_add_u32 v{V_C}, v{V_A}, 9, v{V_C}')
        a(f's_mul_i32 s{S_T0}, s2, {40*512}')
        a(f's_lshl_b32 s{S_T1}, s{S_W3}, 7')
        a(f's_add_u32 s{S_T0}, s{S_T0}, s{S_T1}')
        a(f'v_cmp_gt_u32 s[{S_EX2}:{S_EX2+1}], 8, v{V_A}')
        a('s_waitcnt lgkmcnt(0)')
        for i in range(48): a(f'v_add_f32 v{V_ACC+i}, v{V_ACC+i}, v{P+i}')
        for mt in range(3):
            for jp in range(2):
                R0 = P + 8*mt + 4*jp
                for jj in range(2):
                    acc = V_ACC + 16*mt + 4*(2*jp+jj)
                    a(f'v_cvt_pk_bf16_f32 v{R0+2*jj}, v{acc}, v{acc+1}')
                    a(f'v_cvt_pk_bf16_f32 v{R0+2*jj+1}, v{acc+2}, v{acc+3}')
        a('s_nop 1')
        for mt in range(3):
            for jp in range(2):
                R0 = P + 8*mt + 4*jp
                a(f'v_permlane16_swap_b32 v{R0}, v{R0+2}')
                a(f'v_permlane16_swap_b32 v{R0+1}, v{R0+3}')
        for mt in range(3):
            a(f's_add_u32 s{S_T1}, s{S_T0}, {mt*16*512}')
            if mt == 2: a(f's_mov_b64 exec, s[{S_EX2}:{S_EX2+1}]')
            for jp in range(2):
                R0 = P + 8*mt + 4*jp
                a(f'buffer_store_dwordx4 v[{R0}:{R0+3}], v{V_C}, s[{S_OUT}:{S_OUT+3}], s{S_T1} offen offset:{64*jp}')
        a('s_mov_b64 exec, -1')
        self.ts(14)
        a('L_fin:')
        if self.o.get('ts'):
            a(f's_lshl_b32 s{S_T0}, s2, 3')
            a(f's_add_u32 s{S_T0}, s{S_T0}, s{S_WAVE}')
            a(f's_lshl_b32 s{S_T0}, s{S_T0}, 6')
            a(f's_add_u32 s{S_T0}, s{S_T0}, {WS_TS}')
            a(f'v_writelane_b32 v{V_TSR}, s{S_POLL}, 15')
            a(f'v_lshlrev_b32 v{V_A}, 2, v{V_LANE}')
            a(f'v_cmp_gt_u32 vcc, 16, v{V_LANE}')
            a(f's_and_saveexec_b64 s[{S_EX}:{S_EX+1}], vcc')
            a(f'buffer_store_dword v{V_TSR}, v{V_A}, s[{S_WS}:{S_WS+3}], s{S_T0} offen')
            a(f's_mov_b64 exec, s[{S_EX}:{S_EX+1}]')

    def build(self):
        a = self.a; o = self.o
        self.R = 3
        a(f'; @launch grid=({NB},1,1) block=(512,1,1) lds={LDS_SIZE}')
        a('.amdgcn_target "amdgcn-amd-amdhsa--gfx950"')
        a('.text')
        a(f'.globl {KNAME}')
        a('.p2align 8')
        a(f'.type {KNAME},@function')
        a(f'{KNAME}:')
        self.prologue()
        a(f's_mov_b32 s{S_C3}, {(-(self.R-1)*4096) & 0xffffffff}')
        a(f's_cmp_eq_u32 s{S_SET}, 1')
        a('s_cbranch_scc1 L_set1')
        self.set0_early()
        a('s_branch L_common')
        a('L_set1:')
        self.set1_early()
        a('L_common:')
        self.aggregate()
        self.ts(10)
        self.agg_write()
        self.ts(11)
        self.gemm()
        self.finish()
        a('L_end:')
        a('s_endpgm')
        a('.section .rodata,"a"')
        a('.p2align 6')
        a(f'.amdhsa_kernel {KNAME}')
        a('  .amdhsa_next_free_vgpr 256')
        a('  .amdhsa_next_free_sgpr 102')
        a('  .amdhsa_accum_offset 256')
        a('  .amdhsa_group_segment_fixed_size 0')
        a('  .amdhsa_kernarg_size 72')
        a('  .amdhsa_user_sgpr_count 2')
        a('  .amdhsa_user_sgpr_kernarg_segment_ptr 1')
        a('  .amdhsa_system_sgpr_workgroup_id_x 1')
        a('  .amdhsa_float_denorm_mode_32 3')
        a('  .amdhsa_float_denorm_mode_16_64 3')
        a('.end_amdhsa_kernel')
        return a


def generate(path, **opt):
    g = Gen(opt)
    a = g.build()
    probs = check(a.lines)
    open(path, 'w').write(a.text())
    return probs

if __name__ == '__main__':
    ap = argparse.ArgumentParser()
    ap.add_argument('out')
    ap.add_argument('--ts', type=int, default=0)
    ap.add_argument('--wpf', type=int, default=0)
    ap.add_argument('--xpf', type=int, default=0)
    ap.add_argument('--npre', type=int, default=0)
    args = ap.parse_args()
    o = vars(args); out = o.pop('out')
    p = generate(out, **o)
    print('hazards:', len(p))
```

```python
import sys, argparse
from asmcore import Asm, vr, sr, check

KNAME = 'gather_scatter__graph_attention_gat__graph_kernel'
NB = 250
WS_TABLE = 0
WS_UTAB = 0x400000
WS_STAB = 0x410000
WS_TS = 0x500000
WS_DUMP = 0x520000
WS_SIZE = 0x4000000
RINGW = 12288
RING = 0
WR = 98304
IMG = WR
CNT = IMG + 16000
UT = IMG + 17024
AP = 131072
APG = 2560
LIST = AP + 25600
DEN = LIST + 5248
SDST = DEN + 640
GCNT = SDST + 640
MISC = GCNT + 64
LDS_SIZE = MISC + 64
assert GCNT % 64 == 0 and LDS_SIZE <= 163840
M_NONCE = MISC
M_SLOW = MISC + 8
M_SYNC = MISC + 16
S_X, S_W, S_WS, S_SRC, S_DST, S_AS, S_AD, S_DBG, S_OUT = 4, 8, 12, 16, 20, 24, 28, 32, 36
S_WAVE, S_SET, S_W3, S_HF = 40, 41, 42, 43
S_T = 44
S_SLICE = 48
S_XSO = 52
S_RING, S_SLOT, S_J, S_DELTA = 56, 57, 58, 59
S_N = 60
S_T0, S_T1, S_T2, S_T3 = 65, 66, 67, 3
S_EX = 68
S_EX2 = 70
S_KA = 72
S_TS = 90
S_C0, S_C1, S_C2, S_C3 = 92, 93, 94, 95
S_POLL = 96
S_M = 97
S_U0, S_U1, S_U2, S_U3 = 98, 99, 100, 101
V_TID, V_LANE = 0, 1
V_TR = 2
V_AW, V_AM, V_LST = 6, 7, 8
V_SWE, V_SWO = 9, 10
V_TAB = 11
V_IDX = 12
V_AF = 16
V_MF = 20
V_A, V_B, V_C, V_D, V_E, V_F, V_G = 24, 25, 26, 27, 28, 29, 30
V_TSR = 31
V_ONE = 24
V_DEN = 232
V_ACC = 32
V_W = 112
V_BF = 240

POLL_MAX = 200000


class Gen:
    def __init__(self, opt):
        self.o = opt
        self.a = Asm()
        self.nts = 0

    def ts(self, idx):
        if not self.o.get('ts'): return
        a = self.a
        a(f's_memrealtime s[{S_TS}:{S_TS+1}]')
        a('s_waitcnt lgkmcnt(0)')
        a(f'v_writelane_b32 v{V_TSR}, s{S_TS}, {idx}')

    def srd(self, r, base, size, shift=0):
        a = self.a
        if shift:
            a(f's_sub_u32 s{r}, s{base}, {shift}')
            a(f's_subb_u32 s{r+1}, s{base+1}, 0')
            a(f's_and_b32 s{r+1}, s{r+1}, 0xffff')
        else:
            a(f's_mov_b32 s{r}, s{base}')
            a(f's_and_b32 s{r+1}, s{base+1}, 0xffff')
        a(f's_mov_b32 s{r+2}, {size}')
        a(f's_mov_b32 s{r+3}, 0x20000')

    def tagcheck(self, base, acc, first, tmp):
        a = self.a
        for k in range(4):
            if first and k == 0:
                a(f'v_xor_b32 v{acc}, s{S_T+k}, v{base+k}')
            else:
                a(f'v_xor_b32 v{tmp}, s{S_T+k}, v{base+k}')
                a(f'v_or_b32 v{acc}, v{acc}, v{tmp}')

    def poll_tail(self, acc, lab_loop, lab_done):
        a = self.a
        a(f'v_and_b32 v{acc}, 0xfff, v{acc}')
        a(f'v_cmp_ne_u32 vcc, 0, v{acc}')
        a(f's_cbranch_vccz {lab_done}')
        a(f's_add_u32 s{S_POLL}, s{S_POLL}, 1')
        a(f's_cmp_gt_u32 s{S_POLL}, {POLL_MAX}')
        a(f's_cbranch_scc1 {lab_done}')
        a('s_sleep 1')
        a(f's_branch {lab_loop}')

    def read_tags(self):
        a = self.a
        a(f'v_mov_b32 v{V_A}, {M_NONCE}')
        a(f'ds_read_b64 v[{V_B+1}:{V_B+2}], v{V_A}')
        a('s_waitcnt lgkmcnt(0)')
        a(f'v_readfirstlane_b32 s{S_T0}, v{V_B+1}')
        a(f'v_readfirstlane_b32 s{S_T1}, v{V_B+2}')
        a('s_nop 1')
        a(f's_and_b32 s{S_T}, s{S_T0}, 0xfff')
        a(f's_bfe_u32 s{S_T+1}, s{S_T0}, 0xc000c')
        a(f's_and_b32 s{S_T+2}, s{S_T1}, 0xfff')
        a(f's_bfe_u32 s{S_T+3}, s{S_T1}, 0xc000c')

    def setsync(self, k, wait_for=4, other=False, signal=True, wait=True):
        a = self.a
        if other:
            a(f's_xor_b32 s{S_T0}, s{S_SET}, 1')
            a(f's_lshl_b32 s{S_T0}, s{S_T0}, 4')
        else:
            a(f's_lshl_b32 s{S_T0}, s{S_SET}, 4')
        a(f's_add_u32 s{S_T0}, s{S_T0}, {M_SYNC + 4*k}')
        a(f'v_mov_b32 v{V_A}, s{S_T0}')
        if signal:
            a('s_waitcnt lgkmcnt(0)')
            a(f'v_mov_b32 v{V_B}, 1')
            a('s_mov_b64 exec, 1')
            a(f'ds_add_u32 v{V_A}, v{V_B}')
            a('s_mov_b64 exec, -1')
        if wait:
            lp = a.label('sync')
            a(f'{lp}:')
            a(f'ds_read_b32 v{V_C}, v{V_A}')
            a('s_waitcnt lgkmcnt(0)')
            a(f'v_readfirstlane_b32 s{S_T1}, v{V_C}')
            a('s_nop 1')
            dn = a.label('syncd')
            a(f's_cmp_ge_u32 s{S_T1}, {wait_for}')
            a(f's_cbranch_scc1 {dn}')
            a(f's_add_u32 s{S_POLL}, s{S_POLL}, 1')
            a(f's_cmp_lt_u32 s{S_POLL}, {POLL_MAX*8}')
            a(f's_cbranch_scc1 {lp}')
            a(f'{dn}:')

    def lds_fill(self, base, nbytes, vq, vaddr):
        a = self.a
        n = nbytes // 16
        a(f'v_lshlrev_b32 v{vaddr}, 4, v{V_TID}')
        a(f'v_add_u32 v{vaddr}, {base}, v{vaddr}')
        r = 0
        while n > 0:
            if n >= 512:
                a(f'ds_write_b128 v{vaddr}, v[{vq}:{vq+3}] offset:{r*8192}')
            else:
                a(f'v_cmp_gt_u32 vcc, {n}, v{V_TID}')
                a(f's_and_saveexec_b64 s[{S_EX}:{S_EX+1}], vcc')
                sk = a.label('fill')
                a(f's_cbranch_execz {sk}')
                a(f'ds_write_b128 v{vaddr}, v[{vq}:{vq+3}] offset:{r*8192}')
                a(f'{sk}:')
                a(f's_mov_b64 exec, s[{S_EX}:{S_EX+1}]')
            n -= 512; r += 1

    def prologue(self):
        a = self.a; o = self.o
        a(f's_cmp_ge_u32 s2, {NB}')
        a('s_cbranch_scc1 L_end')
        a(f's_load_dwordx16 s[{S_KA}:{S_KA+15}], s[0:1], 0')
        a(f's_load_dwordx2 s[{S_KA+16}:{S_KA+17}], s[0:1], 64')
        a('s_memrealtime s[50:51]')
        a(f'v_and_b32 v{V_LANE}, 63, v0')
        a(f'v_lshrrev_b32 v{V_A}, 6, v0')
        if o.get('ts'): a(f'v_mov_b32 v{V_TSR}, 0')
        else: a('s_nop 0')
        a(f'v_readfirstlane_b32 s{S_WAVE}, v{V_A}')
        a(f'v_and_b32 v{V_A}, 15, v{V_LANE}')
        a(f'v_lshrrev_b32 v{V_B}, 4, v{V_LANE}')
        a(f's_lshr_b32 s{S_SET}, s{S_WAVE}, 2')
        a(f's_and_b32 s{S_W3}, s{S_WAVE}, 3')
        a(f's_lshr_b32 s{S_HF}, s{S_W3}, 1')
        a(f's_mul_i32 s{S_RING}, s{S_WAVE}, {RINGW}')
        a(f's_and_b32 s{S_T0}, s{S_W3}, 1')
        a(f's_lshl_b32 s{S_T1}, s{S_SET}, 1')
        a(f's_add_u32 s{S_SLICE}, s{S_T0}, s{S_T1}')
        a(f'v_lshrrev_b32 v{V_C}, 3, v{V_A}')
        a(f'v_and_b32 v{V_D}, 1, v{V_B}')
        a(f'v_lshl_or_b32 v{V_C}, v{V_D}, 1, v{V_C}')
        a(f'v_lshrrev_b32 v{V_D}, 2, v{V_A}')
        a(f'v_lshlrev_b32 v{V_D}, 7, v{V_D}')
        a(f'v_lshl_add_u32 v{V_D}, v{V_B}, 10, v{V_D}')
        a(f'v_bfe_u32 v{V_E}, v{V_A}, 1, 1')
        a(f'v_lshl_add_u32 v{V_D}, v{V_E}, 4, v{V_D}')
        a(f'v_and_b32 v{V_E}, 1, v{V_A}')
        a(f'v_lshl_add_u32 v{V_D}, v{V_E}, 3, v{V_D}')
        a(f'v_add_u32 v{V_D}, s{S_RING}, v{V_D}')
        for j in range(4):
            a(f'v_xor_b32 v{V_E}, {j}, v{V_C}')
            a(f'v_lshl_add_u32 v{V_TR+j}, v{V_E}, 5, v{V_D}')
        a(f's_mul_i32 s{S_T0}, s{S_HF}, {5*APG}')
        a(f's_add_u32 s{S_T0}, s{S_T0}, {AP}')
        a(f'v_lshlrev_b32 v{V_D}, 4, v{V_B}')
        a(f'v_add_u32 v{V_D}, s{S_T0}, v{V_D}')
        a(f's_movk_i32 s{S_T1}, 320')
        a(f'v_and_b32 v{V_E}, 3, v{V_A}')
        a(f'v_mad_u32_u24 v{V_AW}, v{V_E}, s{S_T1}, v{V_D}')
        a(f'v_lshrrev_b32 v{V_E}, 2, v{V_A}')
        a(f'v_add_u32 v{V_E}, 4, v{V_E}')
        a(f'v_mad_u32_u24 v{V_AM}, v{V_E}, s{S_T1}, v{V_D}')
        a(f'v_lshrrev_b32 v{V_C}, 3, v{V_LANE}')
        a(f'v_lshlrev_b32 v{V_LST}, 2, v{V_C}')
        a(f'v_add_u32 v{V_LST}, {LIST}, v{V_LST}')
        a(f'v_and_b32 v{V_D}, 2, v{V_C}')
        a(f'v_and_b32 v{V_E}, 7, v{V_LANE}')
        a(f'v_xor_b32 v{V_E}, v{V_E}, v{V_D}')
        a(f'v_lshlrev_b32 v{V_SWE}, 4, v{V_E}')
        a(f'v_xor_b32 v{V_SWO}, 64, v{V_SWE}')
        a(f's_mov_b32 s{S_M}, 0xfffffe00')
        a(f's_mov_b32 s{S_POLL}, 0')
        a(f's_lshl_b32 s{S_T0}, s{S_SLICE}, 7')
        for c in range(4):
            a(f's_add_u32 s{S_XSO+c}, s{S_T0}, {4096 - c*1024}')
        a('s_waitcnt lgkmcnt(0)')
        k = S_KA
        self.srd(S_X, k+0, 5120000+4096, shift=4096)
        self.srd(S_SRC, k+2, 640000)
        self.srd(S_DST, k+4, 640000)
        self.srd(S_W, k+6, 524288)
        self.srd(S_AS, k+8, 2048)
        self.srd(S_AD, k+10, 2048)
        self.srd(S_OUT, k+12, 5120000)
        self.srd(S_DBG, k+14, 256)
        self.srd(S_WS, k+16, WS_SIZE)
        self.ts(0)

    def lds_init(self):
        a = self.a
        for i in range(4): a(f'v_mov_b32 v{104+i}, 0xfffff000')
        for i in range(4): a(f'v_mov_b32 v{108+i}, 0')
        self.lds_fill(IMG, 16000, 104, 103)
        self.lds_fill(CNT, 1024, 108, 103)
        self.lds_fill(AP, 25600, 108, 103)
        self.lds_fill(DEN, LDS_SIZE - DEN, 108, 103)
        for i in range(4): a(f'v_mov_b32 v{104+i}, 0x40000000')
        self.lds_fill(LIST, 5248, 104, 103)
        a('s_waitcnt lgkmcnt(0)')

    def set0_early(self):
        a = self.a; o = self.o
        sk = a.label('nopub')
        a(f's_or_b32 s{S_T0}, s2, s{S_WAVE}')
        a(f's_cmp_lg_u32 s{S_T0}, 0')
        a(f's_cbranch_scc1 {sk}')
        a(f's_and_b32 s{S_U0}, s50, 0xfff')
        a(f's_bfe_u32 s{S_U1}, s50, 0xc000c')
        a(f's_lshr_b32 s{S_U2}, s50, 24')
        a(f's_lshl_b32 s{S_T0}, s51, 8')
        a(f's_or_b32 s{S_U2}, s{S_U2}, s{S_T0}')
        a(f's_bfe_u32 s{S_U3}, s51, 0xc0004')
        for reg, mul, add in ((S_U1, 5, 0x123), (S_U2, 9, 0x456), (S_U3, 13, 0x789)):
            a(f's_mul_i32 s{S_T0}, s{S_U0}, {mul}')
            a(f's_add_u32 s{reg}, s{reg}, s{S_T0}')
            a(f's_add_u32 s{reg}, s{reg}, {add}')
            a(f's_and_b32 s{reg}, s{reg}, 0xfff')
        a(f's_lshl_b32 s{S_U1}, s{S_U1}, 12')
        a(f's_or_b32 s{S_U0}, s{S_U0}, s{S_U1}')
        a(f's_bitset1_b32 s{S_U0}, 31')
        a(f's_lshl_b32 s{S_U3}, s{S_U3}, 12')
        a(f's_or_b32 s{S_U2}, s{S_U2}, s{S_U3}')
        a(f's_bitset1_b32 s{S_U2}, 31')
        a(f'v_mov_b32 v38, s{S_U0}')
        a(f'v_mov_b32 v39, s{S_U2}')
        a('s_mov_b64 exec, 1')
        a(f'buffer_store_dwordx2 v[38:39], off, s[{S_DBG}:{S_DBG+3}], 0 sc1')
        a('s_mov_b64 exec, -1')
        a(f'{sk}:')
        a(f's_mul_i32 s{S_T0}, s2, 2560')
        a(f'v_lshlrev_b32 v{V_A}, 3, v{V_TID}')
        a(f'buffer_load_dwordx2 v[32:33], v{V_A}, s[{S_DST}:{S_DST+3}], s{S_T0} offen')
        a(f'buffer_load_dwordx2 v[34:35], v{V_A}, s[{S_SRC}:{S_SRC+3}], s{S_T0} offen')
        sk = a.label('no3')
        a(f's_cmp_ge_u32 s{S_WAVE}, 2')
        a(f's_cbranch_scc1 {sk}')
        a(f'v_lshlrev_b32 v{V_A}, 2, v{V_TID}')
        a(f'buffer_load_dword v36, v{V_A}, s[{S_DST}:{S_DST+3}], s{S_T0} offen offset:2048')
        a(f'buffer_load_dword v37, v{V_A}, s[{S_SRC}:{S_SRC+3}], s{S_T0} offen offset:2048')
        a(f'{sk}:')
        self.lds_init()
        a('s_barrier')
        a('s_waitcnt vmcnt(0)')
        self.ts(1)
        sk = a.label('nop0')
        a(f's_cmp_lg_u32 s{S_WAVE}, 0')
        a(f's_cbranch_scc1 {sk}')
        a(f'buffer_load_dwordx2 v[38:39], off, s[{S_DBG}:{S_DBG+3}], 0 sc1')
        a(f'{sk}:')
        a(f's_mov_b32 s{S_C0}, -40')
        a(f's_mov_b32 s{S_C1}, {CNT}')
        a(f's_mov_b32 s{S_C2}, {IMG}')
        a(f'v_mov_b32 v{V_G}, 1')
        def rnd(vd, vs, t):
            a(f'v_mul_u32_u24 v{t}, 0xcccd, v{vd}')
            a(f'v_lshrrev_b32 v{t}, 21, v{t}')
            a(f'v_mad_i32_i24 v{t+1}, v{t}, s{S_C0}, v{vd}')
            a(f'v_lshlrev_b32 v{t+2}, 18, v{vs}')
            a(f'v_lshl_or_b32 v{t+1}, v{t+1}, 12, v{t+2}')
            a(f'v_lshl_add_u32 v{t+3}, v{t}, 2, s{S_C1}')
            a(f'v_lshl_add_u32 v{t+2}, v{t}, 6, s{S_C2}')
            a(f'ds_add_rtn_u32 v{t+3}, v{t+3}, v{V_G}')
        def wr(t):
            a(f'v_cmpx_gt_u32 vcc, 16, v{t+3}')
            a(f'v_lshl_add_u32 v{t+2}, v{t+3}, 2, v{t+2}')
            a(f'ds_write_b32 v{t+2}, v{t+1}')
            a('s_mov_b64 exec, -1')
        rnd(32, 34, 40); rnd(33, 35, 44)
        sk = a.label('no3b')
        a(f's_cmp_ge_u32 s{S_WAVE}, 2')
        a(f's_cbranch_scc1 {sk}')
        rnd(36, 37, 48)
        a('s_waitcnt lgkmcnt(0)')
        wr(48)
        a(f'{sk}:')
        a('s_waitcnt lgkmcnt(0)')
        wr(40); wr(44)
        sk = a.label('nop1'); lp = a.label('npoll'); dn = a.label('ndone')
        a(f's_cmp_lg_u32 s{S_WAVE}, 0')
        a(f's_cbranch_scc1 {sk}')
        a(f'{lp}:')
        a('s_waitcnt vmcnt(0)')
        a(f'v_readfirstlane_b32 s{S_T0}, v38')
        a(f'v_readfirstlane_b32 s{S_T1}, v39')
        a('s_nop 1')
        a(f's_and_b32 s{S_T0}, s{S_T0}, s{S_T1}')
        a(f's_bitcmp1_b32 s{S_T0}, 31')
        a(f's_cbranch_scc1 {dn}')
        a(f's_add_u32 s{S_POLL}, s{S_POLL}, 1')
        a(f's_cmp_gt_u32 s{S_POLL}, {POLL_MAX}')
        a(f's_cbranch_scc1 {dn}')
        a(f'buffer_load_dwordx2 v[38:39], off, s[{S_DBG}:{S_DBG+3}], 0 sc1')
        a(f's_branch {lp}')
        a(f'{dn}:')
        a(f'v_mov_b32 v{V_A}, {M_NONCE}')
        a(f'ds_write_b64 v{V_A}, v[38:39]')
        a(f'{sk}:')
        a('s_waitcnt lgkmcnt(0)')
        a('s_barrier')
        self.ts(2)
        self.read_tags()
        a(f'v_lshlrev_b32 v{V_F}, 4, v{V_TID}')
        a(f's_mov_b32 s{S_C0}, {WS_UTAB}')
        a(f's_mov_b32 s{S_C1}, {WS_UTAB+4096}')
        lp = a.label('upoll'); dn = a.label('udone')
        a(f'{lp}:')
        a(f'buffer_load_dwordx4 v[40:43], v{V_F}, s[{S_WS}:{S_WS+3}], s{S_C0} offen sc1')
        a(f'buffer_load_dwordx4 v[44:47], v{V_F}, s[{S_WS}:{S_WS+3}], s{S_C1} offen sc1')
        a('s_waitcnt vmcnt(0)')
        self.tagcheck(40, V_A, True, V_B)
        self.tagcheck(44, V_A, False, V_B)
        self.poll_tail(V_A, lp, dn)
        a(f'{dn}:')
        self.ts(3)
        a(f's_mov_b32 s{S_C0}, 0xfffff000')
        for i in range(8): a(f'v_and_b32 v{40+i}, s{S_C0}, v{40+i}')
        a(f'v_cvt_pk_bf16_f32 v40, v40, v42')
        a(f'v_cvt_pk_bf16_f32 v41, v41, v43')
        a(f'v_cvt_pk_bf16_f32 v44, v44, v46')
        a(f'v_cvt_pk_bf16_f32 v45, v45, v47')
        a(f'v_lshrrev_b32 v{V_A}, 7, v{V_TID}')
        a(f'v_mul_u32_u24 v{V_A}, 528, v{V_A}')
        a(f'v_and_b32 v{V_B}, 127, v{V_TID}')
        a(f'v_lshl_add_u32 v{V_A}, v{V_B}, 2, v{V_A}')
        a(f'v_add_u32 v{V_A}, {UT}, v{V_A}')
        a(f'ds_write_b32 v{V_A}, v40')
        a(f'ds_write_b32 v{V_A}, v41 offset:2112')
        a(f'ds_write_b32 v{V_A}, v44 offset:1056')
        a(f'ds_write_b32 v{V_A}, v45 offset:{1056+2112}')
        a(f'v_lshlrev_b32 v{V_F}, 6, v{V_TID}')
        a(f's_mul_i32 s{S_C0}, s2, 16000')
        a(f'v_cmp_gt_u32 vcc, 250, v{V_TID}')
        a(f's_mov_b64 s[{S_EX2}:{S_EX2+1}], vcc')
        for i in range(16): a(f'v_mov_b32 v{48+i}, 0xfffff000')
        lp = a.label('epoll'); dn = a.label('edone')
        first = True
        a(f's_mov_b64 exec, s[{S_EX2}:{S_EX2+1}]')
        for i in range(4):
            a(f'buffer_load_dwordx4 v[{48+4*i}:{51+4*i}], v{V_F}, s[{S_WS}:{S_WS+3}], s{S_C0} offen offset:{16*i} sc1')
        a('s_mov_b64 exec, -1')
        a('s_waitcnt lgkmcnt(0)')
        a('s_barrier')
        self.ts(4)
        a(f's_mov_b64 exec, s[{S_EX2}:{S_EX2+1}]')
        a(f'{lp}:')
        a('s_waitcnt vmcnt(0)')
        for i in range(4): self.tagcheck(48+4*i, V_A, i == 0, V_B)
        a(f'v_and_b32 v{V_A}, 0xfff, v{V_A}')
        a(f'v_cmp_ne_u32 vcc, 0, v{V_A}')
        a(f's_cbranch_vccz {dn}')
        a(f's_add_u32 s{S_POLL}, s{S_POLL}, 1')
        a(f's_cmp_gt_u32 s{S_POLL}, {POLL_MAX}')
        a(f's_cbranch_scc1 {dn}')
        a('s_sleep 1')
        for i in range(4):
            a(f'buffer_load_dwordx4 v[{48+4*i}:{51+4*i}], v{V_F}, s[{S_WS}:{S_WS+3}], s{S_C0} offen offset:{16*i} sc1')
        a(f's_branch {lp}')
        a(f'{dn}:')
        self.ts(5)
        a(f's_mov_b32 s{S_C0}, 0xfffc0000')
        a(f's_mov_b32 s{S_C1}, {GCNT}')
        a(f's_mov_b32 s{S_C2}, 0x1e00')
        a(f'v_mov_b32 v{V_G}, 1')
        def p1(k0):
            for k in range(k0, k0+8):
                a(f'v_cmpx_gt_u32 vcc, s{S_C0}, v{48+k}')
                a(f'v_lshrrev_b32 v{V_A}, 12, v{48+k}')
                a(f'v_and_or_b32 v{V_A}, v{V_A}, 60, s{S_C1}')
                a(f'ds_add_rtn_u32 v{64+(k&7)}, v{V_A}, v{V_G}')
            a(f's_mov_b64 exec, s[{S_EX2}:{S_EX2+1}]')
            a('s_waitcnt lgkmcnt(0)')
            for k in range(k0, k0+8):
                a(f'v_cmpx_gt_u32 vcc, s{S_C0}, v{48+k}')
                a(f'v_lshrrev_b32 v{V_A}, 5, v{48+k}')
                a(f'v_and_b32 v{V_A}, 0x1e00, v{V_A}')
                a(f'v_min_u32 v{V_B}, 0x7f, v{64+(k&7)}')
                a(f'v_lshl_add_u32 v{V_A}, v{V_B}, 2, v{V_A}')
                a(f'v_add_u32 v{V_A}, {LIST}, v{V_A}')
                a(f'v_lshrrev_b32 v{V_B}, 9, v{48+k}')
                a(f'ds_write_b32 v{V_A}, v{V_B}')
            a(f's_mov_b64 exec, s[{S_EX2}:{S_EX2+1}]')
        p1(0)
        sk = a.label('norare')
        a(f'v_cmp_gt_u32 vcc, s{S_C0}, v56')
        a(f's_cbranch_vccz {sk}')
        p1(8)
        a(f'v_lshrrev_b32 v{V_A}, 12, v63')
        a(f'v_cmp_eq_u32 vcc, 0xffffe, v{V_A}')
        a(f's_and_saveexec_b64 s[{S_EX}:{S_EX+1}], vcc')
        sk2 = a.label('noovf')
        a(f's_cbranch_execz {sk2}')
        a(f'v_mov_b32 v{V_A}, {M_SLOW}')
        a(f'ds_write_b32 v{V_A}, v{V_G}')
        a(f'{sk2}:')
        a(f'{sk}:')
        a('s_mov_b64 exec, -1')
        a('s_waitcnt lgkmcnt(0)')
        a('s_barrier')
        self.ts(6)
        units = 4
        a(f'v_cmp_gt_u32 vcc, 32, v{V_LANE}')
        a(f's_mov_b64 s[{S_EX2}:{S_EX2+1}], vcc')
        def unit_setup(u):
            if u == 0:
                a(f's_mov_b32 s{S_U0}, s{S_WAVE}'); a(f's_mov_b32 s{S_U1}, s{S_WAVE}')
                a(f's_mov_b32 s{S_U2}, 0'); a(f's_mov_b32 s{S_U3}, 63')
            elif u == 1:
                a(f's_add_u32 s{S_U0}, s{S_WAVE}, 4'); a(f's_mov_b32 s{S_U1}, s{S_U0}')
                a(f's_mov_b32 s{S_U2}, 0'); a(f's_mov_b32 s{S_U3}, 63')
            elif u == 2:
                a(f's_add_u32 s{S_T0}, s{S_WAVE}, 8')
                a(f's_lshl_b32 s{S_T1}, s{S_WAVE}, 2')
                a(f's_sub_u32 s{S_T1}, s{S_T1}, 4')
                a(f's_add_u32 s{S_T2}, s{S_T1}, 1')
                a(f's_cmp_lt_u32 s{S_WAVE}, 2')
                a(f's_cselect_b32 s{S_U0}, s{S_T0}, s{S_T1}')
                a(f's_cselect_b32 s{S_U1}, s{S_T0}, s{S_T2}')
                a(f's_cselect_b32 s{S_U2}, 0, 64')
                a(f's_cselect_b32 s{S_U3}, 63, 31')
            elif u == 3:
                a(f's_lshl_b32 s{S_T0}, s{S_WAVE}, 1')
                a(f's_cmp_lt_u32 s{S_WAVE}, 2')
                a(f's_cselect_b32 s{S_U0}, s{S_T0}, 6')
                a(f's_add_u32 s{S_U1}, s{S_U0}, 1')
                a(f's_cmp_eq_u32 s{S_WAVE}, 3')
                a(f's_cselect_b32 s{S_U2}, 128, 64')
                a(f's_mov_b32 s{S_U3}, 31')
        def unit_addr(u, vle, vaa, vcnt):
            a(f'v_mov_b32 v{V_C}, s{S_U1}')
            a(f'v_mov_b32 v{V_D}, s{S_U0}')
            a(f'v_cndmask_b32 v{V_C}, v{V_C}, v{V_D}, s[{S_EX2}:{S_EX2+1}]')
            a(f'v_and_b32 v{V_D}, s{S_U3}, v{V_LANE}')
            a(f'v_add_u32 v{V_D}, s{S_U2}, v{V_D}')
            a(f'v_lshl_add_u32 v{V_E}, v{V_C}, 2, s{S_C1}')
            a(f'ds_read_b32 v{vcnt}, v{V_E}')
            a(f'v_lshlrev_b32 v{V_E}, 9, v{V_C}')
            a(f'v_lshl_add_u32 v{V_E}, v{V_D}, 2, v{V_E}')
            a(f'v_add_u32 v{V_E}, {LIST}, v{V_E}')
            a(f'ds_read_b32 v{vle}, v{V_E}')
            a(f'v_mul_u32_u24 v{V_E}, {APG}, v{V_C}')
            a(f'v_lshl_add_u32 v{vaa}, v{V_D}, 1, v{V_E}')
            a(f'v_add_u32 v{vaa}, {AP}, v{vaa}')
            return
        RANK0 = 84
        a(f's_mov_b32 s{S_C1}, {GCNT}')
        for u in range(units):
            unit_setup(u)
            unit_addr(u, 32+u, 72+u, 80+u)
            a(f'v_mov_b32 v{RANK0+u}, v{V_D}')
        a('s_waitcnt lgkmcnt(0)')
        for u in range(units): a(f'v_min_u32 v{80+u}, 0x80, v{80+u}')
        a(f's_mov_b32 s{S_C0}, {WS_STAB}')
        a(f's_mov_b32 s{S_C2}, {SDST}')
        def unit_loads(u):
            a(f'v_cmpx_gt_u32 vcc, v{80+u}, v{RANK0+u}')
            a(f'v_lshrrev_b32 v{V_A}, 5, v{32+u}')
            a(f'v_and_b32 v{88+u}, 0x3fff0, v{V_A}')
            a(f'v_lshlrev_b32 v{V_A}, 1, v{32+u}')
            a(f'v_and_b32 v{V_A}, 0x3f0, v{V_A}')
            a(f'v_add_u32 v{76+u}, s{S_C2}, v{V_A}')
            a(f'buffer_load_dwordx4 v[{40+4*u}:{43+4*u}], v{88+u}, s[{S_WS}:{S_WS+3}], s{S_C0} offen sc1')
            a(f'ds_read_b128 v[{56+4*u}:{59+4*u}], v{76+u}')
            a('s_mov_b64 exec, -1')
        for u in range(units): unit_loads(u)
        self.ts(7)
        self.steptab()
        self.xprologue()
        a(f's_waitcnt vmcnt({4*self.R}) lgkmcnt(0)')
        lp = a.label('spoll'); dn = a.label('sdone')
        a(f'{lp}:')
        a(f'v_mov_b32 v{V_F}, 0')
        for u in range(units):
            a(f'v_cmpx_gt_u32 vcc, v{80+u}, v{RANK0+u}')
            self.tagcheck(40+4*u, V_F, False, V_B)
            a('s_mov_b64 exec, -1')
        a(f'v_and_b32 v{V_F}, 0xfff, v{V_F}')
        a(f'v_cmp_ne_u32 vcc, 0, v{V_F}')
        a(f's_cbranch_vccz {dn}')
        a(f's_add_u32 s{S_POLL}, s{S_POLL}, 1')
        a(f's_cmp_gt_u32 s{S_POLL}, {POLL_MAX}')
        a(f's_cbranch_scc1 {dn}')
        a('s_sleep 1')
        for u in range(units):
            a(f'v_cmpx_gt_u32 vcc, v{80+u}, v{RANK0+u}')
            a(f'buffer_load_dwordx4 v[{40+4*u}:{43+4*u}], v{88+u}, s[{S_WS}:{S_WS+3}], s{S_C0} offen sc1')
            a('s_mov_b64 exec, -1')
        a('s_waitcnt vmcnt(0)')
        a(f's_branch {lp}')
        a(f'{dn}:')
        self.ts(8)
        a(f's_mov_b32 s{S_C0}, 0xfffff000')
        a(f's_mov_b32 s{S_C1}, 0xffff0000')
        a(f's_movk_i32 s{S_C2}, 320')
        for u in range(units): self._unit_weights(u, 40+4*u, 56+4*u, 32+u, 72+u, 76+u, RANK0)
        self.rare_c_units(unit_addr, RANK0)
        a('s_waitcnt lgkmcnt(0)')
        a('s_barrier')
        self.ts(9)

    def rare_c_units(self, unit_addr, RANK0):
        a = self.a
        sk = a.label('noC')
        a(f'v_lshlrev_b32 v{V_A}, 2, v{V_LANE}')
        a(f'v_add_u32 v{V_A}, {GCNT}, v{V_A}')
        a(f'v_cmp_gt_u32 vcc, 10, v{V_LANE}')
        a(f's_and_saveexec_b64 s[{S_EX}:{S_EX+1}], vcc')
        a(f'ds_read_b32 v{V_B}, v{V_A}')
        a('s_waitcnt lgkmcnt(0)')
        a(f'v_cmp_lt_u32 vcc, 0x60, v{V_B}')
        a(f's_mov_b64 exec, s[{S_EX}:{S_EX+1}]')
        a(f's_cbranch_vccz {sk}')
        for rep in range(2):
            if rep == 1:
                sk1 = a.label('noC2')
                a(f's_cmp_lg_u32 s{S_WAVE}, 0')
                a(f's_cbranch_scc1 {sk1}')
                a(f's_mov_b32 s{S_U0}, 8')
            else:
                a(f's_lshl_b32 s{S_U0}, s{S_WAVE}, 1')
            a(f's_add_u32 s{S_U1}, s{S_U0}, 1')
            a(f's_mov_b32 s{S_U2}, 96'); a(f's_mov_b32 s{S_U3}, 31')
            a(f's_mov_b32 s{S_C1}, {GCNT}')
            unit_addr(0, 32, 72, 80)
            a(f'v_mov_b32 v{RANK0}, v{V_D}')
            a('s_waitcnt lgkmcnt(0)')
            a(f'v_min_u32 v80, 0x80, v80')
            a(f's_mov_b32 s{S_C0}, {WS_STAB}')
            a(f's_mov_b32 s{S_C2}, {SDST}')
            a(f'v_cmpx_gt_u32 vcc, v80, v{RANK0}')
            a(f'v_lshrrev_b32 v{V_A}, 5, v32')
            a(f'v_and_b32 v88, 0x3fff0, v{V_A}')
            a(f'v_lshlrev_b32 v{V_A}, 1, v32')
            a(f'v_and_b32 v{V_A}, 0x3f0, v{V_A}')
            a(f'v_add_u32 v76, s{S_C2}, v{V_A}')
            a(f'ds_read_b128 v[56:59], v76')
            lp = a.label('cpoll'); dn = a.label('cdone')
            ex = a.label('cempty')
            a(f's_cbranch_execz {ex}')
            a(f'{lp}:')
            a(f'buffer_load_dwordx4 v[40:43], v88, s[{S_WS}:{S_WS+3}], s{S_C0} offen sc1')
            a('s_waitcnt vmcnt(0) lgkmcnt(0)')
            self.tagcheck(40, V_F, True, V_B)
            self.poll_tail(V_F, lp, dn)
            a(f'{dn}:')
            a(f'{ex}:')
            a('s_mov_b64 exec, -1')
            a(f's_mov_b32 s{S_C0}, 0xfffff000')
            a(f's_mov_b32 s{S_C1}, 0xffff0000')
            a(f's_movk_i32 s{S_C2}, 320')
            self._unit_weights(0, 40, 56, 32, 72, 76, RANK0)
            if rep == 1: a(f'{sk1}:')
        a(f'{sk}:')

    def _unit_weights(self, u, sv, dv, le, aa, da, RANK0):
        a = self.a
        a(f'v_cmpx_gt_u32 vcc, v{80+u}, v{RANK0+u}')
        for h in range(4): a(f'v_and_b32 v{sv+h}, s{S_C0}, v{sv+h}')
        for h in range(4): a(f'v_add_f32 v{sv+h}, v{sv+h}, v{dv+h}')
        for h in range(4): a(f'v_mul_f32 v{dv+h}, 0x3e4ccccd, v{sv+h}')
        for h in range(4): a(f'v_max_f32 v{sv+h}, v{sv+h}, v{dv+h}')
        for h in range(4): a(f'v_exp_f32 v{sv+h}, v{sv+h}')
        a(f'v_bfe_u32 v{V_A}, v{le}, 3, 2')
        a(f'v_cvt_pk_bf16_f32 v{dv}, v{sv}, v{sv+1}')
        a(f'v_cvt_pk_bf16_f32 v{dv+1}, v{sv+2}, v{sv+3}')
        a(f'v_mad_u32_u24 v{V_A}, v{V_A}, s{S_C2}, v{aa}')
        a(f'v_mov_b32 v{V_B}, -1')
        a(f'ds_write_b16 v{aa}, v{dv}')
        a(f'ds_write_b16_d16_hi v{aa}, v{dv} offset:320')
        a(f'ds_write_b16 v{aa}, v{dv+1} offset:640')
        a(f'ds_write_b16_d16_hi v{aa}, v{dv+1} offset:960')
        a(f'ds_write_b16 v{V_A}, v{V_B} offset:1280')
        a('s_mov_b64 exec, -1')

    def set1_early(self):
        a = self.a; o = self.o
        a(f's_sub_u32 s{S_U0}, s{S_WAVE}, 4')
        a(f's_lshl_b32 s{S_T0}, s2, 1')
        a(f's_add_u32 s{S_T0}, s{S_T0}, s{S_U0}')
        a(f's_add_u32 s{S_T1}, s2, 500')
        a(f's_cmp_lt_u32 s{S_U0}, 2')
        a(f's_cselect_b32 s{S_U1}, s{S_T0}, s{S_T1}')
        a(f's_cselect_b32 s{S_U2}, 1, 0')
        a(f's_cmp_eq_u32 s{S_U0}, 2')
        a(f's_cselect_b32 s{S_T0}, 1, 0')
        a(f's_cmp_lt_u32 s2, 12')
        a(f's_cselect_b32 s{S_T1}, s{S_T0}, 0')
        a(f's_or_b32 s{S_U2}, s{S_U2}, s{S_T1}')
        sk = a.label('nou')
        a(f's_cmp_eq_u32 s{S_U2}, 0')
        a(f's_cbranch_scc1 {sk}')
        a(f's_lshl_b32 s{S_T0}, s{S_U1}, 10')
        a(f's_lshr_b32 s{S_T1}, s{S_U1}, 7')
        a(f's_lshl_b32 s{S_T1}, s{S_T1}, 9')
        a(f'v_lshlrev_b32 v{V_A}, 3, v{V_LANE}')
        a(f'buffer_load_dwordx2 v[32:33], v{V_A}, s[{S_W}:{S_W+3}], s{S_T0} offen')
        a(f'buffer_load_dwordx2 v[34:35], v{V_A}, s[{S_W}:{S_W+3}], s{S_T0} offen offset:512')
        a(f'buffer_load_dwordx2 v[36:37], v{V_A}, s[{S_AS}:{S_AS+3}], s{S_T1} offen')
        a(f'buffer_load_dwordx2 v[38:39], v{V_A}, s[{S_AD}:{S_AD+3}], s{S_T1} offen')
        a(f'{sk}:')
        sk = a.label('nox')
        a(f's_cmp_gt_u32 s{S_U0}, 2')
        a(f's_cbranch_scc1 {sk}')
        a(f's_mul_i32 s{S_T0}, s2, 40')
        a(f's_lshl_b32 s{S_T1}, s{S_U0}, 4')
        a(f's_add_u32 s{S_T0}, s{S_T0}, s{S_T1}')
        a(f's_lshl_b32 s{S_T0}, s{S_T0}, 9')
        a(f's_add_u32 s{S_T0}, s{S_T0}, 4096')
        a(f'v_and_b32 v{V_A}, 15, v{V_LANE}')
        a(f'v_lshlrev_b32 v{V_A}, 9, v{V_A}')
        a(f'v_lshrrev_b32 v{V_B}, 4, v{V_LANE}')
        a(f'v_lshl_add_u32 v{V_A}, v{V_B}, 4, v{V_A}')
        for t in range(8):
            a(f'buffer_load_dwordx4 v[{40+4*t}:{43+4*t}], v{V_A}, s[{S_X}:{S_X+3}], s{S_T0} offen offset:{64*t}')
        a(f'{sk}:')
        npf = self.prefetch()
        self.lds_init()
        a('s_barrier')
        sk = a.label('nou2')
        a(f's_cmp_eq_u32 s{S_U2}, 0')
        a(f's_cbranch_scc1 {sk}')
        a(f's_waitcnt vmcnt({min(63, 8+npf)})')
        self.ts(1)
        a('v_dot2_f32_bf16 v72, v32, v36, 0')
        a('v_dot2_f32_bf16 v73, v32, v38, 0')
        a('v_dot2_f32_bf16 v74, v34, v36, 0')
        a('v_dot2_f32_bf16 v75, v34, v38, 0')
        a('v_dot2_f32_bf16 v72, v33, v37, v72')
        a('v_dot2_f32_bf16 v73, v33, v39, v73')
        a('v_dot2_f32_bf16 v74, v35, v37, v74')
        a('v_dot2_f32_bf16 v75, v35, v39, v75')
        a('s_nop 2')
        for ctl in ('row_shr:1 row_mask:0xf bank_mask:0xf bound_ctrl:1', 'row_shr:2 row_mask:0xf bank_mask:0xf bound_ctrl:1',
                    'row_shr:4 row_mask:0xf bank_mask:0xf bound_ctrl:1', 'row_shr:8 row_mask:0xf bank_mask:0xf bound_ctrl:1',
                    'row_bcast:15 row_mask:0xa bank_mask:0xf', 'row_bcast:31 row_mask:0xc bank_mask:0xf'):
            for r in range(72, 76):
                a(f'v_add_f32_dpp v{r}, v{r}, v{r} {ctl}')
        for r in range(72, 76):
            a(f'v_mul_f32 v{r}, 0x3fb8aa3b, v{r}')
        for r in range(72, 76):
            a(f'v_add_u32 v{r}, 0x800, v{r}')
        a(f'{sk}:')
        a('s_barrier')
        self.ts(2)
        self.read_tags()
        a(f's_mov_b32 s{S_C0}, 0xfffff000')
        sk = a.label('nou3')
        a(f's_cmp_eq_u32 s{S_U2}, 0')
        a(f's_cbranch_scc1 {sk}')
        for k in range(4):
            a(f'v_and_b32 v{72+k}, s{S_C0}, v{72+k}')
        for k in range(4):
            a(f'v_or_b32 v{72+k}, s{S_T+k}, v{72+k}')
        a(f's_lshl_b32 s{S_T0}, s{S_U1}, 4')
        a(f's_add_u32 s{S_T0}, s{S_T0}, {WS_UTAB}')
        a('s_mov_b32 exec_lo, 0')
        a('s_mov_b32 exec_hi, 0x80000000')
        a(f'buffer_store_dwordx4 v[72:75], off, s[{S_WS}:{S_WS+3}], s{S_T0} sc1')
        a('s_mov_b64 exec, -1')
        a(f'{sk}:')
        a(f'v_subrev_u32 v{V_F}, 256, v{V_TID}')
        a(f'v_lshlrev_b32 v{V_A}, 4, v{V_F}')
        a(f'v_add_u32 v{V_A}, {IMG}, v{V_A}')
        a(f'v_lshrrev_b32 v{V_B}, 2, v{V_F}')
        a(f'v_lshlrev_b32 v{V_C}, 2, v{V_B}')
        a(f'v_add_u32 v{V_C}, {CNT}, v{V_C}')
        for i in range(4):
            a(f'ds_read_b128 v[{76+4*i}:{79+4*i}], v{V_A} offset:{4096*i}')
            a(f'ds_read_b32 v{92+i}, v{V_C} offset:{256*i}')
        a(f'v_mul_u32_u24 v{V_B}, 16000, v{V_B}')
        a(f'v_and_b32 v{V_D}, 3, v{V_F}')
        a(f'v_lshl_add_u32 v{V_B}, v{V_D}, 4, v{V_B}')
        a(f'v_cmp_eq_u32 s[{S_EX2}:{S_EX2+1}], 3, v{V_D}')
        a(f'v_mov_b32 v{V_E}, 0xffffe000')
        a(f's_lshl_b32 s{S_C1}, s2, 6')
        a('s_waitcnt lgkmcnt(0)')
        for i in range(4):
            a(f'v_cmp_lt_u32 vcc, 16, v{92+i}')
            a(f's_and_b64 vcc, vcc, s[{S_EX2}:{S_EX2+1}]')
            a('s_nop 0')
            a(f'v_cndmask_b32 v{79+4*i}, v{79+4*i}, v{V_E}, vcc')
            for k in range(4):
                a(f'v_or_b32 v{76+4*i+k}, s{S_T+k}, v{76+4*i+k}')
            if i == 3:
                a(f'v_cmp_gt_u32 vcc, 232, v{V_F}')
                a(f's_and_saveexec_b64 s[{S_EX}:{S_EX+1}], vcc')
                sk = a.label('tst'); a(f's_cbranch_execz {sk}')
            a(f'buffer_store_dwordx4 v[{76+4*i}:{79+4*i}], v{V_B}, s[{S_WS}:{S_WS+3}], s{S_C1} offen sc1')
            if i == 3:
                a(f'{sk}:'); a(f's_mov_b64 exec, s[{S_EX}:{S_EX+1}]')
            else:
                a(f's_add_u32 s{S_C1}, s{S_C1}, 1024000')
        self.ts(3)
        a('s_barrier')
        self.ts(4)
        sk = a.label('nos')
        a(f's_cmp_gt_u32 s{S_U0}, 2')
        a(f's_cbranch_scc1 {sk}')
        a(f'v_and_b32 v{V_A}, 7, v{V_LANE}')
        a(f'v_mul_u32_u24 v{V_A}, 528, v{V_A}')
        a(f'v_lshrrev_b32 v{V_B}, 4, v{V_LANE}')
        a(f'v_lshl_add_u32 v{V_A}, v{V_B}, 4, v{V_A}')
        a(f'v_add_u32 v{V_A}, {UT}, v{V_A}')
        for t in range(8):
            a(f'ds_read_b128 v[{72+4*t}:{75+4*t}], v{V_A} offset:{64*t}')
        nst = (1 if True else 0)
        a(f's_waitcnt vmcnt({min(63, npf + 4)}) lgkmcnt(0)')
        for t in range(8):
            c = '0' if t == 0 else 'v[104:107]'
            a(f'v_mfma_f32_16x16x32_bf16 v[104:107], v[{72+4*t}:{75+4*t}], v[{40+4*t}:{43+4*t}], {c}')
        a(f'v_and_b32 v{V_A}, 15, v{V_LANE}')
        a(f's_lshl_b32 s{S_T0}, s{S_U0}, 4')
        a(f'v_add_u32 v{V_A}, s{S_T0}, v{V_A}')
        a(f'v_lshrrev_b32 v{V_B}, 4, v{V_LANE}')
        a(f'v_cmp_gt_u32 s[{S_EX2}:{S_EX2+1}], 40, v{V_A}')
        a(f'v_lshlrev_b32 v{V_C}, 4, v{V_A}')
        a(f's_mul_i32 s{S_T1}, s2, 640')
        a(f's_add_u32 s{S_T1}, s{S_T1}, {WS_STAB}')
        a(f'v_add_u32 v{V_D}, {SDST}, v{V_C}')
        a('s_nop 1')
        a(f'v_cmp_eq_u32 vcc, 1, v{V_B}')
        a(f's_and_b64 vcc, vcc, s[{S_EX2}:{S_EX2+1}]')
        a(f's_and_saveexec_b64 s[{S_EX}:{S_EX+1}], vcc')
        a(f'ds_write_b128 v{V_D}, v[104:107]')
        a(f's_mov_b64 exec, s[{S_EX}:{S_EX+1}]')
        for k in range(4): a(f'v_add_u32 v{108+k}, 0x800, v{104+k}')
        for k in range(4): a(f'v_and_b32 v{108+k}, s{S_C0}, v{108+k}')
        for k in range(4): a(f'v_or_b32 v{108+k}, s{S_T+k}, v{108+k}')
        a(f'v_cmp_eq_u32 vcc, 0, v{V_B}')
        a(f's_and_b64 vcc, vcc, s[{S_EX2}:{S_EX2+1}]')
        a(f's_and_saveexec_b64 s[{S_EX}:{S_EX+1}], vcc')
        a(f'buffer_store_dwordx4 v[108:111], v{V_C}, s[{S_WS}:{S_WS+3}], s{S_T1} offen sc1')
        a(f's_mov_b64 exec, s[{S_EX}:{S_EX+1}]')
        a(f'{sk}:')
        self.ts(5)
        a('s_waitcnt lgkmcnt(0)')
        a('s_barrier')
        self.ts(6)
        self.steptab()
        self.xprologue()
        a('s_waitcnt lgkmcnt(0)')
        a('s_barrier')
        self.ts(9)

    def prefetch(self):
        a = self.a; o = self.o
        n = 0
        if o.get('wpf'):
            sk = a.label('nowpf')
            a(f's_cmp_lt_u32 s{S_WAVE}, 6')
            a(f's_cbranch_scc1 {sk}')
            a(f's_lshr_b32 s{S_T0}, s2, 3')
            a(f's_lshl_b32 s{S_T0}, s{S_T0}, 1')
            a(f's_add_u32 s{S_T0}, s{S_T0}, s{S_WAVE}')
            a(f's_sub_u32 s{S_T0}, s{S_T0}, 6')
            a(f's_lshl_b32 s{S_T0}, s{S_T0}, 13')
            a(f'v_lshlrev_b32 v{V_A}, 7, v{V_LANE}')
            a(f'buffer_load_dword v254, v{V_A}, s[{S_W}:{S_W+3}], s{S_T0} offen')
            a(f'{sk}:')
        xp = o.get('xpf', 0)
        if xp:
            a(f's_lshr_b32 s{S_T0}, s2, 3')
            a(f's_mul_i32 s{S_T0}, s{S_T0}, {xp}')
            a(f's_lshl_b32 s{S_T0}, s{S_T0}, 9')
            a(f's_add_u32 s{S_T0}, s{S_T0}, 4096')
            rows_per_wave = (xp + 3) // 4
            a(f's_mul_i32 s{S_T1}, s{S_W3}, {rows_per_wave*512}')
            a(f's_add_u32 s{S_T0}, s{S_T0}, s{S_T1}')
            a(f'v_lshrrev_b32 v{V_A}, 1, v{V_LANE}')
            a(f'v_lshlrev_b32 v{V_A}, 9, v{V_A}')
            a(f'v_and_b32 v{V_B}, 1, v{V_LANE}')
            a(f'v_lshl_add_u32 v{V_A}, v{V_B}, 7, v{V_A}')
            ni = (rows_per_wave + 31) // 32
            for half in range(2):
                for i in range(ni):
                    a(f's_add_u32 s{S_T1}, s{S_T0}, {i*32*512 + half*256}')
                    a(f'buffer_load_dword v255, v{V_A}, s[{S_X}:{S_X+3}], s{S_T1} offen')
                    n += 1
        return n

    def steptab(self):
        a = self.a
        a(f's_mul_i32 s{S_T0}, s{S_HF}, 20')
        a(f's_add_u32 s{S_T0}, s{S_T0}, {GCNT}')
        a(f'v_lshlrev_b32 v{V_A}, 2, v{V_LANE}')
        a(f'v_add_u32 v{V_A}, s{S_T0}, v{V_A}')
        a(f'ds_read_b32 v{V_B}, v{V_A}')
        a(f'v_mov_b32 v{V_A}, {M_SLOW}')
        a(f'ds_read_b32 v{V_C}, v{V_A}')
        a('s_waitcnt lgkmcnt(0)')
        a(f'v_cmp_lt_u32 vcc, 0x80, v{V_B}')
        a(f's_and_b32 s{S_T1}, vcc_lo, 31')
        a(f'v_min_u32 v{V_B}, 0x80, v{V_B}')
        a(f'v_add_u32 v{V_B}, 31, v{V_B}')
        a(f'v_lshrrev_b32 v{V_B}, 5, v{V_B}')
        a('s_nop 0')
        for g in range(5): a(f'v_readlane_b32 s{S_N+g}, v{V_B}, {g}')
        a(f's_mul_i32 s{S_T2}, s{S_HF}, {5*512}')
        a(f'v_mov_b32 v{V_TAB}, 5120')
        a(f's_mov_b32 s{S_T0}, 0')
        a(f's_add_u32 s{S_U0}, s{S_N}, s{S_N+1}')
        a(f's_add_u32 s{S_U0}, s{S_U0}, s{S_N+2}')
        a(f's_add_u32 s{S_U0}, s{S_U0}, s{S_N+3}')
        a(f's_add_u32 s{S_U0}, s{S_U0}, s{S_N+4}')
        for g in range(5):
            a(f'v_subrev_u32 v{V_A}, s{S_T0}, v{V_LANE}')
            a(f'v_lshlrev_b32 v{V_A}, 7, v{V_A}')
            a(f's_add_u32 s{S_T1}, s{S_T2}, {g*512}')
            a(f'v_add_u32 v{V_A}, s{S_T1}, v{V_A}')
            a(f'v_cmp_le_u32 vcc, s{S_T0}, v{V_LANE}')
            a('s_nop 1')
            a(f'v_cndmask_b32 v{V_TAB}, v{V_TAB}, v{V_A}, vcc')
            a(f's_add_u32 s{S_T0}, s{S_T0}, s{S_N+g}')
        a(f'v_mov_b32 v{V_A}, 5120')
        a(f'v_cmp_le_u32 vcc, s{S_U0}, v{V_LANE}')
        a('s_nop 1')
        a(f'v_cndmask_b32 v{V_TAB}, v{V_TAB}, v{V_A}, vcc')

    def idx_read(self):
        a = self.a
        a(f'v_readlane_b32 s{S_T0}, v{V_TAB}, s{S_J}')
        a(f's_add_u32 s{S_J}, s{S_J}, 1')
        a('s_nop 0')
        a(f'v_add_u32 v{V_G}, s{S_T0}, v{V_LST}')
        a(f'ds_read2_b32 v[{V_IDX}:{V_IDX+1}], v{V_G} offset0:0 offset1:8')
        a(f'ds_read2_b32 v[{V_IDX+2}:{V_IDX+3}], v{V_G} offset0:16 offset1:24')

    def dma_issue(self):
        a = self.a
        for c in range(4):
            sw = V_SWE if c % 2 == 0 else V_SWO
            a(f'v_and_or_b32 v{V_IDX+c}, v{V_IDX+c}, s{S_M}, v{sw}')
        for c in range(4):
            a(f'buffer_load_dwordx4 v{V_IDX+c}, s[{S_X}:{S_X+3}], s{S_XSO+c} offen offset:{c*1024} lds')

    def xprologue(self):
        a = self.a
        a(f's_mov_b32 s{S_J}, 0')
        a('s_nop 2')
        for j in range(self.R):
            self.idx_read()
            a(f's_add_u32 m0, s{S_RING}, {j*4096}')
            a('s_waitcnt lgkmcnt(0)')
            self.dma_issue()
        self.idx_read()
        a(f's_mov_b32 s{S_SLOT}, 0')

    def aggregate(self):
        a = self.a; R = self.R
        for i in range(80): a(f'v_mov_b32 v{V_ACC+i}, 0')
        for i in range(4): a(f'v_mov_b32 v{V_ONE+i}, 0x3f803f80')
        for gg in range(5):
            nxt = a.label(f'g{gg}end')
            for i in range(4): a(f'v_mov_b32 v{V_DEN+i}, 0')
            for t in range(4):
                a(f's_cmp_le_u32 s{S_N+gg}, {t}')
                a(f's_cbranch_scc1 {nxt}')
                a(f's_waitcnt vmcnt({4*(R-1)})')
                off = gg*APG + t*64
                a(f'ds_read_b128 v[{V_AF}:{V_AF+3}], v{V_AW} offset:{off}')
                a(f'ds_read_b128 v[{V_MF}:{V_MF+3}], v{V_AM} offset:{off}')
                for j in range(4):
                    a(f'ds_read_b64_tr_b16 v[{V_BF+4*j}:{V_BF+4*j+1}], v{V_TR+j}')
                    a(f'ds_read_b64_tr_b16 v[{V_BF+4*j+2}:{V_BF+4*j+3}], v{V_TR+j} offset:512')
                a(f's_add_u32 m0, s{S_RING}, s{S_SLOT}')
                a(f's_add_u32 s{S_SLOT}, s{S_SLOT}, 4096')
                a(f's_cmp_eq_u32 s{S_SLOT}, {R*4096}')
                a(f's_cselect_b32 s{S_SLOT}, 0, s{S_SLOT}')
                a(f's_mov_b32 s{S_DELTA}, 4096')
                a(f's_cselect_b32 s{S_DELTA}, s{S_C3}, s{S_DELTA}')
                a('s_waitcnt lgkmcnt(0)')
                self.dma_issue()
                for k in range(4): a(f'v_and_b32 v{V_AF+k}, v{V_AF+k}, v{V_MF+k}')
                for j in range(4): a(f'v_add_u32 v{V_TR+j}, s{S_DELTA}, v{V_TR+j}')
                self.idx_read()
                for j in range(4):
                    acc = V_ACC + gg*16 + 4*j
                    if j == 0:
                        a(f'v_mfma_f32_16x16x32_bf16 v[{V_DEN}:{V_DEN+3}], v[{V_AF}:{V_AF+3}], v[{V_ONE}:{V_ONE+3}], v[{V_DEN}:{V_DEN+3}]')
                    a(f'v_mfma_f32_16x16x32_bf16 v[{acc}:{acc+3}], v[{V_AF}:{V_AF+3}], v[{V_BF+4*j}:{V_BF+4*j+3}], v[{acc}:{acc+3}]')
            a(f'{nxt}:')
            a('s_nop 7')
            for h in range(4): a(f'v_add_f32 v{V_DEN+h}, 0x3089705f, v{V_DEN+h}')
            for h in range(4): a(f'v_rcp_f32 v{V_DEN+h}, v{V_DEN+h}')
            for h in range(4): a(f'v_mul_f32 v{V_DEN+h}, 0x3e800000, v{V_DEN+h}')
            for j in range(4):
                for h in range(4): a(f'v_mul_f32 v{V_ACC+gg*16+4*j+h}, v{V_ACC+gg*16+4*j+h}, v{V_DEN+h}')
        a('s_waitcnt vmcnt(0) lgkmcnt(0)')

    def agg_write(self):
        a = self.a
        self.setsync(0)
        a(f'v_and_b32 v{V_C}, 15, v{V_LANE}')
        a(f'v_lshrrev_b32 v{V_A}, 4, v{V_LANE}')
        a(f'v_bfe_u32 v{V_D}, v{V_C}, 1, 2')
        a(f'v_lshrrev_b32 v{V_E}, 3, v{V_C}')
        a(f'v_lshl_add_u32 v{V_F}, v{V_E}, 2, v{V_D}')
        a(f'v_and_b32 v{V_G}, 1, v{V_C}')
        a(f's_mul_i32 s{S_U0}, s{S_SET}, {4*RINGW}')
        a(f's_and_b32 s{S_U1}, s{S_SLICE}, 1')
        end = a.label('aggw_end'); h1 = a.label('aggw_h1')
        a(f's_cmp_eq_u32 s{S_HF}, 1')
        a(f's_cbranch_scc1 {h1}')
        for hf in range(2):
            if hf == 1: a(f'{h1}:')
            for gg in range(5):
                node0 = 20*hf + 4*gg
                mt, mb = node0 >> 4, node0 & 15
                TS, QS = (1024, 256) if mt < 2 else (512, 128)
                tb = mt*16384
                ad = V_AF
                a(f'v_add_u32 v{ad}, {mb}, v{V_A}')
                a(f'v_xor_b32 v{ad}, v{ad}, v{V_F}')
                a(f'v_lshlrev_b32 v{ad}, 4, v{ad}')
                a(f'v_lshl_add_u32 v{ad}, v{V_G}, 3, v{ad}')
                a(f'v_lshl_add_u32 v{ad}, v{V_D}, {8 if QS==256 else 7}, v{ad}')
                a(f'v_lshl_add_u32 v{ad}, v{V_E}, {10 if TS==1024 else 9}, v{ad}')
                a(f's_mul_i32 s{S_T0}, s{S_U1}, {8*TS}')
                a(f's_add_u32 s{S_T0}, s{S_T0}, s{S_U0}')
                a(f'v_add_u32 v{ad}, s{S_T0}, v{ad}')
                for j in range(4):
                    acc = V_ACC + gg*16 + 4*j
                    a(f'v_cvt_pk_bf16_f32 v{V_MF}, v{acc}, v{acc+1}')
                    a(f'v_cvt_pk_bf16_f32 v{V_MF+1}, v{acc+2}, v{acc+3}')
                    a(f'ds_write_b64 v{ad}, v[{V_MF}:{V_MF+1}] offset:{tb + 2*j*TS}')
            if hf == 0: a(f's_branch {end}')
        a(f'{end}:')

    def wdma_setup(self):
        a = self.a
        a(f'v_lshrrev_b32 v{V_A}, 3, v{V_LANE}')
        a(f'v_and_b32 v{V_B}, 3, v{V_A}')
        a(f'v_lshlrev_b32 v{V_B}, 17, v{V_B}')
        a(f'v_lshrrev_b32 v{V_A}, 2, v{V_A}')
        a(f'v_lshl_add_u32 v{V_B}, v{V_A}, 9, v{V_B}')
        a(f'v_add_u32 v{V_IDX}, v{V_B}, v{V_SWE}')
        a(f'v_add_u32 v{V_IDX+1}, v{V_B}, v{V_SWO}')
        a(f's_lshl_b32 s{S_U2}, s{S_SET}, 16')
        a(f's_lshl_b32 s{S_T0}, s{S_W3}, 7')
        a(f's_add_u32 s{S_U2}, s{S_U2}, s{S_T0}')

    def wdma(self, t, ldsbase_sgpr, slotoff):
        a = self.a
        a(f's_add_u32 m0, s{ldsbase_sgpr}, {slotoff}')
        a(f's_add_u32 s{S_T0}, s{S_U2}, {t*4096}')
        for c in range(4):
            a(f'buffer_load_dwordx4 v{V_IDX + (c&1)}, s[{S_W}:{S_W+3}], s{S_T0} offen offset:{c*1024} lds')

    def wtr(self, dst, slotoff):
        a = self.a
        for j in range(4):
            a(f'ds_read_b64_tr_b16 v[{dst+4*j}:{dst+4*j+1}], v{V_TR+j} offset:{slotoff}')
            a(f'ds_read_b64_tr_b16 v[{dst+4*j+2}:{dst+4*j+3}], v{V_TR+j} offset:{slotoff+512}')

    def gemm(self):
        a = self.a; o = self.o
        npre = o.get('npre', 0)
        a(f's_lshl_b32 s{S_T0}, s{S_W3}, 13')
        a(f's_add_u32 s{S_T1}, s{S_T0}, {WR}')
        a(f's_add_u32 s{S_T2}, s{S_T0}, {AP-8192}')
        a(f's_cmp_eq_u32 s{S_W3}, 0')
        a(f's_cselect_b32 s{S_T2}, {4*RINGW+40960}, s{S_T2}')
        a(f's_cmp_eq_u32 s{S_SET}, 0')
        a(f's_cselect_b32 s{S_U3}, s{S_T1}, s{S_T2}')
        a(f's_add_u32 s{S_T0}, s{S_RING}, s{S_SLOT}')
        a(f's_sub_u32 s{S_T0}, s{S_U3}, s{S_T0}')
        for j in range(4): a(f'v_add_u32 v{V_TR+j}, s{S_T0}, v{V_TR+j}')
        self.wdma_setup()
        sk = a.label('wsync')
        a(f's_cmp_eq_u32 s{S_SET}, 0')
        a(f's_cbranch_scc1 {sk}')
        self.setsync(0, other=True, signal=False)
        a(f'{sk}:')
        stream = list(range(npre, 16))
        for i, t in enumerate(stream[:2]): self.wdma(t, S_U3, i*4096)
        a(f'v_and_b32 v{V_A}, 15, v{V_LANE}')
        a(f'v_lshrrev_b32 v{V_B}, 4, v{V_LANE}')
        a(f's_mul_i32 s{S_T0}, s{S_SET}, {4*RINGW}')
        for par in range(2):
            a(f'v_add_u32 v{V_C}, {4*par}, v{V_B}')
            a(f'v_xor_b32 v{V_D}, v{V_A}, v{V_C}')
            a(f'v_lshlrev_b32 v{V_D}, 4, v{V_D}')
            a(f'v_lshl_add_u32 v{V_D}, v{V_B}, 8, v{V_D}')
            a(f'v_add_u32 v{104+par}, s{S_T0}, v{V_D}')
            a(f'v_and_b32 v{V_D}, 7, v{V_A}')
            a(f'v_xor_b32 v{V_D}, v{V_D}, v{V_C}')
            a(f'v_lshlrev_b32 v{V_D}, 4, v{V_D}')
            a(f'v_lshl_add_u32 v{V_D}, v{V_B}, 7, v{V_D}')
            a(f'v_add_u32 v{106+par}, s{S_T0}, v{V_D}')
        self.setsync(1)
        self.ts(11)
        AB = [80, 92]
        def aggread(t, buf):
            for mt in range(3):
                if mt < 2:
                    a(f'ds_read_b128 v[{buf+4*mt}:{buf+4*mt+3}], v{104+(t&1)} offset:{mt*16384 + t*1024}')
                else:
                    a(f'ds_read_b128 v[{buf+8}:{buf+11}], v{106+(t&1)} offset:{32768 + t*512}')
        def wreg(t):
            if t < npre: return V_W + 16*t
            return V_W + 16*npre - 32 + 16*((t - npre) & 1) if npre >= 2 else V_W + 16*((t-npre) & 1)
        order = list(range(16))
        def wreg2(t):
            if t < npre: return V_W + 16*t
            return V_W + 16*((t - npre) & 1)
        def prep(t):
            if t >= npre:
                i = t - npre
                a(f's_waitcnt vmcnt({4 if i+1 < len(stream) else 0})')
                self.wtr(wreg2(t), (i & 1)*4096)
            aggread(t, AB[t & 1])
        prep(0)
        a('s_waitcnt lgkmcnt(0)')
        if 0 >= npre and len(stream) > 2: self.wdma(stream[2], S_U3, 0)
        for t in range(16):
            if t + 1 < 16:
                prep(t+1)
            w = wreg2(t); b = AB[t & 1]
            for mt in range(3):
                for j in range(4):
                    acc = V_ACC + 16*mt + 4*j
                    c = '0' if t == 0 else f'v[{acc}:{acc+3}]'
                    a(f'v_mfma_f32_16x16x32_bf16 v[{acc}:{acc+3}], v[{w+4*j}:{w+4*j+3}], v[{b+4*mt}:{b+4*mt+3}], {c}')
            if t + 1 < 16:
                a('s_waitcnt lgkmcnt(0)')
                i = t + 1 - npre
                if i >= 0 and i + 2 < len(stream): self.wdma(stream[i+2], S_U3, (i & 1)*4096)
        self.ts(12)

    def finish(self):
        a = self.a
        s1 = a.label('fin1')
        a(f's_cmp_eq_u32 s{S_SET}, 1')
        a(f's_cbranch_scc1 {s1}')
        a('s_nop 7')
        self.setsync(2)
        a(f's_mul_i32 s{S_T0}, s{S_W3}, {RINGW}')
        a(f'v_lshlrev_b32 v{V_D}, 4, v{V_LANE}')
        a(f'v_add_u32 v{V_D}, s{S_T0}, v{V_D}')
        for i in range(12):
            a(f'ds_write_b128 v{V_D}, v[{V_ACC+4*i}:{V_ACC+4*i+3}] offset:{1024*i}')
        self.setsync(3, wait=False)
        self.ts(13)
        a('s_branch L_fin')
        a(f'{s1}:')
        self.setsync(3, other=True, signal=False)
        a(f's_mul_i32 s{S_T0}, s{S_W3}, {RINGW}')
        a(f'v_lshlrev_b32 v{V_D}, 4, v{V_LANE}')
        a(f'v_add_u32 v{V_D}, s{S_T0}, v{V_D}')
        P = V_W
        for i in range(12):
            a(f'ds_read_b128 v[{P+4*i}:{P+4*i+3}], v{V_D} offset:{1024*i}')
        a(f'v_and_b32 v{V_A}, 15, v{V_LANE}')
        a(f'v_lshrrev_b32 v{V_B}, 4, v{V_LANE}')
        a(f'v_and_b32 v{V_C}, 1, v{V_B}')
        a(f'v_lshrrev_b32 v{V_E}, 1, v{V_B}')
        a(f'v_lshlrev_b32 v{V_C}, 5, v{V_C}')
        a(f'v_lshl_add_u32 v{V_C}, v{V_E}, 4, v{V_C}')
        a(f'v_lshl_add_u32 v{V_C}, v{V_A}, 9, v{V_C}')
        a(f's_mul_i32 s{S_T0}, s2, {40*512}')
        a(f's_lshl_b32 s{S_T1}, s{S_W3}, 7')
        a(f's_add_u32 s{S_T0}, s{S_T0}, s{S_T1}')
        a(f'v_cmp_gt_u32 s[{S_EX2}:{S_EX2+1}], 8, v{V_A}')
        a('s_waitcnt lgkmcnt(0)')
        for i in range(48): a(f'v_add_f32 v{V_ACC+i}, v{V_ACC+i}, v{P+i}')
        for mt in range(3):
            for jp in range(2):
                R0 = P + 8*mt + 4*jp
                for jj in range(2):
                    acc = V_ACC + 16*mt + 4*(2*jp+jj)
                    a(f'v_cvt_pk_bf16_f32 v{R0+2*jj}, v{acc}, v{acc+1}')
                    a(f'v_cvt_pk_bf16_f32 v{R0+2*jj+1}, v{acc+2}, v{acc+3}')
        a('s_nop 1')
        for mt in range(3):
            for jp in range(2):
                R0 = P + 8*mt + 4*jp
                a(f'v_permlane16_swap_b32 v{R0}, v{R0+2}')
                a(f'v_permlane16_swap_b32 v{R0+1}, v{R0+3}')
        for mt in range(3):
            a(f's_add_u32 s{S_T1}, s{S_T0}, {mt*16*512}')
            if mt == 2: a(f's_mov_b64 exec, s[{S_EX2}:{S_EX2+1}]')
            for jp in range(2):
                R0 = P + 8*mt + 4*jp
                a(f'buffer_store_dwordx4 v[{R0}:{R0+3}], v{V_C}, s[{S_OUT}:{S_OUT+3}], s{S_T1} offen offset:{64*jp}')
        a('s_mov_b64 exec, -1')
        self.ts(13)
        a('L_fin:')
        if self.o.get('ts') == 2:
            sk = a.label('dbgts')
            a(f's_and_b32 s{S_T0}, s{S_WAVE}, 3')
            a(f's_cmp_lg_u32 s{S_T0}, 0')
            a(f's_cbranch_scc1 {sk}')
            a(f'v_readlane_b32 s{S_T0}, v{V_TSR}, 0')
            a('s_nop 3')
            a(f's_not_b32 s{S_T0}, s{S_T0}')
            a(f'v_writelane_b32 v{V_TSR}, s{S_T0}, 0')
            a(f'v_lshlrev_b32 v{V_A}, 2, v{V_LANE}')
            a(f'v_add_u32 v{V_A}, 8, v{V_A}')
            a(f'v_cmp_gt_u32 vcc, 14, v{V_LANE}')
            a(f's_and_saveexec_b64 s[{S_EX}:{S_EX+1}], vcc')
            a(f'buffer_atomic_umax v{V_TSR}, v{V_A}, s[{S_DBG}:{S_DBG+3}], 0 offen')
            a(f's_mov_b64 exec, s[{S_EX}:{S_EX+1}]')
            a(f'{sk}:')
        if self.o.get('ts') == 1:
            a(f's_lshl_b32 s{S_T0}, s2, 3')
            a(f's_add_u32 s{S_T0}, s{S_T0}, s{S_WAVE}')
            a(f's_lshl_b32 s{S_T0}, s{S_T0}, 6')
            a(f's_add_u32 s{S_T0}, s{S_T0}, {WS_TS}')
            a(f'v_writelane_b32 v{V_TSR}, s{S_POLL}, 15')
            a(f'v_lshlrev_b32 v{V_A}, 2, v{V_LANE}')
            a(f'v_cmp_gt_u32 vcc, 16, v{V_LANE}')
            a(f's_and_saveexec_b64 s[{S_EX}:{S_EX+1}], vcc')
            a(f'buffer_store_dword v{V_TSR}, v{V_A}, s[{S_WS}:{S_WS+3}], s{S_T0} offen')
            a(f's_mov_b64 exec, s[{S_EX}:{S_EX+1}]')

    def build(self):
        a = self.a; o = self.o
        self.R = 3
        a(f'; @launch grid=({NB},1,1) block=(512,1,1) lds={LDS_SIZE}')
        a('.amdgcn_target "amdgcn-amd-amdhsa--gfx950"')
        a('.text')
        a(f'.globl {KNAME}')
        a('.p2align 8')
        a(f'.type {KNAME},@function')
        a(f'{KNAME}:')
        self.prologue()
        a(f's_mov_b32 s{S_C3}, {(-(self.R-1)*4096) & 0xffffffff}')
        a(f's_cmp_eq_u32 s{S_SET}, 1')
        a('s_cbranch_scc1 L_set1')
        self.set0_early()
        a('s_branch L_common')
        a('L_set1:')
        self.set1_early()
        a('L_common:')
        self.aggregate()
        self.ts(10)
        self.agg_write()
        self.gemm()
        self.finish()
        for i in range(o.get('pad', 0)): a(f'v_add3_u32 v{10+(i%8)}, v{10+(i%8)}, v2, v2')
        a('L_end:')
        a('s_endpgm')
        a('.section .rodata,"a"')
        a('.p2align 6')
        a(f'.amdhsa_kernel {KNAME}')
        a('  .amdhsa_next_free_vgpr 256')
        a('  .amdhsa_next_free_sgpr 102')
        a('  .amdhsa_accum_offset 256')
        a('  .amdhsa_group_segment_fixed_size 0')
        a('  .amdhsa_kernarg_size 72')
        a('  .amdhsa_user_sgpr_count 2')
        a('  .amdhsa_user_sgpr_kernarg_segment_ptr 1')
        a('  .amdhsa_system_sgpr_workgroup_id_x 1')
        a('  .amdhsa_float_denorm_mode_32 3')
        a('  .amdhsa_float_denorm_mode_16_64 3')
        a('.end_amdhsa_kernel')
        return a


def generate(path, **opt):
    g = Gen(opt)
    a = g.build()
    probs = check(a.lines)
    open(path, 'w').write(a.text())
    return probs

if __name__ == '__main__':
    ap = argparse.ArgumentParser()
    ap.add_argument('out')
    ap.add_argument('--ts', type=int, default=0)
    ap.add_argument('--wpf', type=int, default=0)
    ap.add_argument('--xpf', type=int, default=0)
    ap.add_argument('--npre', type=int, default=0)
    ap.add_argument('--pad', type=int, default=0)
    args = ap.parse_args()
    o = vars(args); out = o.pop('out')
    p = generate(out, **o)
    print('hazards:', len(p))
```

```python
import sys, argparse
from asmcore import Asm, vr, sr, check

KNAME = 'gather_scatter__graph_attention_gat__graph_kernel'
NB = 250
WS_TABLE = 0
WS_UTAB = 0x400000
WS_STAB = 0x410000
WS_TS = 0x500000
WS_DUMP = 0x520000
WS_SIZE = 0x4000000
RINGW = 12288
RING = 0
WR = 98304
IMG = WR
CNT = IMG + 16000
UT = IMG + 17024
AP = 131072
APG = 2560
LIST = AP + 25600
DEN = LIST + 5248
SDST = DEN + 640
GCNT = SDST + 640
MISC = GCNT + 64
LDS_SIZE = MISC + 64
assert GCNT % 64 == 0 and LDS_SIZE <= 163840
M_NONCE = MISC
M_SLOW = MISC + 8
M_SYNC = MISC + 16
S_X, S_W, S_WS, S_SRC, S_DST, S_AS, S_AD, S_DBG, S_OUT = 4, 8, 12, 16, 20, 24, 28, 32, 36
S_WAVE, S_SET, S_W3, S_HF = 40, 41, 42, 43
S_T = 44
S_SLICE = 48
S_XSO = 52
S_RING, S_SLOT, S_J, S_DELTA = 56, 57, 58, 59
S_N = 60
S_T0, S_T1, S_T2, S_T3 = 65, 66, 67, 3
S_EX = 68
S_EX2 = 70
S_KA = 72
S_TS = 90
S_C0, S_C1, S_C2, S_C3 = 92, 93, 94, 95
S_POLL = 96
S_M = 97
S_U0, S_U1, S_U2, S_U3 = 98, 99, 100, 101
V_TID, V_LANE = 0, 1
V_TR = 2
V_AW, V_AM, V_LST = 6, 7, 8
V_SWE, V_SWO = 9, 10
V_TAB = 11
V_IDX = 12
V_AF = 16
V_MF = 20
V_A, V_B, V_C, V_D, V_E, V_F, V_G = 24, 25, 26, 27, 28, 29, 30
V_TSR = 31
V_ONE = 24
V_DEN = 232
V_ACC = 32
V_W = 112
V_BF = 240

POLL_MAX = 200000


class Gen:
    def __init__(self, opt):
        self.o = opt
        self.a = Asm()
        self.nts = 0

    def ts(self, idx):
        if not self.o.get('ts'): return
        a = self.a
        a(f's_memrealtime s[{S_TS}:{S_TS+1}]')
        a('s_waitcnt lgkmcnt(0)')
        a(f'v_writelane_b32 v{V_TSR}, s{S_TS}, {idx}')

    def srd(self, r, base, size, shift=0):
        a = self.a
        if shift:
            a(f's_sub_u32 s{r}, s{base}, {shift}')
            a(f's_subb_u32 s{r+1}, s{base+1}, 0')
            a(f's_and_b32 s{r+1}, s{r+1}, 0xffff')
        else:
            a(f's_mov_b32 s{r}, s{base}')
            a(f's_and_b32 s{r+1}, s{base+1}, 0xffff')
        a(f's_mov_b32 s{r+2}, {size}')
        a(f's_mov_b32 s{r+3}, 0x20000')

    def tagcheck(self, base, acc, first, tmp):
        a = self.a
        for k in range(4):
            if first and k == 0:
                a(f'v_xor_b32 v{acc}, s{S_T+k}, v{base+k}')
            else:
                a(f'v_xor_b32 v{tmp}, s{S_T+k}, v{base+k}')
                a(f'v_or_b32 v{acc}, v{acc}, v{tmp}')

    def poll_tail(self, acc, lab_loop, lab_done):
        a = self.a
        a(f'v_and_b32 v{acc}, 0xfff, v{acc}')
        a(f'v_cmp_ne_u32 vcc, 0, v{acc}')
        a(f's_cbranch_vccz {lab_done}')
        a(f's_add_u32 s{S_POLL}, s{S_POLL}, 1')
        a(f's_cmp_gt_u32 s{S_POLL}, {POLL_MAX}')
        a(f's_cbranch_scc1 {lab_done}')
        a('s_sleep 1')
        a(f's_branch {lab_loop}')

    def read_tags(self):
        a = self.a
        a(f'v_mov_b32 v{V_A}, {M_NONCE}')
        a(f'ds_read_b64 v[{V_B+1}:{V_B+2}], v{V_A}')
        a('s_waitcnt lgkmcnt(0)')
        a(f'v_readfirstlane_b32 s{S_T0}, v{V_B+1}')
        a(f'v_readfirstlane_b32 s{S_T1}, v{V_B+2}')
        a('s_nop 1')
        a(f's_and_b32 s{S_T}, s{S_T0}, 0xfff')
        a(f's_bfe_u32 s{S_T+1}, s{S_T0}, 0xc000c')
        a(f's_and_b32 s{S_T+2}, s{S_T1}, 0xfff')
        a(f's_bfe_u32 s{S_T+3}, s{S_T1}, 0xc000c')

    def setsync(self, k, wait_for=4, other=False, signal=True, wait=True):
        a = self.a
        if other:
            a(f's_xor_b32 s{S_T0}, s{S_SET}, 1')
            a(f's_lshl_b32 s{S_T0}, s{S_T0}, 4')
        else:
            a(f's_lshl_b32 s{S_T0}, s{S_SET}, 4')
        a(f's_add_u32 s{S_T0}, s{S_T0}, {M_SYNC + 4*k}')
        a(f'v_mov_b32 v{V_A}, s{S_T0}')
        if signal:
            a('s_waitcnt lgkmcnt(0)')
            a(f'v_mov_b32 v{V_B}, 1')
            a('s_mov_b64 exec, 1')
            a(f'ds_add_u32 v{V_A}, v{V_B}')
            a('s_mov_b64 exec, -1')
        if wait:
            lp = a.label('sync')
            a(f'{lp}:')
            a(f'ds_read_b32 v{V_C}, v{V_A}')
            a('s_waitcnt lgkmcnt(0)')
            a(f'v_readfirstlane_b32 s{S_T1}, v{V_C}')
            a('s_nop 1')
            dn = a.label('syncd')
            a(f's_cmp_ge_u32 s{S_T1}, {wait_for}')
            a(f's_cbranch_scc1 {dn}')
            a(f's_add_u32 s{S_POLL}, s{S_POLL}, 1')
            a(f's_cmp_lt_u32 s{S_POLL}, {POLL_MAX*8}')
            a(f's_cbranch_scc1 {lp}')
            a(f'{dn}:')

    def lds_fill(self, base, nbytes, vq, vaddr):
        a = self.a
        n = nbytes // 16
        a(f'v_lshlrev_b32 v{vaddr}, 4, v{V_TID}')
        a(f'v_add_u32 v{vaddr}, {base}, v{vaddr}')
        r = 0
        while n > 0:
            if n >= 512:
                a(f'ds_write_b128 v{vaddr}, v[{vq}:{vq+3}] offset:{r*8192}')
            else:
                a(f'v_cmp_gt_u32 vcc, {n}, v{V_TID}')
                a(f's_and_saveexec_b64 s[{S_EX}:{S_EX+1}], vcc')
                sk = a.label('fill')
                a(f's_cbranch_execz {sk}')
                a(f'ds_write_b128 v{vaddr}, v[{vq}:{vq+3}] offset:{r*8192}')
                a(f'{sk}:')
                a(f's_mov_b64 exec, s[{S_EX}:{S_EX+1}]')
            n -= 512; r += 1

    def prologue(self):
        a = self.a; o = self.o
        a(f's_cmp_ge_u32 s2, {NB}')
        a('s_cbranch_scc1 L_end')
        if o.get('cpf'):
            a(f's_getpc_b64 s[{S_U0}:{S_U0+1}]')
            a('L_pc:')
            a(f'v_lshlrev_b32 v254, 6, v0')
            for k in range(o['cpf']):
                if k: a(f'v_add_u32 v254, 0x8000, v254')
                a(f'v_min_u32 v253, L_end-L_pc, v254')
                a(f'global_load_dword v255, v253, s[{S_U0}:{S_U0+1}]')
        a(f's_load_dwordx16 s[{S_KA}:{S_KA+15}], s[0:1], 0')
        a(f's_load_dwordx2 s[{S_KA+16}:{S_KA+17}], s[0:1], 64')
        a('s_memrealtime s[50:51]')
        a(f'v_and_b32 v{V_LANE}, 63, v0')
        a(f'v_lshrrev_b32 v{V_A}, 6, v0')
        if o.get('ts'): a(f'v_mov_b32 v{V_TSR}, 0')
        else: a('s_nop 0')
        a(f'v_readfirstlane_b32 s{S_WAVE}, v{V_A}')
        a(f'v_and_b32 v{V_A}, 15, v{V_LANE}')
        a(f'v_lshrrev_b32 v{V_B}, 4, v{V_LANE}')
        a(f's_lshr_b32 s{S_SET}, s{S_WAVE}, 2')
        a(f's_and_b32 s{S_W3}, s{S_WAVE}, 3')
        a(f's_lshr_b32 s{S_HF}, s{S_W3}, 1')
        a(f's_mul_i32 s{S_RING}, s{S_WAVE}, {RINGW}')
        a(f's_and_b32 s{S_T0}, s{S_W3}, 1')
        a(f's_lshl_b32 s{S_T1}, s{S_SET}, 1')
        a(f's_add_u32 s{S_SLICE}, s{S_T0}, s{S_T1}')
        a(f'v_lshrrev_b32 v{V_C}, 3, v{V_A}')
        a(f'v_and_b32 v{V_D}, 1, v{V_B}')
        a(f'v_lshl_or_b32 v{V_C}, v{V_D}, 1, v{V_C}')
        a(f'v_lshrrev_b32 v{V_D}, 2, v{V_A}')
        a(f'v_lshlrev_b32 v{V_D}, 7, v{V_D}')
        a(f'v_lshl_add_u32 v{V_D}, v{V_B}, 10, v{V_D}')
        a(f'v_bfe_u32 v{V_E}, v{V_A}, 1, 1')
        a(f'v_lshl_add_u32 v{V_D}, v{V_E}, 4, v{V_D}')
        a(f'v_and_b32 v{V_E}, 1, v{V_A}')
        a(f'v_lshl_add_u32 v{V_D}, v{V_E}, 3, v{V_D}')
        a(f'v_add_u32 v{V_D}, s{S_RING}, v{V_D}')
        for j in range(4):
            a(f'v_xor_b32 v{V_E}, {j}, v{V_C}')
            a(f'v_lshl_add_u32 v{V_TR+j}, v{V_E}, 5, v{V_D}')
        a(f's_mul_i32 s{S_T0}, s{S_HF}, {5*APG}')
        a(f's_add_u32 s{S_T0}, s{S_T0}, {AP}')
        a(f'v_lshlrev_b32 v{V_D}, 4, v{V_B}')
        a(f'v_add_u32 v{V_D}, s{S_T0}, v{V_D}')
        a(f's_movk_i32 s{S_T1}, 320')
        a(f'v_and_b32 v{V_E}, 3, v{V_A}')
        a(f'v_mad_u32_u24 v{V_AW}, v{V_E}, s{S_T1}, v{V_D}')
        a(f'v_lshrrev_b32 v{V_E}, 2, v{V_A}')
        a(f'v_add_u32 v{V_E}, 4, v{V_E}')
        a(f'v_mad_u32_u24 v{V_AM}, v{V_E}, s{S_T1}, v{V_D}')
        a(f'v_lshrrev_b32 v{V_C}, 3, v{V_LANE}')
        a(f'v_lshlrev_b32 v{V_LST}, 2, v{V_C}')
        a(f'v_add_u32 v{V_LST}, {LIST}, v{V_LST}')
        a(f'v_and_b32 v{V_D}, 2, v{V_C}')
        a(f'v_and_b32 v{V_E}, 7, v{V_LANE}')
        a(f'v_xor_b32 v{V_E}, v{V_E}, v{V_D}')
        a(f'v_lshlrev_b32 v{V_SWE}, 4, v{V_E}')
        a(f'v_xor_b32 v{V_SWO}, 64, v{V_SWE}')
        a(f's_mov_b32 s{S_M}, 0xfffffe00')
        a(f's_mov_b32 s{S_POLL}, 0')
        a(f's_lshl_b32 s{S_T0}, s{S_SLICE}, 7')
        for c in range(4):
            a(f's_add_u32 s{S_XSO+c}, s{S_T0}, {4096 - c*1024}')
        a('s_waitcnt lgkmcnt(0)')
        k = S_KA
        self.srd(S_X, k+0, 5120000+4096, shift=4096)
        self.srd(S_SRC, k+2, 640000)
        self.srd(S_DST, k+4, 640000)
        self.srd(S_W, k+6, 524288)
        self.srd(S_AS, k+8, 2048)
        self.srd(S_AD, k+10, 2048)
        self.srd(S_OUT, k+12, 5120000)
        self.srd(S_DBG, k+14, 256)
        self.srd(S_WS, k+16, WS_SIZE)
        self.ts(0)

    def lds_init(self):
        a = self.a
        for i in range(4): a(f'v_mov_b32 v{104+i}, 0xfffff000')
        for i in range(4): a(f'v_mov_b32 v{108+i}, 0')
        self.lds_fill(IMG, 16000, 104, 103)
        self.lds_fill(CNT, 1024, 108, 103)
        self.lds_fill(AP, 25600, 108, 103)
        self.lds_fill(DEN, LDS_SIZE - DEN, 108, 103)
        for i in range(4): a(f'v_mov_b32 v{104+i}, 0x40000000')
        self.lds_fill(LIST, 5248, 104, 103)
        a('s_waitcnt lgkmcnt(0)')

    def set0_early(self):
        a = self.a; o = self.o
        sk = a.label('nopub')
        a(f's_or_b32 s{S_T0}, s2, s{S_WAVE}')
        a(f's_cmp_lg_u32 s{S_T0}, 0')
        a(f's_cbranch_scc1 {sk}')
        a(f's_and_b32 s{S_U0}, s50, 0xfff')
        a(f's_bfe_u32 s{S_U1}, s50, 0xc000c')
        a(f's_lshr_b32 s{S_U2}, s50, 24')
        a(f's_lshl_b32 s{S_T0}, s51, 8')
        a(f's_or_b32 s{S_U2}, s{S_U2}, s{S_T0}')
        a(f's_bfe_u32 s{S_U3}, s51, 0xc0004')
        for reg, mul, add in ((S_U1, 5, 0x123), (S_U2, 9, 0x456), (S_U3, 13, 0x789)):
            a(f's_mul_i32 s{S_T0}, s{S_U0}, {mul}')
            a(f's_add_u32 s{reg}, s{reg}, s{S_T0}')
            a(f's_add_u32 s{reg}, s{reg}, {add}')
            a(f's_and_b32 s{reg}, s{reg}, 0xfff')
        a(f's_lshl_b32 s{S_U1}, s{S_U1}, 12')
        a(f's_or_b32 s{S_U0}, s{S_U0}, s{S_U1}')
        a(f's_bitset1_b32 s{S_U0}, 31')
        a(f's_lshl_b32 s{S_U3}, s{S_U3}, 12')
        a(f's_or_b32 s{S_U2}, s{S_U2}, s{S_U3}')
        a(f's_bitset1_b32 s{S_U2}, 31')
        a(f'v_mov_b32 v38, s{S_U0}')
        a(f'v_mov_b32 v39, s{S_U2}')
        a('s_mov_b64 exec, 1')
        a(f'buffer_store_dwordx2 v[38:39], off, s[{S_DBG}:{S_DBG+3}], 0 sc1')
        a('s_mov_b64 exec, -1')
        a(f'{sk}:')
        a(f's_mul_i32 s{S_T0}, s2, 2560')
        a(f'v_lshlrev_b32 v{V_A}, 3, v{V_TID}')
        a(f'buffer_load_dwordx2 v[32:33], v{V_A}, s[{S_DST}:{S_DST+3}], s{S_T0} offen')
        a(f'buffer_load_dwordx2 v[34:35], v{V_A}, s[{S_SRC}:{S_SRC+3}], s{S_T0} offen')
        sk = a.label('no3')
        a(f's_cmp_ge_u32 s{S_WAVE}, 2')
        a(f's_cbranch_scc1 {sk}')
        a(f'v_lshlrev_b32 v{V_A}, 2, v{V_TID}')
        a(f'buffer_load_dword v36, v{V_A}, s[{S_DST}:{S_DST+3}], s{S_T0} offen offset:2048')
        a(f'buffer_load_dword v37, v{V_A}, s[{S_SRC}:{S_SRC+3}], s{S_T0} offen offset:2048')
        a(f'{sk}:')
        self.lds_init()
        a('s_barrier')
        a('s_waitcnt vmcnt(0)')
        self.ts(1)
        sk = a.label('nop0')
        a(f's_cmp_lg_u32 s{S_WAVE}, 0')
        a(f's_cbranch_scc1 {sk}')
        a(f'buffer_load_dwordx2 v[38:39], off, s[{S_DBG}:{S_DBG+3}], 0 sc1')
        a(f'{sk}:')
        a(f's_mov_b32 s{S_C0}, -40')
        a(f's_mov_b32 s{S_C1}, {CNT}')
        a(f's_mov_b32 s{S_C2}, {IMG}')
        a(f'v_mov_b32 v{V_G}, 1')
        def rnd(vd, vs, t):
            a(f'v_mul_u32_u24 v{t}, 0xcccd, v{vd}')
            a(f'v_lshrrev_b32 v{t}, 21, v{t}')
            a(f'v_mad_i32_i24 v{t+1}, v{t}, s{S_C0}, v{vd}')
            a(f'v_lshlrev_b32 v{t+2}, 18, v{vs}')
            a(f'v_lshl_or_b32 v{t+1}, v{t+1}, 12, v{t+2}')
            a(f'v_lshl_add_u32 v{t+3}, v{t}, 2, s{S_C1}')
            a(f'v_lshl_add_u32 v{t+2}, v{t}, 6, s{S_C2}')
            a(f'ds_add_rtn_u32 v{t+3}, v{t+3}, v{V_G}')
        def wr(t):
            a(f'v_cmpx_gt_u32 vcc, 16, v{t+3}')
            a(f'v_lshl_add_u32 v{t+2}, v{t+3}, 2, v{t+2}')
            a(f'ds_write_b32 v{t+2}, v{t+1}')
            a('s_mov_b64 exec, -1')
        rnd(32, 34, 40); rnd(33, 35, 44)
        sk = a.label('no3b')
        a(f's_cmp_ge_u32 s{S_WAVE}, 2')
        a(f's_cbranch_scc1 {sk}')
        rnd(36, 37, 48)
        a('s_waitcnt lgkmcnt(0)')
        wr(48)
        a(f'{sk}:')
        a('s_waitcnt lgkmcnt(0)')
        wr(40); wr(44)
        sk = a.label('nop1'); lp = a.label('npoll'); dn = a.label('ndone')
        a(f's_cmp_lg_u32 s{S_WAVE}, 0')
        a(f's_cbranch_scc1 {sk}')
        a(f'{lp}:')
        a('s_waitcnt vmcnt(0)')
        a(f'v_readfirstlane_b32 s{S_T0}, v38')
        a(f'v_readfirstlane_b32 s{S_T1}, v39')
        a('s_nop 1')
        a(f's_and_b32 s{S_T0}, s{S_T0}, s{S_T1}')
        a(f's_bitcmp1_b32 s{S_T0}, 31')
        a(f's_cbranch_scc1 {dn}')
        a(f's_add_u32 s{S_POLL}, s{S_POLL}, 1')
        a(f's_cmp_gt_u32 s{S_POLL}, {POLL_MAX}')
        a(f's_cbranch_scc1 {dn}')
        a(f'buffer_load_dwordx2 v[38:39], off, s[{S_DBG}:{S_DBG+3}], 0 sc1')
        a(f's_branch {lp}')
        a(f'{dn}:')
        a(f'v_mov_b32 v{V_A}, {M_NONCE}')
        a(f'ds_write_b64 v{V_A}, v[38:39]')
        a(f'{sk}:')
        a('s_waitcnt lgkmcnt(0)')
        a('s_barrier')
        self.ts(2)
        self.read_tags()
        a(f'v_lshlrev_b32 v{V_F}, 4, v{V_TID}')
        a(f's_mov_b32 s{S_C0}, {WS_UTAB}')
        a(f's_mov_b32 s{S_C1}, {WS_UTAB+4096}')
        lp = a.label('upoll'); dn = a.label('udone')
        a(f'{lp}:')
        a(f'buffer_load_dwordx4 v[40:43], v{V_F}, s[{S_WS}:{S_WS+3}], s{S_C0} offen sc1')
        a(f'buffer_load_dwordx4 v[44:47], v{V_F}, s[{S_WS}:{S_WS+3}], s{S_C1} offen sc1')
        a('s_waitcnt vmcnt(0)')
        self.tagcheck(40, V_A, True, V_B)
        self.tagcheck(44, V_A, False, V_B)
        self.poll_tail(V_A, lp, dn)
        a(f'{dn}:')
        self.ts(3)
        a(f's_mov_b32 s{S_C0}, 0xfffff000')
        for i in range(8): a(f'v_and_b32 v{40+i}, s{S_C0}, v{40+i}')
        a(f'v_cvt_pk_bf16_f32 v40, v40, v42')
        a(f'v_cvt_pk_bf16_f32 v41, v41, v43')
        a(f'v_cvt_pk_bf16_f32 v44, v44, v46')
        a(f'v_cvt_pk_bf16_f32 v45, v45, v47')
        a(f'v_lshrrev_b32 v{V_A}, 7, v{V_TID}')
        a(f'v_mul_u32_u24 v{V_A}, 528, v{V_A}')
        a(f'v_and_b32 v{V_B}, 127, v{V_TID}')
        a(f'v_lshl_add_u32 v{V_A}, v{V_B}, 2, v{V_A}')
        a(f'v_add_u32 v{V_A}, {UT}, v{V_A}')
        a(f'ds_write_b32 v{V_A}, v40')
        a(f'ds_write_b32 v{V_A}, v41 offset:2112')
        a(f'ds_write_b32 v{V_A}, v44 offset:1056')
        a(f'ds_write_b32 v{V_A}, v45 offset:{1056+2112}')
        a(f'v_lshlrev_b32 v{V_F}, 6, v{V_TID}')
        a(f's_mul_i32 s{S_C0}, s2, 16000')
        a(f'v_cmp_gt_u32 vcc, 250, v{V_TID}')
        a(f's_mov_b64 s[{S_EX2}:{S_EX2+1}], vcc')
        for i in range(16): a(f'v_mov_b32 v{48+i}, 0xfffff000')
        lp = a.label('epoll'); dn = a.label('edone')
        first = True
        a(f's_mov_b64 exec, s[{S_EX2}:{S_EX2+1}]')
        for i in range(4):
            a(f'buffer_load_dwordx4 v[{48+4*i}:{51+4*i}], v{V_F}, s[{S_WS}:{S_WS+3}], s{S_C0} offen offset:{16*i} sc1')
        a('s_mov_b64 exec, -1')
        a('s_waitcnt lgkmcnt(0)')
        a('s_barrier')
        self.ts(4)
        a(f's_mov_b64 exec, s[{S_EX2}:{S_EX2+1}]')
        a(f'{lp}:')
        a('s_waitcnt vmcnt(0)')
        for i in range(4): self.tagcheck(48+4*i, V_A, i == 0, V_B)
        a(f'v_and_b32 v{V_A}, 0xfff, v{V_A}')
        a(f'v_cmp_ne_u32 vcc, 0, v{V_A}')
        a(f's_cbranch_vccz {dn}')
        a(f's_add_u32 s{S_POLL}, s{S_POLL}, 1')
        a(f's_cmp_gt_u32 s{S_POLL}, {POLL_MAX}')
        a(f's_cbranch_scc1 {dn}')
        a('s_sleep 1')
        for i in range(4):
            a(f'buffer_load_dwordx4 v[{48+4*i}:{51+4*i}], v{V_F}, s[{S_WS}:{S_WS+3}], s{S_C0} offen offset:{16*i} sc1')
        a(f's_branch {lp}')
        a(f'{dn}:')
        self.ts(5)
        a(f's_mov_b32 s{S_C0}, 0xfffc0000')
        a(f's_mov_b32 s{S_C1}, {GCNT}')
        a(f's_mov_b32 s{S_C2}, 0x1e00')
        a(f'v_mov_b32 v{V_G}, 1')
        def p1(k0):
            for k in range(k0, k0+8):
                a(f'v_cmpx_gt_u32 vcc, s{S_C0}, v{48+k}')
                a(f'v_lshrrev_b32 v{V_A}, 12, v{48+k}')
                a(f'v_and_or_b32 v{V_A}, v{V_A}, 60, s{S_C1}')
                a(f'ds_add_rtn_u32 v{64+(k&7)}, v{V_A}, v{V_G}')
            a(f's_mov_b64 exec, s[{S_EX2}:{S_EX2+1}]')
            a('s_waitcnt lgkmcnt(0)')
            for k in range(k0, k0+8):
                a(f'v_cmpx_gt_u32 vcc, s{S_C0}, v{48+k}')
                a(f'v_lshrrev_b32 v{V_A}, 5, v{48+k}')
                a(f'v_and_b32 v{V_A}, 0x1e00, v{V_A}')
                a(f'v_min_u32 v{V_B}, 0x7f, v{64+(k&7)}')
                a(f'v_lshl_add_u32 v{V_A}, v{V_B}, 2, v{V_A}')
                a(f'v_add_u32 v{V_A}, {LIST}, v{V_A}')
                a(f'v_lshrrev_b32 v{V_B}, 9, v{48+k}')
                a(f'ds_write_b32 v{V_A}, v{V_B}')
            a(f's_mov_b64 exec, s[{S_EX2}:{S_EX2+1}]')
        p1(0)
        sk = a.label('norare')
        a(f'v_cmp_gt_u32 vcc, s{S_C0}, v56')
        a(f's_cbranch_vccz {sk}')
        p1(8)
        a(f'v_lshrrev_b32 v{V_A}, 12, v63')
        a(f'v_cmp_eq_u32 vcc, 0xffffe, v{V_A}')
        a(f's_and_saveexec_b64 s[{S_EX}:{S_EX+1}], vcc')
        sk2 = a.label('noovf')
        a(f's_cbranch_execz {sk2}')
        a(f'v_mov_b32 v{V_A}, {M_SLOW}')
        a(f'ds_write_b32 v{V_A}, v{V_G}')
        a(f'{sk2}:')
        a(f'{sk}:')
        a('s_mov_b64 exec, -1')
        a('s_waitcnt lgkmcnt(0)')
        a('s_barrier')
        self.ts(6)
        units = 4
        a(f'v_cmp_gt_u32 vcc, 32, v{V_LANE}')
        a(f's_mov_b64 s[{S_EX2}:{S_EX2+1}], vcc')
        def unit_setup(u):
            if u == 0:
                a(f's_mov_b32 s{S_U0}, s{S_WAVE}'); a(f's_mov_b32 s{S_U1}, s{S_WAVE}')
                a(f's_mov_b32 s{S_U2}, 0'); a(f's_mov_b32 s{S_U3}, 63')
            elif u == 1:
                a(f's_add_u32 s{S_U0}, s{S_WAVE}, 4'); a(f's_mov_b32 s{S_U1}, s{S_U0}')
                a(f's_mov_b32 s{S_U2}, 0'); a(f's_mov_b32 s{S_U3}, 63')
            elif u == 2:
                a(f's_add_u32 s{S_T0}, s{S_WAVE}, 8')
                a(f's_lshl_b32 s{S_T1}, s{S_WAVE}, 2')
                a(f's_sub_u32 s{S_T1}, s{S_T1}, 4')
                a(f's_add_u32 s{S_T2}, s{S_T1}, 1')
                a(f's_cmp_lt_u32 s{S_WAVE}, 2')
                a(f's_cselect_b32 s{S_U0}, s{S_T0}, s{S_T1}')
                a(f's_cselect_b32 s{S_U1}, s{S_T0}, s{S_T2}')
                a(f's_cselect_b32 s{S_U2}, 0, 64')
                a(f's_cselect_b32 s{S_U3}, 63, 31')
            elif u == 3:
                a(f's_lshl_b32 s{S_T0}, s{S_WAVE}, 1')
                a(f's_cmp_lt_u32 s{S_WAVE}, 2')
                a(f's_cselect_b32 s{S_U0}, s{S_T0}, 6')
                a(f's_add_u32 s{S_U1}, s{S_U0}, 1')
                a(f's_cmp_eq_u32 s{S_WAVE}, 3')
                a(f's_cselect_b32 s{S_U2}, 128, 64')
                a(f's_mov_b32 s{S_U3}, 31')
        def unit_addr(u, vle, vaa, vcnt):
            a(f'v_mov_b32 v{V_C}, s{S_U1}')
            a(f'v_mov_b32 v{V_D}, s{S_U0}')
            a(f'v_cndmask_b32 v{V_C}, v{V_C}, v{V_D}, s[{S_EX2}:{S_EX2+1}]')
            a(f'v_and_b32 v{V_D}, s{S_U3}, v{V_LANE}')
            a(f'v_add_u32 v{V_D}, s{S_U2}, v{V_D}')
            a(f'v_lshl_add_u32 v{V_E}, v{V_C}, 2, s{S_C1}')
            a(f'ds_read_b32 v{vcnt}, v{V_E}')
            a(f'v_lshlrev_b32 v{V_E}, 9, v{V_C}')
            a(f'v_lshl_add_u32 v{V_E}, v{V_D}, 2, v{V_E}')
            a(f'v_add_u32 v{V_E}, {LIST}, v{V_E}')
            a(f'ds_read_b32 v{vle}, v{V_E}')
            a(f'v_mul_u32_u24 v{V_E}, {APG}, v{V_C}')
            a(f'v_lshl_add_u32 v{vaa}, v{V_D}, 1, v{V_E}')
            a(f'v_add_u32 v{vaa}, {AP}, v{vaa}')
            return
        RANK0 = 84
        a(f's_mov_b32 s{S_C1}, {GCNT}')
        for u in range(units):
            unit_setup(u)
            unit_addr(u, 32+u, 72+u, 80+u)
            a(f'v_mov_b32 v{RANK0+u}, v{V_D}')
        a('s_waitcnt lgkmcnt(0)')
        for u in range(units): a(f'v_min_u32 v{80+u}, 0x80, v{80+u}')
        a(f's_mov_b32 s{S_C0}, {WS_STAB}')
        a(f's_mov_b32 s{S_C2}, {SDST}')
        def unit_loads(u):
            a(f'v_cmpx_gt_u32 vcc, v{80+u}, v{RANK0+u}')
            a(f'v_lshrrev_b32 v{V_A}, 5, v{32+u}')
            a(f'v_and_b32 v{88+u}, 0x3fff0, v{V_A}')
            a(f'v_lshlrev_b32 v{V_A}, 1, v{32+u}')
            a(f'v_and_b32 v{V_A}, 0x3f0, v{V_A}')
            a(f'v_add_u32 v{76+u}, s{S_C2}, v{V_A}')
            a(f'buffer_load_dwordx4 v[{40+4*u}:{43+4*u}], v{88+u}, s[{S_WS}:{S_WS+3}], s{S_C0} offen sc1')
            a(f'ds_read_b128 v[{56+4*u}:{59+4*u}], v{76+u}')
            a('s_mov_b64 exec, -1')
        for u in range(units): unit_loads(u)
        self.ts(7)
        self.steptab()
        self.xprologue()
        a(f's_waitcnt vmcnt({4*self.R}) lgkmcnt(0)')
        lp = a.label('spoll'); dn = a.label('sdone')
        a(f'{lp}:')
        a(f'v_mov_b32 v{V_F}, 0')
        for u in range(units):
            a(f'v_cmpx_gt_u32 vcc, v{80+u}, v{RANK0+u}')
            self.tagcheck(40+4*u, V_F, False, V_B)
            a('s_mov_b64 exec, -1')
        a(f'v_and_b32 v{V_F}, 0xfff, v{V_F}')
        a(f'v_cmp_ne_u32 vcc, 0, v{V_F}')
        a(f's_cbranch_vccz {dn}')
        a(f's_add_u32 s{S_POLL}, s{S_POLL}, 1')
        a(f's_cmp_gt_u32 s{S_POLL}, {POLL_MAX}')
        a(f's_cbranch_scc1 {dn}')
        a('s_sleep 1')
        for u in range(units):
            a(f'v_cmpx_gt_u32 vcc, v{80+u}, v{RANK0+u}')
            a(f'buffer_load_dwordx4 v[{40+4*u}:{43+4*u}], v{88+u}, s[{S_WS}:{S_WS+3}], s{S_C0} offen sc1')
            a('s_mov_b64 exec, -1')
        a('s_waitcnt vmcnt(0)')
        a(f's_branch {lp}')
        a(f'{dn}:')
        self.ts(8)
        a(f's_mov_b32 s{S_C0}, 0xfffff000')
        a(f's_mov_b32 s{S_C1}, 0xffff0000')
        a(f's_movk_i32 s{S_C2}, 320')
        for u in range(units): self._unit_weights(u, 40+4*u, 56+4*u, 32+u, 72+u, 76+u, RANK0)
        self.rare_c_units(unit_addr, RANK0)
        a('s_waitcnt lgkmcnt(0)')
        a('s_barrier')
        self.ts(9)

    def rare_c_units(self, unit_addr, RANK0):
        a = self.a
        sk = a.label('noC')
        a(f'v_lshlrev_b32 v{V_A}, 2, v{V_LANE}')
        a(f'v_add_u32 v{V_A}, {GCNT}, v{V_A}')
        a(f'v_cmp_gt_u32 vcc, 10, v{V_LANE}')
        a(f's_and_saveexec_b64 s[{S_EX}:{S_EX+1}], vcc')
        a(f'ds_read_b32 v{V_B}, v{V_A}')
        a('s_waitcnt lgkmcnt(0)')
        a(f'v_cmp_lt_u32 vcc, 0x60, v{V_B}')
        a(f's_mov_b64 exec, s[{S_EX}:{S_EX+1}]')
        a(f's_cbranch_vccz {sk}')
        for rep in range(2):
            if rep == 1:
                sk1 = a.label('noC2')
                a(f's_cmp_lg_u32 s{S_WAVE}, 0')
                a(f's_cbranch_scc1 {sk1}')
                a(f's_mov_b32 s{S_U0}, 8')
            else:
                a(f's_lshl_b32 s{S_U0}, s{S_WAVE}, 1')
            a(f's_add_u32 s{S_U1}, s{S_U0}, 1')
            a(f's_mov_b32 s{S_U2}, 96'); a(f's_mov_b32 s{S_U3}, 31')
            a(f's_mov_b32 s{S_C1}, {GCNT}')
            unit_addr(0, 32, 72, 80)
            a(f'v_mov_b32 v{RANK0}, v{V_D}')
            a('s_waitcnt lgkmcnt(0)')
            a(f'v_min_u32 v80, 0x80, v80')
            a(f's_mov_b32 s{S_C0}, {WS_STAB}')
            a(f's_mov_b32 s{S_C2}, {SDST}')
            a(f'v_cmpx_gt_u32 vcc, v80, v{RANK0}')
            a(f'v_lshrrev_b32 v{V_A}, 5, v32')
            a(f'v_and_b32 v88, 0x3fff0, v{V_A}')
            a(f'v_lshlrev_b32 v{V_A}, 1, v32')
            a(f'v_and_b32 v{V_A}, 0x3f0, v{V_A}')
            a(f'v_add_u32 v76, s{S_C2}, v{V_A}')
            a(f'ds_read_b128 v[56:59], v76')
            lp = a.label('cpoll'); dn = a.label('cdone')
            ex = a.label('cempty')
            a(f's_cbranch_execz {ex}')
            a(f'{lp}:')
            a(f'buffer_load_dwordx4 v[40:43], v88, s[{S_WS}:{S_WS+3}], s{S_C0} offen sc1')
            a('s_waitcnt vmcnt(0) lgkmcnt(0)')
            self.tagcheck(40, V_F, True, V_B)
            self.poll_tail(V_F, lp, dn)
            a(f'{dn}:')
            a(f'{ex}:')
            a('s_mov_b64 exec, -1')
            a(f's_mov_b32 s{S_C0}, 0xfffff000')
            a(f's_mov_b32 s{S_C1}, 0xffff0000')
            a(f's_movk_i32 s{S_C2}, 320')
            self._unit_weights(0, 40, 56, 32, 72, 76, RANK0)
            if rep == 1: a(f'{sk1}:')
        a(f'{sk}:')

    def _unit_weights(self, u, sv, dv, le, aa, da, RANK0):
        a = self.a
        a(f'v_cmpx_gt_u32 vcc, v{80+u}, v{RANK0+u}')
        for h in range(4): a(f'v_and_b32 v{sv+h}, s{S_C0}, v{sv+h}')
        for h in range(4): a(f'v_add_f32 v{sv+h}, v{sv+h}, v{dv+h}')
        for h in range(4): a(f'v_mul_f32 v{dv+h}, 0x3e4ccccd, v{sv+h}')
        for h in range(4): a(f'v_max_f32 v{sv+h}, v{sv+h}, v{dv+h}')
        for h in range(4): a(f'v_exp_f32 v{sv+h}, v{sv+h}')
        a(f'v_bfe_u32 v{V_A}, v{le}, 3, 2')
        a(f'v_cvt_pk_bf16_f32 v{dv}, v{sv}, v{sv+1}')
        a(f'v_cvt_pk_bf16_f32 v{dv+1}, v{sv+2}, v{sv+3}')
        a(f'v_mad_u32_u24 v{V_A}, v{V_A}, s{S_C2}, v{aa}')
        a(f'v_mov_b32 v{V_B}, -1')
        a(f'ds_write_b16 v{aa}, v{dv}')
        a(f'ds_write_b16_d16_hi v{aa}, v{dv} offset:320')
        a(f'ds_write_b16 v{aa}, v{dv+1} offset:640')
        a(f'ds_write_b16_d16_hi v{aa}, v{dv+1} offset:960')
        a(f'ds_write_b16 v{V_A}, v{V_B} offset:1280')
        a('s_mov_b64 exec, -1')

    def set1_early(self):
        a = self.a; o = self.o
        a(f's_sub_u32 s{S_U0}, s{S_WAVE}, 4')
        a(f's_lshl_b32 s{S_T0}, s2, 1')
        a(f's_add_u32 s{S_T0}, s{S_T0}, s{S_U0}')
        a(f's_add_u32 s{S_T1}, s2, 500')
        a(f's_cmp_lt_u32 s{S_U0}, 2')
        a(f's_cselect_b32 s{S_U1}, s{S_T0}, s{S_T1}')
        a(f's_cselect_b32 s{S_U2}, 1, 0')
        a(f's_cmp_eq_u32 s{S_U0}, 2')
        a(f's_cselect_b32 s{S_T0}, 1, 0')
        a(f's_cmp_lt_u32 s2, 12')
        a(f's_cselect_b32 s{S_T1}, s{S_T0}, 0')
        a(f's_or_b32 s{S_U2}, s{S_U2}, s{S_T1}')
        sk = a.label('nou')
        a(f's_cmp_eq_u32 s{S_U2}, 0')
        a(f's_cbranch_scc1 {sk}')
        a(f's_lshl_b32 s{S_T0}, s{S_U1}, 10')
        a(f's_lshr_b32 s{S_T1}, s{S_U1}, 7')
        a(f's_lshl_b32 s{S_T1}, s{S_T1}, 9')
        a(f'v_lshlrev_b32 v{V_A}, 3, v{V_LANE}')
        a(f'buffer_load_dwordx2 v[32:33], v{V_A}, s[{S_W}:{S_W+3}], s{S_T0} offen')
        a(f'buffer_load_dwordx2 v[34:35], v{V_A}, s[{S_W}:{S_W+3}], s{S_T0} offen offset:512')
        a(f'buffer_load_dwordx2 v[36:37], v{V_A}, s[{S_AS}:{S_AS+3}], s{S_T1} offen')
        a(f'buffer_load_dwordx2 v[38:39], v{V_A}, s[{S_AD}:{S_AD+3}], s{S_T1} offen')
        a(f'{sk}:')
        sk = a.label('nox')
        a(f's_cmp_gt_u32 s{S_U0}, 2')
        a(f's_cbranch_scc1 {sk}')
        a(f's_mul_i32 s{S_T0}, s2, 40')
        a(f's_lshl_b32 s{S_T1}, s{S_U0}, 4')
        a(f's_add_u32 s{S_T0}, s{S_T0}, s{S_T1}')
        a(f's_lshl_b32 s{S_T0}, s{S_T0}, 9')
        a(f's_add_u32 s{S_T0}, s{S_T0}, 4096')
        a(f'v_and_b32 v{V_A}, 15, v{V_LANE}')
        a(f'v_lshlrev_b32 v{V_A}, 9, v{V_A}')
        a(f'v_lshrrev_b32 v{V_B}, 4, v{V_LANE}')
        a(f'v_lshl_add_u32 v{V_A}, v{V_B}, 4, v{V_A}')
        for t in range(8):
            a(f'buffer_load_dwordx4 v[{40+4*t}:{43+4*t}], v{V_A}, s[{S_X}:{S_X+3}], s{S_T0} offen offset:{64*t}')
        a(f'{sk}:')
        npf = self.prefetch()
        self.lds_init()
        a('s_barrier')
        sk = a.label('nou2')
        a(f's_cmp_eq_u32 s{S_U2}, 0')
        a(f's_cbranch_scc1 {sk}')
        a(f's_waitcnt vmcnt({min(63, 8+npf)})')
        self.ts(1)
        a('v_dot2_f32_bf16 v72, v32, v36, 0')
        a('v_dot2_f32_bf16 v73, v32, v38, 0')
        a('v_dot2_f32_bf16 v74, v34, v36, 0')
        a('v_dot2_f32_bf16 v75, v34, v38, 0')
        a('v_dot2_f32_bf16 v72, v33, v37, v72')
        a('v_dot2_f32_bf16 v73, v33, v39, v73')
        a('v_dot2_f32_bf16 v74, v35, v37, v74')
        a('v_dot2_f32_bf16 v75, v35, v39, v75')
        a('s_nop 2')
        for ctl in ('row_shr:1 row_mask:0xf bank_mask:0xf bound_ctrl:1', 'row_shr:2 row_mask:0xf bank_mask:0xf bound_ctrl:1',
                    'row_shr:4 row_mask:0xf bank_mask:0xf bound_ctrl:1', 'row_shr:8 row_mask:0xf bank_mask:0xf bound_ctrl:1',
                    'row_bcast:15 row_mask:0xa bank_mask:0xf', 'row_bcast:31 row_mask:0xc bank_mask:0xf'):
            for r in range(72, 76):
                a(f'v_add_f32_dpp v{r}, v{r}, v{r} {ctl}')
        for r in range(72, 76):
            a(f'v_mul_f32 v{r}, 0x3fb8aa3b, v{r}')
        for r in range(72, 76):
            a(f'v_add_u32 v{r}, 0x800, v{r}')
        a(f'{sk}:')
        a('s_barrier')
        self.ts(2)
        self.read_tags()
        a(f's_mov_b32 s{S_C0}, 0xfffff000')
        sk = a.label('nou3')
        a(f's_cmp_eq_u32 s{S_U2}, 0')
        a(f's_cbranch_scc1 {sk}')
        for k in range(4):
            a(f'v_and_b32 v{72+k}, s{S_C0}, v{72+k}')
        for k in range(4):
            a(f'v_or_b32 v{72+k}, s{S_T+k}, v{72+k}')
        a(f's_lshl_b32 s{S_T0}, s{S_U1}, 4')
        a(f's_add_u32 s{S_T0}, s{S_T0}, {WS_UTAB}')
        a('s_mov_b32 exec_lo, 0')
        a('s_mov_b32 exec_hi, 0x80000000')
        a(f'buffer_store_dwordx4 v[72:75], off, s[{S_WS}:{S_WS+3}], s{S_T0} sc1')
        a('s_mov_b64 exec, -1')
        a(f'{sk}:')
        a(f'v_subrev_u32 v{V_F}, 256, v{V_TID}')
        a(f'v_lshlrev_b32 v{V_A}, 4, v{V_F}')
        a(f'v_add_u32 v{V_A}, {IMG}, v{V_A}')
        a(f'v_lshrrev_b32 v{V_B}, 2, v{V_F}')
        a(f'v_lshlrev_b32 v{V_C}, 2, v{V_B}')
        a(f'v_add_u32 v{V_C}, {CNT}, v{V_C}')
        for i in range(4):
            a(f'ds_read_b128 v[{76+4*i}:{79+4*i}], v{V_A} offset:{4096*i}')
            a(f'ds_read_b32 v{92+i}, v{V_C} offset:{256*i}')
        a(f'v_mul_u32_u24 v{V_B}, 16000, v{V_B}')
        a(f'v_and_b32 v{V_D}, 3, v{V_F}')
        a(f'v_lshl_add_u32 v{V_B}, v{V_D}, 4, v{V_B}')
        a(f'v_cmp_eq_u32 s[{S_EX2}:{S_EX2+1}], 3, v{V_D}')
        a(f'v_mov_b32 v{V_E}, 0xffffe000')
        a(f's_lshl_b32 s{S_C1}, s2, 6')
        a('s_waitcnt lgkmcnt(0)')
        for i in range(4):
            a(f'v_cmp_lt_u32 vcc, 16, v{92+i}')
            a(f's_and_b64 vcc, vcc, s[{S_EX2}:{S_EX2+1}]')
            a('s_nop 0')
            a(f'v_cndmask_b32 v{79+4*i}, v{79+4*i}, v{V_E}, vcc')
            for k in range(4):
                a(f'v_or_b32 v{76+4*i+k}, s{S_T+k}, v{76+4*i+k}')
            if i == 3:
                a(f'v_cmp_gt_u32 vcc, 232, v{V_F}')
                a(f's_and_saveexec_b64 s[{S_EX}:{S_EX+1}], vcc')
                sk = a.label('tst'); a(f's_cbranch_execz {sk}')
            a(f'buffer_store_dwordx4 v[{76+4*i}:{79+4*i}], v{V_B}, s[{S_WS}:{S_WS+3}], s{S_C1} offen sc1')
            if i == 3:
                a(f'{sk}:'); a(f's_mov_b64 exec, s[{S_EX}:{S_EX+1}]')
            else:
                a(f's_add_u32 s{S_C1}, s{S_C1}, 1024000')
        self.ts(3)
        a('s_barrier')
        self.ts(4)
        sk = a.label('nos')
        a(f's_cmp_gt_u32 s{S_U0}, 2')
        a(f's_cbranch_scc1 {sk}')
        a(f'v_and_b32 v{V_A}, 7, v{V_LANE}')
        a(f'v_mul_u32_u24 v{V_A}, 528, v{V_A}')
        a(f'v_lshrrev_b32 v{V_B}, 4, v{V_LANE}')
        a(f'v_lshl_add_u32 v{V_A}, v{V_B}, 4, v{V_A}')
        a(f'v_add_u32 v{V_A}, {UT}, v{V_A}')
        for t in range(8):
            a(f'ds_read_b128 v[{72+4*t}:{75+4*t}], v{V_A} offset:{64*t}')
        nst = (1 if True else 0)
        a(f's_waitcnt vmcnt({min(63, npf + 4)}) lgkmcnt(0)')
        for t in range(8):
            c = '0' if t == 0 else 'v[104:107]'
            a(f'v_mfma_f32_16x16x32_bf16 v[104:107], v[{72+4*t}:{75+4*t}], v[{40+4*t}:{43+4*t}], {c}')
        a(f'v_and_b32 v{V_A}, 15, v{V_LANE}')
        a(f's_lshl_b32 s{S_T0}, s{S_U0}, 4')
        a(f'v_add_u32 v{V_A}, s{S_T0}, v{V_A}')
        a(f'v_lshrrev_b32 v{V_B}, 4, v{V_LANE}')
        a(f'v_cmp_gt_u32 s[{S_EX2}:{S_EX2+1}], 40, v{V_A}')
        a(f'v_lshlrev_b32 v{V_C}, 4, v{V_A}')
        a(f's_mul_i32 s{S_T1}, s2, 640')
        a(f's_add_u32 s{S_T1}, s{S_T1}, {WS_STAB}')
        a(f'v_add_u32 v{V_D}, {SDST}, v{V_C}')
        a('s_nop 1')
        a(f'v_cmp_eq_u32 vcc, 1, v{V_B}')
        a(f's_and_b64 vcc, vcc, s[{S_EX2}:{S_EX2+1}]')
        a(f's_and_saveexec_b64 s[{S_EX}:{S_EX+1}], vcc')
        a(f'ds_write_b128 v{V_D}, v[104:107]')
        a(f's_mov_b64 exec, s[{S_EX}:{S_EX+1}]')
        for k in range(4): a(f'v_add_u32 v{108+k}, 0x800, v{104+k}')
        for k in range(4): a(f'v_and_b32 v{108+k}, s{S_C0}, v{108+k}')
        for k in range(4): a(f'v_or_b32 v{108+k}, s{S_T+k}, v{108+k}')
        a(f'v_cmp_eq_u32 vcc, 0, v{V_B}')
        a(f's_and_b64 vcc, vcc, s[{S_EX2}:{S_EX2+1}]')
        a(f's_and_saveexec_b64 s[{S_EX}:{S_EX+1}], vcc')
        a(f'buffer_store_dwordx4 v[108:111], v{V_C}, s[{S_WS}:{S_WS+3}], s{S_T1} offen sc1')
        a(f's_mov_b64 exec, s[{S_EX}:{S_EX+1}]')
        a(f'{sk}:')
        self.ts(5)
        a('s_waitcnt lgkmcnt(0)')
        a('s_barrier')
        self.ts(6)
        self.steptab()
        self.xprologue()
        a('s_waitcnt lgkmcnt(0)')
        a('s_barrier')
        self.ts(9)

    def prefetch(self):
        a = self.a; o = self.o
        n = 0
        if o.get('wpf'):
            sk = a.label('nowpf')
            a(f's_cmp_lt_u32 s{S_WAVE}, 6')
            a(f's_cbranch_scc1 {sk}')
            a(f's_lshr_b32 s{S_T0}, s2, 3')
            a(f's_lshl_b32 s{S_T0}, s{S_T0}, 1')
            a(f's_add_u32 s{S_T0}, s{S_T0}, s{S_WAVE}')
            a(f's_sub_u32 s{S_T0}, s{S_T0}, 6')
            a(f's_lshl_b32 s{S_T0}, s{S_T0}, 13')
            a(f'v_lshlrev_b32 v{V_A}, 7, v{V_LANE}')
            a(f'buffer_load_dword v254, v{V_A}, s[{S_W}:{S_W+3}], s{S_T0} offen')
            a(f'{sk}:')
        xp = o.get('xpf', 0)
        if xp:
            a(f's_lshr_b32 s{S_T0}, s2, 3')
            a(f's_mul_i32 s{S_T0}, s{S_T0}, {xp}')
            a(f's_lshl_b32 s{S_T0}, s{S_T0}, 9')
            a(f's_add_u32 s{S_T0}, s{S_T0}, 4096')
            rows_per_wave = (xp + 3) // 4
            a(f's_mul_i32 s{S_T1}, s{S_W3}, {rows_per_wave*512}')
            a(f's_add_u32 s{S_T0}, s{S_T0}, s{S_T1}')
            a(f'v_lshrrev_b32 v{V_A}, 1, v{V_LANE}')
            a(f'v_lshlrev_b32 v{V_A}, 9, v{V_A}')
            a(f'v_and_b32 v{V_B}, 1, v{V_LANE}')
            a(f'v_lshl_add_u32 v{V_A}, v{V_B}, 7, v{V_A}')
            ni = (rows_per_wave + 31) // 32
            for half in range(2):
                for i in range(ni):
                    a(f's_add_u32 s{S_T1}, s{S_T0}, {i*32*512 + half*256}')
                    a(f'buffer_load_dword v255, v{V_A}, s[{S_X}:{S_X+3}], s{S_T1} offen')
                    n += 1
        return n

    def steptab(self):
        a = self.a
        a(f's_mul_i32 s{S_T0}, s{S_HF}, 20')
        a(f's_add_u32 s{S_T0}, s{S_T0}, {GCNT}')
        a(f'v_lshlrev_b32 v{V_A}, 2, v{V_LANE}')
        a(f'v_add_u32 v{V_A}, s{S_T0}, v{V_A}')
        a(f'ds_read_b32 v{V_B}, v{V_A}')
        a(f'v_mov_b32 v{V_A}, {M_SLOW}')
        a(f'ds_read_b32 v{V_C}, v{V_A}')
        a('s_waitcnt lgkmcnt(0)')
        a(f'v_cmp_lt_u32 vcc, 0x80, v{V_B}')
        a(f's_and_b32 s{S_T1}, vcc_lo, 31')
        a(f'v_min_u32 v{V_B}, 0x80, v{V_B}')
        a(f'v_add_u32 v{V_B}, 31, v{V_B}')
        a(f'v_lshrrev_b32 v{V_B}, 5, v{V_B}')
        a('s_nop 0')
        for g in range(5): a(f'v_readlane_b32 s{S_N+g}, v{V_B}, {g}')
        a(f's_mul_i32 s{S_T2}, s{S_HF}, {5*512}')
        a(f'v_mov_b32 v{V_TAB}, 5120')
        a(f's_mov_b32 s{S_T0}, 0')
        a(f's_add_u32 s{S_U0}, s{S_N}, s{S_N+1}')
        a(f's_add_u32 s{S_U0}, s{S_U0}, s{S_N+2}')
        a(f's_add_u32 s{S_U0}, s{S_U0}, s{S_N+3}')
        a(f's_add_u32 s{S_U0}, s{S_U0}, s{S_N+4}')
        for g in range(5):
            a(f'v_subrev_u32 v{V_A}, s{S_T0}, v{V_LANE}')
            a(f'v_lshlrev_b32 v{V_A}, 7, v{V_A}')
            a(f's_add_u32 s{S_T1}, s{S_T2}, {g*512}')
            a(f'v_add_u32 v{V_A}, s{S_T1}, v{V_A}')
            a(f'v_cmp_le_u32 vcc, s{S_T0}, v{V_LANE}')
            a('s_nop 1')
            a(f'v_cndmask_b32 v{V_TAB}, v{V_TAB}, v{V_A}, vcc')
            a(f's_add_u32 s{S_T0}, s{S_T0}, s{S_N+g}')
        a(f'v_mov_b32 v{V_A}, 5120')
        a(f'v_cmp_le_u32 vcc, s{S_U0}, v{V_LANE}')
        a('s_nop 1')
        a(f'v_cndmask_b32 v{V_TAB}, v{V_TAB}, v{V_A}, vcc')

    def idx_read(self):
        a = self.a
        a(f'v_readlane_b32 s{S_T0}, v{V_TAB}, s{S_J}')
        a(f's_add_u32 s{S_J}, s{S_J}, 1')
        a('s_nop 0')
        a(f'v_add_u32 v{V_G}, s{S_T0}, v{V_LST}')
        a(f'ds_read2_b32 v[{V_IDX}:{V_IDX+1}], v{V_G} offset0:0 offset1:8')
        a(f'ds_read2_b32 v[{V_IDX+2}:{V_IDX+3}], v{V_G} offset0:16 offset1:24')

    def dma_issue(self):
        a = self.a
        for c in range(4):
            sw = V_SWE if c % 2 == 0 else V_SWO
            a(f'v_and_or_b32 v{V_IDX+c}, v{V_IDX+c}, s{S_M}, v{sw}')
        for c in range(4):
            a(f'buffer_load_dwordx4 v{V_IDX+c}, s[{S_X}:{S_X+3}], s{S_XSO+c} offen offset:{c*1024} lds')

    def xprologue(self):
        a = self.a
        a(f's_mov_b32 s{S_J}, 0')
        a('s_nop 2')
        for j in range(self.R):
            self.idx_read()
            a(f's_add_u32 m0, s{S_RING}, {j*4096}')
            a('s_waitcnt lgkmcnt(0)')
            self.dma_issue()
        self.idx_read()
        a(f's_mov_b32 s{S_SLOT}, 0')

    def aggregate(self):
        a = self.a; R = self.R
        for i in range(80): a(f'v_mov_b32 v{V_ACC+i}, 0')
        for i in range(4): a(f'v_mov_b32 v{V_ONE+i}, 0x3f803f80')
        for gg in range(5):
            nxt = a.label(f'g{gg}end')
            for i in range(4): a(f'v_mov_b32 v{V_DEN+i}, 0')
            for t in range(4):
                a(f's_cmp_le_u32 s{S_N+gg}, {t}')
                a(f's_cbranch_scc1 {nxt}')
                a(f's_waitcnt vmcnt({4*(R-1)})')
                off = gg*APG + t*64
                a(f'ds_read_b128 v[{V_AF}:{V_AF+3}], v{V_AW} offset:{off}')
                a(f'ds_read_b128 v[{V_MF}:{V_MF+3}], v{V_AM} offset:{off}')
                for j in range(4):
                    a(f'ds_read_b64_tr_b16 v[{V_BF+4*j}:{V_BF+4*j+1}], v{V_TR+j}')
                    a(f'ds_read_b64_tr_b16 v[{V_BF+4*j+2}:{V_BF+4*j+3}], v{V_TR+j} offset:512')
                a(f's_add_u32 m0, s{S_RING}, s{S_SLOT}')
                a(f's_add_u32 s{S_SLOT}, s{S_SLOT}, 4096')
                a(f's_cmp_eq_u32 s{S_SLOT}, {R*4096}')
                a(f's_cselect_b32 s{S_SLOT}, 0, s{S_SLOT}')
                a(f's_mov_b32 s{S_DELTA}, 4096')
                a(f's_cselect_b32 s{S_DELTA}, s{S_C3}, s{S_DELTA}')
                a('s_waitcnt lgkmcnt(0)')
                self.dma_issue()
                for k in range(4): a(f'v_and_b32 v{V_AF+k}, v{V_AF+k}, v{V_MF+k}')
                for j in range(4): a(f'v_add_u32 v{V_TR+j}, s{S_DELTA}, v{V_TR+j}')
                self.idx_read()
                for j in range(4):
                    acc = V_ACC + gg*16 + 4*j
                    if j == 0:
                        a(f'v_mfma_f32_16x16x32_bf16 v[{V_DEN}:{V_DEN+3}], v[{V_AF}:{V_AF+3}], v[{V_ONE}:{V_ONE+3}], v[{V_DEN}:{V_DEN+3}]')
                    a(f'v_mfma_f32_16x16x32_bf16 v[{acc}:{acc+3}], v[{V_AF}:{V_AF+3}], v[{V_BF+4*j}:{V_BF+4*j+3}], v[{acc}:{acc+3}]')
            a(f'{nxt}:')
            a('s_nop 7')
            for h in range(4): a(f'v_add_f32 v{V_DEN+h}, 0x3089705f, v{V_DEN+h}')
            for h in range(4): a(f'v_rcp_f32 v{V_DEN+h}, v{V_DEN+h}')
            for h in range(4): a(f'v_mul_f32 v{V_DEN+h}, 0x3e800000, v{V_DEN+h}')
            for j in range(4):
                for h in range(4): a(f'v_mul_f32 v{V_ACC+gg*16+4*j+h}, v{V_ACC+gg*16+4*j+h}, v{V_DEN+h}')
        a('s_waitcnt vmcnt(0) lgkmcnt(0)')

    def agg_write(self):
        a = self.a
        self.setsync(0)
        a(f'v_and_b32 v{V_C}, 15, v{V_LANE}')
        a(f'v_lshrrev_b32 v{V_A}, 4, v{V_LANE}')
        a(f'v_bfe_u32 v{V_D}, v{V_C}, 1, 2')
        a(f'v_lshrrev_b32 v{V_E}, 3, v{V_C}')
        a(f'v_lshl_add_u32 v{V_F}, v{V_E}, 2, v{V_D}')
        a(f'v_and_b32 v{V_G}, 1, v{V_C}')
        a(f's_mul_i32 s{S_U0}, s{S_SET}, {4*RINGW}')
        a(f's_and_b32 s{S_U1}, s{S_SLICE}, 1')
        end = a.label('aggw_end'); h1 = a.label('aggw_h1')
        a(f's_cmp_eq_u32 s{S_HF}, 1')
        a(f's_cbranch_scc1 {h1}')
        for hf in range(2):
            if hf == 1: a(f'{h1}:')
            for gg in range(5):
                node0 = 20*hf + 4*gg
                mt, mb = node0 >> 4, node0 & 15
                TS, QS = (1024, 256) if mt < 2 else (512, 128)
                tb = mt*16384
                ad = V_AF
                a(f'v_add_u32 v{ad}, {mb}, v{V_A}')
                a(f'v_xor_b32 v{ad}, v{ad}, v{V_F}')
                a(f'v_lshlrev_b32 v{ad}, 4, v{ad}')
                a(f'v_lshl_add_u32 v{ad}, v{V_G}, 3, v{ad}')
                a(f'v_lshl_add_u32 v{ad}, v{V_D}, {8 if QS==256 else 7}, v{ad}')
                a(f'v_lshl_add_u32 v{ad}, v{V_E}, {10 if TS==1024 else 9}, v{ad}')
                a(f's_mul_i32 s{S_T0}, s{S_U1}, {8*TS}')
                a(f's_add_u32 s{S_T0}, s{S_T0}, s{S_U0}')
                a(f'v_add_u32 v{ad}, s{S_T0}, v{ad}')
                for j in range(4):
                    acc = V_ACC + gg*16 + 4*j
                    a(f'v_cvt_pk_bf16_f32 v{V_MF}, v{acc}, v{acc+1}')
                    a(f'v_cvt_pk_bf16_f32 v{V_MF+1}, v{acc+2}, v{acc+3}')
                    a(f'ds_write_b64 v{ad}, v[{V_MF}:{V_MF+1}] offset:{tb + 2*j*TS}')
            if hf == 0: a(f's_branch {end}')
        a(f'{end}:')

    def wdma_setup(self):
        a = self.a
        a(f'v_lshrrev_b32 v{V_A}, 3, v{V_LANE}')
        a(f'v_and_b32 v{V_B}, 3, v{V_A}')
        a(f'v_lshlrev_b32 v{V_B}, 17, v{V_B}')
        a(f'v_lshrrev_b32 v{V_A}, 2, v{V_A}')
        a(f'v_lshl_add_u32 v{V_B}, v{V_A}, 9, v{V_B}')
        a(f'v_add_u32 v{V_IDX}, v{V_B}, v{V_SWE}')
        a(f'v_add_u32 v{V_IDX+1}, v{V_B}, v{V_SWO}')
        a(f's_lshl_b32 s{S_U2}, s{S_SET}, 16')
        a(f's_lshl_b32 s{S_T0}, s{S_W3}, 7')
        a(f's_add_u32 s{S_U2}, s{S_U2}, s{S_T0}')

    def wdma(self, t, ldsbase_sgpr, slotoff):
        a = self.a
        a(f's_add_u32 m0, s{ldsbase_sgpr}, {slotoff}')
        a(f's_add_u32 s{S_T0}, s{S_U2}, {t*4096}')
        for c in range(4):
            a(f'buffer_load_dwordx4 v{V_IDX + (c&1)}, s[{S_W}:{S_W+3}], s{S_T0} offen offset:{c*1024} lds')

    def wtr(self, dst, slotoff):
        a = self.a
        for j in range(4):
            a(f'ds_read_b64_tr_b16 v[{dst+4*j}:{dst+4*j+1}], v{V_TR+j} offset:{slotoff}')
            a(f'ds_read_b64_tr_b16 v[{dst+4*j+2}:{dst+4*j+3}], v{V_TR+j} offset:{slotoff+512}')

    def gemm(self):
        a = self.a; o = self.o
        npre = o.get('npre', 0)
        a(f's_lshl_b32 s{S_T0}, s{S_W3}, 13')
        a(f's_add_u32 s{S_T1}, s{S_T0}, {WR}')
        a(f's_add_u32 s{S_T2}, s{S_T0}, {AP-8192}')
        a(f's_cmp_eq_u32 s{S_W3}, 0')
        a(f's_cselect_b32 s{S_T2}, {4*RINGW+40960}, s{S_T2}')
        a(f's_cmp_eq_u32 s{S_SET}, 0')
        a(f's_cselect_b32 s{S_U3}, s{S_T1}, s{S_T2}')
        a(f's_add_u32 s{S_T0}, s{S_RING}, s{S_SLOT}')
        a(f's_sub_u32 s{S_T0}, s{S_U3}, s{S_T0}')
        for j in range(4): a(f'v_add_u32 v{V_TR+j}, s{S_T0}, v{V_TR+j}')
        self.wdma_setup()
        sk = a.label('wsync')
        a(f's_cmp_eq_u32 s{S_SET}, 0')
        a(f's_cbranch_scc1 {sk}')
        self.setsync(0, other=True, signal=False)
        a(f'{sk}:')
        stream = list(range(npre, 16))
        for i, t in enumerate(stream[:2]): self.wdma(t, S_U3, i*4096)
        a(f'v_and_b32 v{V_A}, 15, v{V_LANE}')
        a(f'v_lshrrev_b32 v{V_B}, 4, v{V_LANE}')
        a(f's_mul_i32 s{S_T0}, s{S_SET}, {4*RINGW}')
        for par in range(2):
            a(f'v_add_u32 v{V_C}, {4*par}, v{V_B}')
            a(f'v_xor_b32 v{V_D}, v{V_A}, v{V_C}')
            a(f'v_lshlrev_b32 v{V_D}, 4, v{V_D}')
            a(f'v_lshl_add_u32 v{V_D}, v{V_B}, 8, v{V_D}')
            a(f'v_add_u32 v{104+par}, s{S_T0}, v{V_D}')
            a(f'v_and_b32 v{V_D}, 7, v{V_A}')
            a(f'v_xor_b32 v{V_D}, v{V_D}, v{V_C}')
            a(f'v_lshlrev_b32 v{V_D}, 4, v{V_D}')
            a(f'v_lshl_add_u32 v{V_D}, v{V_B}, 7, v{V_D}')
            a(f'v_add_u32 v{106+par}, s{S_T0}, v{V_D}')
        self.setsync(1)
        self.ts(11)
        AB = [80, 92]
        def aggread(t, buf):
            for mt in range(3):
                if mt < 2:
                    a(f'ds_read_b128 v[{buf+4*mt}:{buf+4*mt+3}], v{104+(t&1)} offset:{mt*16384 + t*1024}')
                else:
                    a(f'ds_read_b128 v[{buf+8}:{buf+11}], v{106+(t&1)} offset:{32768 + t*512}')
        def wreg(t):
            if t < npre: return V_W + 16*t
            return V_W + 16*npre - 32 + 16*((t - npre) & 1) if npre >= 2 else V_W + 16*((t-npre) & 1)
        order = list(range(16))
        def wreg2(t):
            if t < npre: return V_W + 16*t
            return V_W + 16*((t - npre) & 1)
        def prep(t):
            if t >= npre:
                i = t - npre
                a(f's_waitcnt vmcnt({4 if i+1 < len(stream) else 0})')
                self.wtr(wreg2(t), (i & 1)*4096)
            aggread(t, AB[t & 1])
        prep(0)
        a('s_waitcnt lgkmcnt(0)')
        if 0 >= npre and len(stream) > 2: self.wdma(stream[2], S_U3, 0)
        for t in range(16):
            if t + 1 < 16:
                prep(t+1)
            w = wreg2(t); b = AB[t & 1]
            for mt in range(3):
                for j in range(4):
                    acc = V_ACC + 16*mt + 4*j
                    c = '0' if t == 0 else f'v[{acc}:{acc+3}]'
                    a(f'v_mfma_f32_16x16x32_bf16 v[{acc}:{acc+3}], v[{w+4*j}:{w+4*j+3}], v[{b+4*mt}:{b+4*mt+3}], {c}')
            if t + 1 < 16:
                a('s_waitcnt lgkmcnt(0)')
                i = t + 1 - npre
                if i >= 0 and i + 2 < len(stream): self.wdma(stream[i+2], S_U3, (i & 1)*4096)
        self.ts(12)

    def finish(self):
        a = self.a
        s1 = a.label('fin1')
        a(f's_cmp_eq_u32 s{S_SET}, 1')
        a(f's_cbranch_scc1 {s1}')
        a('s_nop 7')
        self.setsync(2)
        a(f's_mul_i32 s{S_T0}, s{S_W3}, {RINGW}')
        a(f'v_lshlrev_b32 v{V_D}, 4, v{V_LANE}')
        a(f'v_add_u32 v{V_D}, s{S_T0}, v{V_D}')
        for i in range(12):
            a(f'ds_write_b128 v{V_D}, v[{V_ACC+4*i}:{V_ACC+4*i+3}] offset:{1024*i}')
        self.setsync(3, wait=False)
        self.ts(13)
        a('s_branch L_fin')
        a(f'{s1}:')
        self.setsync(3, other=True, signal=False)
        a(f's_mul_i32 s{S_T0}, s{S_W3}, {RINGW}')
        a(f'v_lshlrev_b32 v{V_D}, 4, v{V_LANE}')
        a(f'v_add_u32 v{V_D}, s{S_T0}, v{V_D}')
        P = V_W
        for i in range(12):
            a(f'ds_read_b128 v[{P+4*i}:{P+4*i+3}], v{V_D} offset:{1024*i}')
        a(f'v_and_b32 v{V_A}, 15, v{V_LANE}')
        a(f'v_lshrrev_b32 v{V_B}, 4, v{V_LANE}')
        a(f'v_and_b32 v{V_C}, 1, v{V_B}')
        a(f'v_lshrrev_b32 v{V_E}, 1, v{V_B}')
        a(f'v_lshlrev_b32 v{V_C}, 5, v{V_C}')
        a(f'v_lshl_add_u32 v{V_C}, v{V_E}, 4, v{V_C}')
        a(f'v_lshl_add_u32 v{V_C}, v{V_A}, 9, v{V_C}')
        a(f's_mul_i32 s{S_T0}, s2, {40*512}')
        a(f's_lshl_b32 s{S_T1}, s{S_W3}, 7')
        a(f's_add_u32 s{S_T0}, s{S_T0}, s{S_T1}')
        a(f'v_cmp_gt_u32 s[{S_EX2}:{S_EX2+1}], 8, v{V_A}')
        a('s_waitcnt lgkmcnt(0)')
        for i in range(48): a(f'v_add_f32 v{V_ACC+i}, v{V_ACC+i}, v{P+i}')
        for mt in range(3):
            for jp in range(2):
                R0 = P + 8*mt + 4*jp
                for jj in range(2):
                    acc = V_ACC + 16*mt + 4*(2*jp+jj)
                    a(f'v_cvt_pk_bf16_f32 v{R0+2*jj}, v{acc}, v{acc+1}')
                    a(f'v_cvt_pk_bf16_f32 v{R0+2*jj+1}, v{acc+2}, v{acc+3}')
        a('s_nop 1')
        for mt in range(3):
            for jp in range(2):
                R0 = P + 8*mt + 4*jp
                a(f'v_permlane16_swap_b32 v{R0}, v{R0+2}')
                a(f'v_permlane16_swap_b32 v{R0+1}, v{R0+3}')
        for mt in range(3):
            a(f's_add_u32 s{S_T1}, s{S_T0}, {mt*16*512}')
            if mt == 2: a(f's_mov_b64 exec, s[{S_EX2}:{S_EX2+1}]')
            for jp in range(2):
                R0 = P + 8*mt + 4*jp
                a(f'buffer_store_dwordx4 v[{R0}:{R0+3}], v{V_C}, s[{S_OUT}:{S_OUT+3}], s{S_T1} offen offset:{64*jp}')
        a('s_mov_b64 exec, -1')
        self.ts(13)
        a('L_fin:')
        if self.o.get('ts') == 2:
            sk = a.label('dbgts')
            a(f's_and_b32 s{S_T0}, s{S_WAVE}, 3')
            a(f's_cmp_lg_u32 s{S_T0}, 0')
            a(f's_cbranch_scc1 {sk}')
            a(f'v_readlane_b32 s{S_T0}, v{V_TSR}, 0')
            a('s_nop 3')
            a(f's_not_b32 s{S_T0}, s{S_T0}')
            a(f'v_writelane_b32 v{V_TSR}, s{S_T0}, 0')
            a(f'v_lshlrev_b32 v{V_A}, 2, v{V_LANE}')
            a(f'v_add_u32 v{V_A}, 8, v{V_A}')
            a(f'v_cmp_gt_u32 vcc, 14, v{V_LANE}')
            a(f's_and_saveexec_b64 s[{S_EX}:{S_EX+1}], vcc')
            a(f'buffer_atomic_umax v{V_TSR}, v{V_A}, s[{S_DBG}:{S_DBG+3}], 0 offen')
            a(f's_mov_b64 exec, s[{S_EX}:{S_EX+1}]')
            a(f'{sk}:')
        if self.o.get('ts') == 1:
            a(f's_lshl_b32 s{S_T0}, s2, 3')
            a(f's_add_u32 s{S_T0}, s{S_T0}, s{S_WAVE}')
            a(f's_lshl_b32 s{S_T0}, s{S_T0}, 6')
            a(f's_add_u32 s{S_T0}, s{S_T0}, {WS_TS}')
            a(f'v_writelane_b32 v{V_TSR}, s{S_POLL}, 15')
            a(f'v_lshlrev_b32 v{V_A}, 2, v{V_LANE}')
            a(f'v_cmp_gt_u32 vcc, 16, v{V_LANE}')
            a(f's_and_saveexec_b64 s[{S_EX}:{S_EX+1}], vcc')
            a(f'buffer_store_dword v{V_TSR}, v{V_A}, s[{S_WS}:{S_WS+3}], s{S_T0} offen')
            a(f's_mov_b64 exec, s[{S_EX}:{S_EX+1}]')

    def build(self):
        a = self.a; o = self.o
        self.R = 3
        a(f'; @launch grid=({NB},1,1) block=(512,1,1) lds={LDS_SIZE}')
        a('.amdgcn_target "amdgcn-amd-amdhsa--gfx950"')
        a('.text')
        a(f'.globl {KNAME}')
        a('.p2align 8')
        a(f'.type {KNAME},@function')
        a(f'{KNAME}:')
        self.prologue()
        a(f's_mov_b32 s{S_C3}, {(-(self.R-1)*4096) & 0xffffffff}')
        a(f's_cmp_eq_u32 s{S_SET}, 1')
        a('s_cbranch_scc1 L_set1')
        self.set0_early()
        a('s_branch L_common')
        a('L_set1:')
        self.set1_early()
        a('L_common:')
        self.aggregate()
        self.ts(10)
        self.agg_write()
        self.gemm()
        self.finish()
        for i in range(o.get('pad', 0)): a(f'v_add3_u32 v{10+(i%8)}, v{10+(i%8)}, v2, v2')
        a('L_end:')
        a('s_endpgm')
        a('.section .rodata,"a"')
        a('.p2align 6')
        a(f'.amdhsa_kernel {KNAME}')
        a('  .amdhsa_next_free_vgpr 256')
        a('  .amdhsa_next_free_sgpr 102')
        a('  .amdhsa_accum_offset 256')
        a('  .amdhsa_group_segment_fixed_size 0')
        a('  .amdhsa_kernarg_size 72')
        a('  .amdhsa_user_sgpr_count 2')
        a('  .amdhsa_user_sgpr_kernarg_segment_ptr 1')
        a('  .amdhsa_system_sgpr_workgroup_id_x 1')
        a('  .amdhsa_float_denorm_mode_32 3')
        a('  .amdhsa_float_denorm_mode_16_64 3')
        a('.end_amdhsa_kernel')
        return a


def generate(path, **opt):
    g = Gen(opt)
    a = g.build()
    probs = check(a.lines)
    open(path, 'w').write(a.text())
    return probs

if __name__ == '__main__':
    ap = argparse.ArgumentParser()
    ap.add_argument('out')
    ap.add_argument('--ts', type=int, default=0)
    ap.add_argument('--wpf', type=int, default=0)
    ap.add_argument('--xpf', type=int, default=0)
    ap.add_argument('--npre', type=int, default=0)
    ap.add_argument('--pad', type=int, default=0)
    ap.add_argument('--cpf', type=int, default=0)
    args = ap.parse_args()
    o = vars(args); out = o.pop('out')
    p = generate(out, **o)
    print('hazards:', len(p))
```

```python
import sys, argparse, json
from asmcore import Asm, check

KNAME = 'gather_scatter__graph_attention_gat__graph_kernel'
NB = 250
WS_TABLE = 0
WS_UTAB = 0x400000
WS_STAB = 0x410000
WS_WFLG = 0x440000
WS_WSW = 0x480000
WS_TS = 0x500000
WS_SIZE = 0x600000
RINGW = 12288
R = 3
NPRE = 8
NA = 2
IMG = 4*RINGW
CNT = IMG + 16384
AP = 8*RINGW
XCH = AP
SDST = AP + 40960
GCNT = SDST + 1024
UT = SDST + 2048
MISC = GCNT + 64
LIST = AP + 49152
LDS_SIZE = LIST + 5248
assert LIST % 8192 == 0 and SDST % 1024 == 0 and GCNT % 64 == 0 and LDS_SIZE <= 163840
M_NONCE = MISC
M_SLOW = MISC + 8
M_SCNT = MISC + 12
S_X, S_W, S_WS, S_SRC, S_DST, S_DBG, S_OUT = 4, 8, 12, 16, 20, 32, 36
S_WB = 3
S_FIRST = 24
S_RET = 26
S_WAVE, S_SET, S_W3, S_HF = 40, 41, 42, 43
S_T = 44
S_SLICE, S_NPK = 48, 49
S_XSO = 52
S_RING, S_SLOT, S_J, S_DELTA = 56, 57, 58, 59
S_N = 60
S_G, S_LEFT, S_JC, S_AOFF = 60, 61, 62, 63
S_T0, S_T1, S_T2 = 65, 66, 67
S_EX, S_EX2 = 68, 70
S_KA = 72
S_TS = 90
S_C0, S_C1, S_C2, S_C3 = 92, 93, 94, 95
S_POLL, S_M = 96, 97
S_U0, S_U1, S_U2, S_U3 = 98, 99, 100, 101
V_TID, V_LANE = 0, 1
V_TR = 2
V_AW, V_LB, V_LST = 6, 7, 8
V_SWE, V_SWO = 9, 10
V_TAB = 11
V_IDX = 12
V_AF = 16
V_MF = 20
V_A, V_B, V_C, V_D, V_E, V_F, V_G = 24, 25, 26, 27, 28, 29, 30
V_ONE = 24
V_TSR = 31
V_ACC = 32
V_DEN = 48
V_PK = 52
V_TW, V_WE = 100, 23
V_UN = 104
V_W = 112
V_BF = 240

POLL_MAX = 200000
EMPTY = 0xfffff000


class Gen:
    def __init__(self, opt):
        self.o = opt
        self.a = Asm()
        self.tsn = {}
        self.deferred = []

    def ts(self, name):
        if not self.o.get('ts'): return
        tsf = self.o.get('tsf')
        if tsf and name != 'start' and name not in tsf.split(','): return
        a = self.a
        if name not in self.tsn: self.tsn[name] = len(self.tsn)
        idx = self.tsn[name]
        assert idx < 28
        a(f's_memrealtime s[{S_TS}:{S_TS+1}]')
        a('s_waitcnt lgkmcnt(0)')
        a(f'v_writelane_b32 v{V_TSR}, s{S_TS}, {idx}')

    def srd(self, r, base, size, shift=0):
        a = self.a
        if shift:
            a(f's_sub_u32 s{r}, s{base}, {shift}')
            a(f's_subb_u32 s{r+1}, s{base+1}, 0')
            a(f's_and_b32 s{r+1}, s{r+1}, 0xffff')
        else:
            a(f's_mov_b32 s{r}, s{base}')
            a(f's_and_b32 s{r+1}, s{base+1}, 0xffff')
        a(f's_mov_b32 s{r+2}, {size}')
        a(f's_mov_b32 s{r+3}, 0x20000')

    def tagcheck(self, base, acc, first, t0, t1):
        a = self.a
        if first:
            a(f'v_xor_b32 v{acc}, s{S_T}, v{base}')
            a(f'v_xor_b32 v{t0}, s{S_T+1}, v{base+1}')
            a(f'v_xor_b32 v{t1}, s{S_T+2}, v{base+2}')
            a(f'v_or3_b32 v{acc}, v{acc}, v{t0}, v{t1}')
            a(f'v_xor_b32 v{t0}, s{S_T+3}, v{base+3}')
            a(f'v_or_b32 v{acc}, v{acc}, v{t0}')
        else:
            a(f'v_xor_b32 v{t0}, s{S_T}, v{base}')
            a(f'v_xor_b32 v{t1}, s{S_T+1}, v{base+1}')
            a(f'v_or3_b32 v{acc}, v{acc}, v{t0}, v{t1}')
            a(f'v_xor_b32 v{t0}, s{S_T+2}, v{base+2}')
            a(f'v_xor_b32 v{t1}, s{S_T+3}, v{base+3}')
            a(f'v_or3_b32 v{acc}, v{acc}, v{t0}, v{t1}')

    def poll_check(self, acc, reload_fn, name):
        a = self.a
        rt = a.label(name + '_retry'); ok = a.label(name + '_ok')
        a(f'v_and_b32 v{acc}, 0xfff, v{acc}')
        a(f'v_cmp_ne_u32 vcc, 0, v{acc}')
        a(f's_cbranch_vccnz {rt}')
        a(f'{ok}:')
        def blk():
            a(f'{rt}:')
            a(f's_add_u32 s{S_POLL}, s{S_POLL}, 1')
            a(f's_cmp_gt_u32 s{S_POLL}, {POLL_MAX}')
            a(f's_cbranch_scc1 {ok}')
            a('s_sleep 2')
            reload_fn()
            a(f'v_and_b32 v{acc}, 0xfff, v{acc}')
            a(f'v_cmp_ne_u32 vcc, 0, v{acc}')
            a(f's_cbranch_vccnz {rt}')
            a(f's_branch {ok}')
        self.deferred.append(blk)

    def fill(self, base, nbytes, vq, vaddr):
        a = self.a
        n = nbytes // 16
        a(f'v_lshlrev_b32 v{vaddr}, 4, v{V_TID}')
        a(f'v_add_u32 v{vaddr}, {base}, v{vaddr}')
        r = 0
        while n > 0:
            if n >= 512:
                a(f'ds_write_b128 v{vaddr}, v[{vq}:{vq+3}] offset:{r*8192}')
            else:
                a(f'v_cmpx_gt_u32 vcc, {n}, v{V_TID}')
                a(f'ds_write_b128 v{vaddr}, v[{vq}:{vq+3}] offset:{r*8192}')
                a('s_mov_b64 exec, -1')
            n -= 512; r += 1

    def prologue(self):
        a = self.a; o = self.o
        a(f's_cmp_ge_u32 s2, {NB}')
        a('s_cbranch_scc1 L_end')
        a(f's_load_dwordx16 s[{S_KA}:{S_KA+15}], s[0:1], 0')
        a(f's_load_dwordx2 s[{S_KA+16}:{S_KA+17}], s[0:1], 64')
        if o.get('cpf', 1):
            a(f's_getpc_b64 s[{S_U0}:{S_U0+1}]')
            a('L_pc:')
            a('v_lshlrev_b32 v254, 6, v0')
            a('v_min_u32 v254, L_hot_end-L_pc, v254')
            a(f'global_load_dword v255, v254, s[{S_U0}:{S_U0+1}]')
        a('s_memrealtime s[50:51]')
        a(f'v_lshrrev_b32 v{V_A}, 6, v0')
        a(f'v_and_b32 v{V_LANE}, 63, v0')
        if o.get('ts'): a(f'v_mov_b32 v{V_TSR}, 0')
        a(f'v_readfirstlane_b32 s{S_WAVE}, v{V_A}')
        for i in range(4): a(f'v_mov_b32 v{104+i}, {EMPTY}')
        a(f'v_lshlrev_b32 v103, 4, v{V_TID}')
        a(f'v_add_u32 v103, {IMG}, v103')
        a('ds_write_b128 v103, v[104:107]')
        a('ds_write_b128 v103, v[104:107] offset:8192')
        for i in range(4): a(f'v_mov_b32 v{108+i}, 0')
        a(f'v_cmpx_gt_u32 vcc, 64, v{V_TID}')
        a('ds_write_b128 v103, v[108:111] offset:16384')
        a('s_mov_b64 exec, -1')
        a(f's_lshr_b32 s{S_SET}, s{S_WAVE}, 2')
        a(f's_and_b32 s{S_W3}, s{S_WAVE}, 3')
        a(f's_mov_b32 s{S_POLL}, 0')
        a(f'v_and_b32 v{V_C}, 15, v{V_LANE}')
        a(f'v_lshrrev_b32 v{V_E}, 4, v{V_LANE}')
        a(f'v_lshlrev_b32 v{V_E}, 4, v{V_E}')
        a(f'v_lshl_add_u32 v{V_F}, v{V_C}, 9, v{V_E}')
        a(f'v_and_b32 v{V_C}, 1, v{V_LANE}')
        a(f'v_cmp_eq_u32 vcc, 1, v{V_C}')
        a(f'v_lshlrev_b32 v{V_A}, 3, v{V_TID}')
        a(f'v_lshlrev_b32 v{V_B}, 2, v{V_TID}')
        a('s_waitcnt lgkmcnt(0)')
        self.ts('start')

    def issue_loads(self):
        a = self.a
        s1 = a.label('iss1'); dn = a.label('issdone')
        k = S_KA
        a(f's_cmp_eq_u32 s{S_SET}, 1')
        a(f's_cbranch_scc1 {s1}')
        self.srd(S_DST, k+4, 640000)
        self.srd(S_SRC, k+2, 640000)
        a(f's_mul_i32 s{S_T0}, s2, 2560')
        a(f'buffer_load_dwordx2 v[32:33], v{V_A}, s[{S_DST}:{S_DST+3}], s{S_T0} offen')
        a(f'buffer_load_dwordx2 v[34:35], v{V_A}, s[{S_SRC}:{S_SRC+3}], s{S_T0} offen')
        a(f's_cmp_lt_u32 s{S_WAVE}, 2')
        a('s_cselect_b64 exec, -1, 0')
        a(f'buffer_load_dword v36, v{V_B}, s[{S_DST}:{S_DST+3}], s{S_T0} offen offset:2048')
        a(f'buffer_load_dword v37, v{V_B}, s[{S_SRC}:{S_SRC+3}], s{S_T0} offen offset:2048')
        self.srd(S_DBG, k+14, 256)
        a(f's_or_b32 s{S_T0}, s2, s{S_WAVE}')
        a('s_bitset1_b32 s50, 31')
        a('s_bitset1_b32 s51, 31')
        a('v_mov_b32 v38, s50')
        a('v_mov_b32 v39, s51')
        a(f's_cmp_eq_u32 s{S_T0}, 0')
        a('s_cselect_b32 exec_lo, 1, 0')
        a('s_mov_b32 exec_hi, 0')
        a(f'buffer_store_dwordx2 v[38:39], off, s[{S_DBG}:{S_DBG+3}], 0 sc1')
        a('s_mov_b64 exec, -1')
        a(f's_branch {dn}')
        a(f'{s1}:')
        a(f's_sub_u32 s{S_U0}, s{S_WAVE}, 4')
        self.srd(S_W, k+6, 524288)
        t3 = a.label('not3')
        a(f's_sub_u32 s{S_U1}, s2, 64')
        a(f's_cmp_ge_u32 s{S_U1}, 128')
        a(f's_cbranch_scc1 {t3}')
        a(f's_lshr_b32 s{S_T0}, s{S_U1}, 6')
        a(f's_lshl_b32 s{S_T0}, s{S_T0}, 16')
        a(f's_and_b32 s{S_T1}, s{S_U1}, 15')
        a(f's_lshl_b32 s{S_T1}, s{S_T1}, 12')
        a(f's_add_u32 s{S_T0}, s{S_T0}, s{S_T1}')
        a(f's_bfe_u32 s{S_T1}, s{S_U1}, 0x20004')
        a(f's_lshl_b32 s{S_T1}, s{S_T1}, 7')
        a(f's_add_u32 s{S_T0}, s{S_T0}, s{S_T1}')
        a(f's_lshl_b32 s{S_T1}, s{S_U0}, 5')
        a(f's_add_u32 s{S_T0}, s{S_T0}, s{S_T1}')
        a(f'v_and_b32 v{V_C}, 15, v{V_LANE}')
        a(f'v_lshlrev_b32 v{V_C}, 1, v{V_C}')
        a(f'v_lshl_add_u32 v{V_C}, v{V_E}, 6, v{V_C}')
        for i in range(8):
            a(f's_add_u32 s{S_T1}, s{S_T0}, {(i & 3)*131072}')
            a(f'buffer_load_ushort v{(96 if i % 2 == 0 else 92) + (i >> 1)}, v{V_C}, s[{S_W}:{S_W+3}], s{S_T1} offen offset:{(i >> 2)*512}')
        a(f's_branch {dn}')
        a(f'{t3}:')
        a(f's_cmp_lg_u32 s{S_U0}, 3')
        a(f's_cbranch_scc1 {dn}')
        a('s_cmp_ge_u32 s2, 64')
        a(f's_cbranch_scc1 {dn}')
        a(f's_lshl_b32 s{S_T0}, s2, 13')
        for t in range(8):
            a(f'buffer_load_dwordx4 v[{32+4*t}:{35+4*t}], v{V_F}, s[{S_W}:{S_W+3}], s{S_T0} offen offset:{64*t}')
        a(f'v_mov_b32 v{V_C}, s{S_KA+8}')
        a(f'v_mov_b32 v{V_D}, s{S_KA+10}')
        a(f'v_cndmask_b32 v{V_C}, v{V_C}, v{V_D}, vcc')
        a(f'v_mov_b32 v{V_D}, s{S_KA+9}')
        a(f'v_mov_b32 v{V_G}, s{S_KA+11}')
        a(f'v_cndmask_b32 v{V_D}, v{V_D}, v{V_G}, vcc')
        a(f's_lshr_b32 s{S_T1}, s2, 4')
        a(f's_lshl_b32 s{S_T1}, s{S_T1}, 9')
        a(f'v_add_u32 v{V_E}, s{S_T1}, v{V_E}')
        a(f'v_add_co_u32 v{V_C}, vcc, v{V_C}, v{V_E}')
        a('s_nop 1')
        a(f'v_addc_co_u32 v{V_D}, vcc, 0, v{V_D}, vcc')
        for t in range(8):
            a(f'global_load_dwordx4 v[{64+4*t}:{67+4*t}], v[{V_C}:{V_C+1}], off offset:{64*t}')
        a(f'{dn}:')

    def late_consts(self):
        a = self.a; o = self.o
        k = S_KA
        self.srd(S_WS, k+16, WS_SIZE)
        self.srd(S_X, k+0, 5120000+4096, shift=4096)
        self.srd(S_W, k+6, 524288)
        self.srd(S_DST, k+4, 640000)
        self.srd(S_SRC, k+2, 640000)
        self.srd(S_OUT, k+12, 5120000)
        a(f'v_and_b32 v{V_A}, 15, v{V_LANE}')
        a(f'v_lshrrev_b32 v{V_B}, 4, v{V_LANE}')
        a(f's_lshr_b32 s{S_HF}, s{S_W3}, 1')
        a(f's_mul_i32 s{S_RING}, s{S_WAVE}, {RINGW}')
        a(f's_and_b32 s{S_T0}, s{S_W3}, 1')
        a(f's_lshl_b32 s{S_T1}, s{S_SET}, 1')
        a(f's_add_u32 s{S_SLICE}, s{S_T0}, s{S_T1}')
        a(f'v_lshrrev_b32 v{V_C}, 3, v{V_A}')
        a(f'v_and_b32 v{V_D}, 1, v{V_B}')
        a(f'v_lshl_or_b32 v{V_C}, v{V_D}, 1, v{V_C}')
        a(f'v_lshrrev_b32 v{V_D}, 2, v{V_A}')
        a(f'v_lshlrev_b32 v{V_D}, 7, v{V_D}')
        a(f'v_lshl_add_u32 v{V_D}, v{V_B}, 10, v{V_D}')
        a(f'v_bfe_u32 v{V_E}, v{V_A}, 1, 1')
        a(f'v_lshl_add_u32 v{V_D}, v{V_E}, 4, v{V_D}')
        a(f'v_and_b32 v{V_E}, 1, v{V_A}')
        a(f'v_lshl_add_u32 v{V_D}, v{V_E}, 3, v{V_D}')
        a(f'v_add_u32 v{V_D}, s{S_RING}, v{V_D}')
        for j in range(4):
            a(f'v_xor_b32 v{V_E}, {j}, v{V_C}')
            a(f'v_lshl_add_u32 v{V_TR+j}, v{V_E}, 5, v{V_D}')
        a(f'v_lshlrev_b32 v{V_WE}, 4, v{V_LANE}')
        a(f'v_add_u32 v{V_AW}, {AP}, v{V_WE}')
        a(f'v_mov_b32 v{V_LB}, {LIST}')
        a(f'v_lshrrev_b32 v{V_C}, 3, v{V_LANE}')
        a(f'v_lshl_add_u32 v{V_LST}, v{V_C}, 4, v{V_LB}')
        a(f'v_and_b32 v{V_D}, 2, v{V_C}')
        a(f'v_and_b32 v{V_E}, 7, v{V_LANE}')
        a(f'v_xor_b32 v{V_E}, v{V_E}, v{V_D}')
        a(f'v_lshlrev_b32 v{V_SWE}, 4, v{V_E}')
        a(f'v_xor_b32 v{V_SWO}, 64, v{V_SWE}')
        a(f's_mov_b32 s{S_M}, 0xfffffe00')
        a(f's_lshl_b32 s{S_T0}, s{S_SLICE}, 7')
        for c in range(4):
            a(f's_add_u32 s{S_XSO+c}, s{S_T0}, {4096 - c*1024}')
        a(f's_mov_b32 s{S_C3}, {(-(R-1)*4096) & 0xffffffff}')
        a(f's_lshl_b32 s{S_WB}, s{S_WAVE}, 16')
        a(f's_add_u32 s{S_WB}, s{S_WB}, {WS_WSW}')
        self.lds_reset()

    def lds_reset(self):
        a = self.a
        for i in range(4): a(f'v_mov_b32 v{104+i}, 0')
        self.fill(AP, 40960, 104, 103)
        a(f'v_lshlrev_b32 v103, 4, v{V_TID}')
        a(f'v_add_u32 v103, {GCNT}, v103')
        a(f'v_cmpx_gt_u32 vcc, 4, v{V_TID}')
        a(f'ds_write_b128 v103, v[104:107]')
        a('s_mov_b64 exec, -1')
        a(f'v_mov_b32 v103, {M_SLOW}')
        a(f'ds_write_b64 v103, v[104:105]')
        for i in range(4): a(f'v_mov_b32 v{104+i}, 0x40000000')
        self.fill(LIST, 5248, 104, 103)

    def unit_consts(self, slot, glo, ghi, rb, mask):
        a = self.a
        U = V_UN + 4*slot
        a(f'v_mov_b32 v{V_C}, s{ghi}')
        a(f'v_mov_b32 v{V_D}, s{glo}')
        a(f'v_cndmask_b32 v{V_C}, v{V_C}, v{V_D}, s[{S_EX2}:{S_EX2+1}]')
        a(f'v_and_b32 v{U}, s{mask}, v{V_LANE}')
        a(f'v_add_u32 v{U}, s{rb}, v{U}')
        a(f'v_lshlrev_b32 v{U+1}, 2, v{V_C}')
        a(f'v_add_u32 v{U+1}, {GCNT}, v{U+1}')
        a(f'v_lshl_add_u32 v{V_E}, v{V_C}, 9, v{V_LB}')
        a(f'v_lshl_add_u32 v{U+2}, v{U}, 2, v{V_E}')
        a(f'v_lshlrev_b32 v{V_E}, 12, v{V_C}')
        a(f'v_lshrrev_b32 v{V_D}, 5, v{U}')
        a(f'v_lshl_add_u32 v{V_E}, v{V_D}, 10, v{V_E}')
        a(f'v_and_b32 v{V_D}, 3, v{U}')
        a(f'v_lshl_add_u32 v{V_E}, v{V_D}, 8, v{V_E}')
        a(f'v_bfe_u32 v{V_D}, v{U}, 2, 3')
        a(f'v_lshl_add_u32 v{V_E}, v{V_D}, 1, v{V_E}')
        a(f'v_add_u32 v{U+3}, {AP}, v{V_E}')

    def unit_setup(self):
        a = self.a
        a(f'v_cmp_gt_u32 vcc, 32, v{V_LANE}')
        a(f's_mov_b64 s[{S_EX2}:{S_EX2+1}], vcc')
        a(f's_mov_b32 s{S_U2}, 0')
        a(f's_mov_b32 s{S_U3}, 63')
        self.unit_consts(0, S_WAVE, S_WAVE, S_U2, S_U3)
        a(f's_add_u32 s{S_T0}, s{S_WAVE}, 8')
        a(f's_lshl_b32 s{S_T1}, s{S_WAVE}, 1')
        a(f's_sub_u32 s{S_T1}, s{S_T1}, 4')
        a(f's_add_u32 s{S_T2}, s{S_T1}, 1')
        a(f's_cmp_lt_u32 s{S_WAVE}, 2')
        a(f's_cselect_b32 s{S_C0}, s{S_T0}, s{S_T1}')
        a(f's_cselect_b32 s{S_C1}, s{S_T0}, s{S_T2}')
        a(f's_cselect_b32 s{S_U2}, 0, 64')
        a(f's_cselect_b32 s{S_U3}, 63, 31')
        a(f's_cmp_eq_u32 s{S_WAVE}, 7')
        a(f's_cselect_b32 s{S_C0}, 0, s{S_C0}')
        a(f's_cselect_b32 s{S_C1}, 0, s{S_C1}')
        a(f's_cselect_b32 s{S_U2}, 0x200, s{S_U2}')
        self.unit_consts(1, S_C0, S_C1, S_U2, S_U3)

    def read_tags(self):
        a = self.a
        a(f'v_mov_b32 v{V_A}, {M_NONCE}')
        a(f'ds_read_b64 v[{V_C}:{V_C+1}], v{V_A}')
        a('s_waitcnt lgkmcnt(0)')
        a(f'v_readfirstlane_b32 s{S_T0}, v{V_C}')
        a(f'v_readfirstlane_b32 s{S_T1}, v{V_C+1}')
        a('s_nop 1')
        a(f's_and_b32 s{S_T}, s{S_T0}, 0xfff')
        a(f's_bfe_u32 s{S_T+1}, s{S_T0}, 0xc000c')
        a(f's_bfe_u32 s{S_T+2}, s{S_T0}, 0x70018')
        a(f's_lshl_b32 s{S_T0}, s{S_T1}, 7')
        a(f's_or_b32 s{S_T+2}, s{S_T+2}, s{S_T0}')
        a(f's_bfe_u32 s{S_T+3}, s{S_T1}, 0xc0005')
        for k, (mul, add) in enumerate(((5, 0x123), (9, 0x456), (13, 0x789))):
            a(f's_mul_i32 s{S_T0}, s{S_T}, {mul}')
            a(f's_add_u32 s{S_T+1+k}, s{S_T+1+k}, s{S_T0}')
            a(f's_add_u32 s{S_T+1+k}, s{S_T+1+k}, {add}')
            a(f's_and_b32 s{S_T+1+k}, s{S_T+1+k}, 0xfff')

    def xrows(self):
        a = self.a
        sk = a.label('nox')
        a(f's_cmp_eq_u32 s{S_WAVE}, 7')
        a(f's_cbranch_scc1 {sk}')
        self.srd(S_X, S_KA+0, 5120000+4096, shift=4096)
        a(f's_mul_i32 s{S_T0}, s2, 40')
        a(f's_and_b32 s{S_T1}, s{S_WAVE}, 3')
        a(f's_lshl_b32 s{S_T1}, s{S_T1}, 4')
        a(f's_add_u32 s{S_T0}, s{S_T0}, s{S_T1}')
        a(f's_lshl_b32 s{S_T0}, s{S_T0}, 9')
        a(f's_add_u32 s{S_T0}, s{S_T0}, 4096')
        a(f'v_and_b32 v{V_A}, 15, v{V_LANE}')
        a(f'v_lshlrev_b32 v{V_A}, 9, v{V_A}')
        a(f'v_lshrrev_b32 v{V_B}, 4, v{V_LANE}')
        a(f'v_lshl_add_u32 v{V_A}, v{V_B}, 4, v{V_A}')
        for t in range(8):
            a(f'buffer_load_dwordx4 v[{40+4*t}:{43+4*t}], v{V_A}, s[{S_X}:{S_X+3}], s{S_T0} offen offset:{64*t}')
        a(f'{sk}:')

    def t1_set0(self):
        a = self.a; o = self.o
        a('s_waitcnt vmcnt(1)')
        sk = a.label('w0only')
        a(f's_cmp_eq_u32 s{S_WAVE}, 0')
        a(f's_cbranch_scc1 {sk}')
        a('s_waitcnt vmcnt(0)')
        a(f'{sk}:')
        self.ts('ld1')
        a(f's_mov_b32 s{S_C0}, -40')
        a(f's_mov_b32 s{S_C1}, {CNT}')
        a(f's_mov_b32 s{S_C2}, {IMG}')
        a(f'v_mov_b32 v{V_G}, 1')
        def rnd(vd, vs, t):
            a(f'v_mul_u32_u24 v{t}, 0xcccd, v{vd}')
            a(f'v_lshrrev_b32 v{t}, 21, v{t}')
            a(f'v_mad_i32_i24 v{t+1}, v{t}, s{S_C0}, v{vd}')
            a(f'v_lshlrev_b32 v{t+2}, 18, v{vs}')
            a(f'v_lshl_or_b32 v{t+1}, v{t+1}, 12, v{t+2}')
            a(f'v_lshl_add_u32 v{t+3}, v{t}, 2, s{S_C1}')
            a(f'v_lshl_add_u32 v{t+2}, v{t}, 6, s{S_C2}')
            a(f'ds_add_rtn_u32 v{t+3}, v{t+3}, v{V_G}')
        def wr(t):
            a(f'v_cmpx_gt_u32 vcc, 16, v{t+3}')
            a(f'v_lshl_add_u32 v{t+2}, v{t+3}, 2, v{t+2}')
            a(f'ds_write_b32 v{t+2}, v{t+1}')
            a('s_mov_b64 exec, -1')
        rnd(32, 34, 40); rnd(33, 35, 44)
        a(f's_cmp_lt_u32 s{S_WAVE}, 2')
        a(f's_cselect_b64 s[{S_EX2}:{S_EX2+1}], -1, 0')
        a(f's_mov_b64 exec, s[{S_EX2}:{S_EX2+1}]')
        rnd(36, 37, 48)
        a('s_mov_b64 exec, -1')
        a('s_waitcnt lgkmcnt(0)')
        wr(40); wr(44)
        a(f's_mov_b64 exec, s[{S_EX2}:{S_EX2+1}]')
        wr(48)
        self.ts('t1done')
        sk = a.label('nop1'); rt = a.label('nretry'); ok = a.label('nok')
        a(f's_cmp_lg_u32 s{S_WAVE}, 0')
        a(f's_cbranch_scc1 {sk}')
        def chk():
            a('s_waitcnt vmcnt(0)')
            a(f'v_readfirstlane_b32 s{S_T0}, v38')
            a(f'v_readfirstlane_b32 s{S_T1}, v39')
            a('s_nop 1')
            a(f's_and_b32 s{S_T0}, s{S_T0}, s{S_T1}')
            a(f's_bitcmp1_b32 s{S_T0}, 31')
        chk()
        a(f's_cbranch_scc0 {rt}')
        a(f'{ok}:')
        def blk():
            a(f'{rt}:')
            a(f's_add_u32 s{S_POLL}, s{S_POLL}, 1')
            a(f's_cmp_gt_u32 s{S_POLL}, {POLL_MAX}')
            a(f's_cbranch_scc1 {ok}')
            a(f'buffer_load_dwordx2 v[38:39], off, s[{S_DBG}:{S_DBG+3}], 0 sc1')
            chk()
            a(f's_cbranch_scc0 {rt}')
            a(f's_branch {ok}')
        self.deferred.append(blk)
        self.ts('nonce')
        if o.get('ts'): a(f'v_writelane_b32 v{V_TSR}, s{S_POLL}, 30')
        a(f'v_mov_b32 v{V_A}, {M_NONCE}')
        a(f'ds_write_b64 v{V_A}, v[38:39]')
        a(f'{sk}:')
        a('s_waitcnt lgkmcnt(0)')
        a('s_barrier')
        self.ts('B1')
        self.read_tags()
        self.unit_setup()
        a('s_barrier')

    def t1_set1(self):
        a = self.a; o = self.o
        sk = a.label('nou2')
        a(f's_cmp_lg_u32 s{S_U0}, 3')
        a(f's_cbranch_scc1 {sk}')
        a('s_cmp_ge_u32 s2, 64')
        a(f's_cbranch_scc1 {sk}')
        a('s_waitcnt vmcnt(0)')
        self.ts('ld1')
        for t in range(8):
            c = '0' if t == 0 else 'v[96:99]'
            a(f'v_mfma_f32_16x16x32_bf16 v[96:99], v[{32+4*t}:{35+4*t}], v[{64+4*t}:{67+4*t}], {c}')
        a('s_nop 7')
        for r in range(96, 100): a(f'v_mul_f32 v{r}, 0x3fb8aa3b, v{r}')
        for r in range(96, 100): a(f'v_add_u32 v{r}, 0x800, v{r}')
        a(f'{sk}:')
        sk = a.label('not3b')
        a(f's_sub_u32 s{S_U1}, s2, 64')
        a(f's_cmp_ge_u32 s{S_U1}, 128')
        a(f's_cbranch_scc1 {sk}')
        a(f's_lshl_b32 s{S_T0}, s{S_U1}, 12')
        a(f's_lshl_b32 s{S_T1}, s{S_U0}, 10')
        a(f's_add_u32 s{S_T0}, s{S_T0}, s{S_T1}')
        a(f's_add_u32 s{S_T0}, s{S_T0}, {WS_WSW}')
        a('s_waitcnt vmcnt(0)')
        for r in range(4): a(f'v_lshl_or_b32 v{96+r}, v{92+r}, 16, v{96+r}')
        a(f'buffer_store_dwordx4 v[96:99], v{V_WE}, s[{S_WS}:{S_WS+3}], s{S_T0} offen sc1')
        a('s_waitcnt vmcnt(0)')
        a(f'{sk}:')
        self.ts('t1done')
        a('s_waitcnt lgkmcnt(0)')
        a('s_barrier')
        self.ts('B1')
        self.read_tags()
        a(f's_mov_b32 s{S_C0}, 0xfffff000')
        sk = a.label('nou3')
        a(f's_cmp_lg_u32 s{S_U0}, 3')
        a(f's_cbranch_scc1 {sk}')
        a('s_cmp_ge_u32 s2, 64')
        a(f's_cbranch_scc1 {sk}')
        for k in range(4): a(f'v_and_b32 v{96+k}, s{S_C0}, v{96+k}')
        for k in range(4): a(f'v_or_b32 v{96+k}, s{S_T+k}, v{96+k}')
        a(f'v_and_b32 v{V_A}, 15, v{V_LANE}')
        a(f'v_lshrrev_b32 v{V_B}, 4, v{V_LANE}')
        a(f'v_lshl_add_u32 v{V_B}, v{V_A}, 2, v{V_B}')
        a(f'v_lshlrev_b32 v{V_B}, 4, v{V_B}')
        a(f's_lshl_b32 s{S_T0}, s2, 7')
        a(f's_add_u32 s{S_T0}, s{S_T0}, {WS_UTAB}')
        a(f'v_cmpx_gt_u32 vcc, 2, v{V_A}')
        a(f'buffer_store_dwordx4 v[96:99], v{V_B}, s[{S_WS}:{S_WS+3}], s{S_T0} offen sc1')
        a('s_mov_b64 exec, -1')
        self.ts('ust')
        a(f'{sk}:')
        a(f'v_subrev_u32 v{V_F}, 256, v{V_TID}')
        a(f'v_lshlrev_b32 v{V_A}, 4, v{V_F}')
        a(f'v_add_u32 v{V_A}, {IMG}, v{V_A}')
        a(f'v_lshrrev_b32 v{V_B}, 2, v{V_F}')
        a(f'v_lshlrev_b32 v{V_C}, 2, v{V_B}')
        a(f'v_add_u32 v{V_C}, {CNT}, v{V_C}')
        for i in range(4):
            a(f'ds_read_b128 v[{76+4*i}:{79+4*i}], v{V_A} offset:{4096*i}')
            a(f'ds_read_b32 v{92+i}, v{V_C} offset:{256*i}')
        a(f'v_mul_u32_u24 v{V_B}, 16000, v{V_B}')
        a(f'v_and_b32 v{V_D}, 3, v{V_F}')
        a(f'v_lshl_add_u32 v{V_B}, v{V_D}, 4, v{V_B}')
        a(f'v_cmp_eq_u32 s[{S_EX2}:{S_EX2+1}], 3, v{V_D}')
        a(f'v_mov_b32 v{V_E}, 0xffffe000')
        a(f's_lshl_b32 s{S_C1}, s2, 6')
        a('s_waitcnt lgkmcnt(0)')
        for i in range(4):
            a(f'v_cmp_lt_u32 vcc, 16, v{92+i}')
            a(f's_and_b64 vcc, vcc, s[{S_EX2}:{S_EX2+1}]')
            for k in range(3): a(f'v_or_b32 v{76+4*i+k}, s{S_T+k}, v{76+4*i+k}')
            a(f'v_cndmask_b32 v{79+4*i}, v{79+4*i}, v{V_E}, vcc')
            a(f'v_or_b32 v{79+4*i}, s{S_T+3}, v{79+4*i}')
            if i == 3: a(f'v_cmpx_gt_u32 vcc, 232, v{V_F}')
            a(f'buffer_store_dwordx4 v[{76+4*i}:{79+4*i}], v{V_B}, s[{S_WS}:{S_WS+3}], s{S_C1} offen sc1')
            if i == 3: a('s_mov_b64 exec, -1')
            else: a(f's_add_u32 s{S_C1}, s{S_C1}, 1024000')
        self.ts('p3')
        self.unit_setup()
        a('s_waitcnt vmcnt(0)')
        self.ts('tack')
        a('s_barrier')

    def middle(self):
        a = self.a; o = self.o
        E = 72
        a(f'v_and_b32 v{V_A}, 255, v{V_TID}')
        a(f'v_lshrrev_b32 v{V_B}, 8, v{V_TID}')
        a(f'v_lshlrev_b32 v{V_E}, 6, v{V_A}')
        a(f'v_lshl_add_u32 v{V_E}, v{V_B}, 4, v{V_E}')
        a(f's_mul_i32 s{S_C2}, s2, 16000')
        a(f'v_cmp_gt_u32 vcc, 250, v{V_A}')
        a(f's_mov_b64 s[{S_EX2}:{S_EX2+1}], vcc')
        for i in range(8): a(f'v_mov_b32 v{E+i}, {EMPTY}')
        a(f'v_lshlrev_b32 v{V_F}, 4, v{V_TID}')
        a(f's_mov_b32 s{S_C0}, {WS_UTAB}')
        for _ in range(o.get('edelay', 0)): a('s_sleep 2')
        self.ts('eld')
        def eload():
            a(f's_mov_b64 exec, s[{S_EX2}:{S_EX2+1}]')
            a(f'buffer_load_dwordx4 v[{E}:{E+3}], v{V_E}, s[{S_WS}:{S_WS+3}], s{S_C2} offen sc1')
            a(f'buffer_load_dwordx4 v[{E+4}:{E+7}], v{V_E}, s[{S_WS}:{S_WS+3}], s{S_C2} offen offset:32 sc1')
        def uload():
            a(f'buffer_load_dwordx4 v[84:87], v{V_F}, s[{S_WS}:{S_WS+3}], s{S_C0} offen sc1')
        eload(); a('s_mov_b64 exec, -1')
        uload()
        a('s_barrier')
        sk = a.label('nox1')
        a(f's_cmp_eq_u32 s{S_SET}, 0')
        a(f's_cbranch_scc1 {sk}')
        self.xrows()
        a(f'{sk}:')
        self.sweep(0, 11)
        w46 = a.label('w46'); w46e = a.label('w46e')
        a(f's_sub_u32 s{S_U0}, s{S_WAVE}, 4')
        a(f's_cmp_le_u32 s{S_U0}, 2')
        a(f's_cbranch_scc1 {w46}')
        a('s_waitcnt vmcnt(1)')
        a(f'{w46e}:')
        def blk():
            a(f'{w46}:')
            a('s_waitcnt vmcnt(9)')
            a(f's_branch {w46e}')
        self.deferred.append(blk)
        self.tagcheck(84, V_A, True, V_B, V_C)
        def ure():
            uload(); a('s_waitcnt vmcnt(0)'); self.tagcheck(84, V_A, True, V_B, V_C)
        self.poll_check(V_A, ure, 'u')
        self.ts('uval')
        a(f's_mov_b32 s{S_C0}, 0xfffff000')
        for i in range(4): a(f'v_and_b32 v{84+i}, s{S_C0}, v{84+i}')
        a(f'v_bfe_u32 v{V_A}, v{V_TID}, 2, 1')
        a(f'v_lshrrev_b32 v{V_B}, 7, v{V_TID}')
        a('v_cvt_pk_bf16_f32 v84, v84, v85')
        a('v_cvt_pk_bf16_f32 v85, v86, v87')
        a(f'v_lshl_add_u32 v{V_A}, v{V_A}, 2, v{V_B}')
        a(f'v_mul_u32_u24 v{V_A}, 528, v{V_A}')
        a(f'v_bfe_u32 v{V_B}, v{V_TID}, 3, 4')
        a(f'v_lshl_add_u32 v{V_A}, v{V_B}, 5, v{V_A}')
        a(f'v_and_b32 v{V_B}, 3, v{V_TID}')
        a(f'v_lshl_add_u32 v{V_A}, v{V_B}, 3, v{V_A}')
        a(f'v_add_u32 v{V_A}, {UT}, v{V_A}')
        a(f'ds_write_b64 v{V_A}, v[84:85]')
        a('s_waitcnt lgkmcnt(0)')
        a('s_barrier')
        self.ts('B2')
        a(f's_mov_b64 exec, s[{S_EX2}:{S_EX2+1}]')
        def echeck():
            self.tagcheck(E, V_A, True, V_B, V_C); self.tagcheck(E+4, V_A, False, V_B, V_C)
        echeck()
        def ere():
            eload(); a('s_waitcnt vmcnt(0)'); echeck()
        self.poll_check(V_A, ere, 'e')
        self.ts('eval')
        a(f's_mov_b32 s{S_C0}, 0xfffc0000')
        a(f's_mov_b32 s{S_C1}, {GCNT}')
        a(f's_movk_i32 s{S_U1}, 0x1e00')
        a(f'v_mov_b32 v{V_G}, 1')
        def sort4(k0):
            for k in range(k0, k0+4):
                a(f'v_cmpx_gt_u32 vcc, s{S_C0}, v{E+k}')
                a(f'v_lshrrev_b32 v{V_A}, 12, v{E+k}')
                a(f'v_and_or_b32 v{V_A}, v{V_A}, 60, s{S_C1}')
                a(f'ds_add_rtn_u32 v{80+(k&3)}, v{V_A}, v{V_G}')
            a(f's_mov_b64 exec, s[{S_EX2}:{S_EX2+1}]')
            a('s_waitcnt lgkmcnt(0)')
            for k in range(k0, k0+4):
                a(f'v_cmpx_gt_u32 vcc, s{S_C0}, v{E+k}')
                a(f'v_lshrrev_b32 v{V_A}, 5, v{E+k}')
                a(f'v_and_or_b32 v{V_A}, v{V_A}, s{S_U1}, v{V_LB}')
                a(f'v_lshl_add_u32 v{V_A}, v{80+(k&3)}, 2, v{V_A}')
                a(f'v_lshrrev_b32 v{V_B}, 9, v{E+k}')
                a(f'ds_write_b32 v{V_A}, v{V_B}')
            a(f's_mov_b64 exec, s[{S_EX2}:{S_EX2+1}]')
        sort4(0)
        rare = a.label('rare'); back = a.label('rareb')
        a(f'v_cmp_gt_u32 vcc, s{S_C0}, v{E+4}')
        a(f's_cbranch_vccnz {rare}')
        a(f'{back}:')
        def blk():
            a(f'{rare}:')
            sort4(4)
            a(f'v_lshrrev_b32 v{V_A}, 12, v{E+7}')
            a(f'v_cmpx_eq_u32 vcc, 0xffffe, v{V_A}')
            a(f'v_mov_b32 v{V_A}, {M_SLOW}')
            a(f'ds_write_b32 v{V_A}, v{V_G}')
            a(f's_mov_b64 exec, s[{S_EX2}:{S_EX2+1}]')
            a(f's_branch {back}')
        self.deferred.append(blk)
        a('s_mov_b64 exec, -1')
        a('s_waitcnt lgkmcnt(0)')
        a('s_barrier')
        self.ts('B3')
        sk = a.label('nos')
        a(f's_sub_u32 s{S_U0}, s{S_WAVE}, 4')
        a(f's_cmp_gt_u32 s{S_U0}, 2')
        a(f's_cbranch_scc1 {sk}')
        a(f's_mov_b32 s{S_C0}, 0xfffff000')
        a(f'v_and_b32 v{V_A}, 7, v{V_LANE}')
        a(f'v_mul_u32_u24 v{V_A}, 528, v{V_A}')
        a(f'v_lshrrev_b32 v{V_B}, 4, v{V_LANE}')
        a(f'v_lshl_add_u32 v{V_A}, v{V_B}, 4, v{V_A}')
        a(f'v_add_u32 v{V_A}, {UT}, v{V_A}')
        UF = 208
        for t in range(8):
            a(f'ds_read_b128 v[{UF+4*t}:{UF+4*t+3}], v{V_A} offset:{64*t}')
        a(f'v_and_b32 v{V_A}, 15, v{V_LANE}')
        a(f's_lshl_b32 s{S_T0}, s{S_U0}, 4')
        a(f'v_add_u32 v{V_A}, s{S_T0}, v{V_A}')
        a(f'v_cmp_gt_u32 s[{S_EX}:{S_EX+1}], 40, v{V_A}')
        a(f'v_lshlrev_b32 v{V_C}, 4, v{V_A}')
        a(f's_mul_i32 s{S_T1}, s2, 640')
        a(f's_add_u32 s{S_T1}, s{S_T1}, {WS_STAB}')
        a(f'v_add_u32 v{V_D}, {SDST}, v{V_C}')
        a('s_waitcnt vmcnt(1) lgkmcnt(0)')
        self.ts('sfr')
        for t in range(8):
            c = '0' if t == 0 else 'v[88:91]'
            a(f'v_mfma_f32_16x16x32_bf16 v[88:91], v[{UF+4*t}:{UF+4*t+3}], v[{40+4*t}:{43+4*t}], {c}')
        a(f'v_cmp_eq_u32 vcc, 0, v{V_B}')
        a(f's_and_b64 s[{S_T0+1}:{S_T0+2}], vcc, s[{S_EX}:{S_EX+1}]')
        a(f'v_cmp_eq_u32 vcc, 1, v{V_B}')
        a(f's_and_b64 vcc, vcc, s[{S_EX}:{S_EX+1}]')
        a('s_nop 3')
        for k in range(4): a(f'v_add_u32 v{92+k}, 0x800, v{88+k}')
        for k in range(4): a(f'v_and_b32 v{92+k}, s{S_C0}, v{92+k}')
        for k in range(4): a(f'v_or_b32 v{92+k}, s{S_T+k}, v{92+k}')
        a('s_mov_b64 exec, vcc')
        a(f'ds_write_b128 v{V_D}, v[88:91]')
        a(f's_mov_b64 exec, s[{S_T0+1}:{S_T0+2}]')
        a(f's_mul_i32 s{S_T1}, s2, 640')
        a(f's_add_u32 s{S_T1}, s{S_T1}, {WS_STAB}')
        a(f'buffer_store_dwordx4 v[92:95], v{V_C}, s[{S_WS}:{S_WS+3}], s{S_T1} offen sc1')
        a('s_mov_b64 exec, -1')
        self.ts('sst')
        a(f'{sk}:')
        self.steptab_read()
        a('s_waitcnt lgkmcnt(0)')
        self.steptab()
        self.xprologue()
        self.ts('xp')
        a('s_waitcnt lgkmcnt(0)')
        a('s_barrier')
        self.ts('B3u')
        for t in range(NA): self.wload(t)
        for u in range(2):
            U = V_UN + 4*u
            a(f'ds_read_b32 v{34+u}, v{U+1}')
            a(f'ds_read_b32 v{32+u}, v{U+2}')
        a(f's_mov_b32 s{S_C0}, {WS_STAB}')
        a(f's_movk_i32 s{S_U1}, 0x3f0')
        a(f'v_mov_b32 v{V_F}, {SDST}')
        a('s_waitcnt lgkmcnt(0)')
        self.unit_loads(0); self.unit_loads(1)
        self.ts('sld')
        a('s_waitcnt vmcnt(0) lgkmcnt(0)')
        def scheck():
            a(f'v_mov_b32 v{V_F}, 0')
            for u in range(2):
                a(f'v_cmpx_gt_u32 vcc, v{34+u}, v{V_UN+4*u}')
                self.tagcheck(40+4*u, V_F, False, V_B, V_C)
                a('s_mov_b64 exec, -1')
        scheck()
        def sre():
            a(f's_mov_b32 s{S_C0}, {WS_STAB}')
            for u in range(2):
                a(f'v_cmpx_gt_u32 vcc, v{34+u}, v{V_UN+4*u}')
                a(f'buffer_load_dwordx4 v[{40+4*u}:{43+4*u}], v{36+u}, s[{S_WS}:{S_WS+3}], s{S_C0} offen sc1')
                a('s_mov_b64 exec, -1')
            a('s_waitcnt vmcnt(0)')
            scheck()
        self.poll_check(V_F, sre, 's')
        self.ts('sval')
        a(f's_mov_b32 s{S_FIRST}, 0')
        a(f's_mov_b32 s{S_C0}, 0xfffff000')
        for u in range(2): self.unit_weights(u)
        self.rare_c_units()
        a('s_waitcnt lgkmcnt(0)')
        a('s_barrier')
        self.ts('B4')

    def unit_loads(self, u):
        a = self.a
        U = V_UN + 4*u
        a(f'v_cmpx_gt_u32 vcc, v{34+u}, v{U}')
        a(f'v_lshrrev_b32 v{V_A}, 5, v{32+u}')
        a(f'v_and_b32 v{36+u}, 0x3fff0, v{V_A}')
        a(f'v_lshlrev_b32 v{V_A}, 1, v{32+u}')
        a(f'v_and_or_b32 v{38+u}, v{V_A}, s{S_U1}, v{V_F}')
        a(f'buffer_load_dwordx4 v[{40+4*u}:{43+4*u}], v{36+u}, s[{S_WS}:{S_WS+3}], s{S_C0} offen sc1')
        a(f'ds_read_b128 v[{48+4*u}:{51+4*u}], v{38+u}')
        a('s_mov_b64 exec, -1')

    def unit_weights(self, u):
        a = self.a
        U = V_UN + 4*u; sv = 40+4*u; dv = 48+4*u; le = 32+u
        a(f'v_cmpx_gt_u32 vcc, v{34+u}, v{U}')
        for h in range(4): a(f'v_and_b32 v{sv+h}, s{S_C0}, v{sv+h}')
        for h in (0, 2): a(f'v_pk_add_f32 v[{sv+h}:{sv+h+1}], v[{sv+h}:{sv+h+1}], v[{dv+h}:{dv+h+1}]')
        for h in range(4): a(f'v_mul_f32 v{dv+h}, 0x3e4ccccd, v{sv+h}')
        for h in range(4): a(f'v_max_f32 v{sv+h}, v{sv+h}, v{dv+h}')
        for h in range(4): a(f'v_exp_f32 v{sv+h}, v{sv+h}')
        a(f'v_bfe_u32 v{V_A}, v{le}, 3, 2')
        a(f'v_lshl_add_u32 v{V_A}, v{V_A}, 6, v{U+3}')
        a(f'v_cvt_pk_bf16_f32 v{dv}, v{sv}, v{sv+1}')
        a(f'v_cvt_pk_bf16_f32 v{dv+1}, v{sv+2}, v{sv+3}')
        a(f'ds_write_b16 v{V_A}, v{dv}')
        a(f'ds_write_b16_d16_hi v{V_A}, v{dv} offset:16')
        a(f'ds_write_b16 v{V_A}, v{dv+1} offset:32')
        a(f'ds_write_b16_d16_hi v{V_A}, v{dv+1} offset:48')
        a('s_mov_b64 exec, -1')

    def rare_c_units(self):
        a = self.a
        rare = a.label('rareC'); back = a.label('rareCb')
        a(f's_cmp_lg_u32 s{S_AOFF}, 0')
        a(f's_cbranch_scc1 {rare}')
        a(f'{back}:')
        def blk():
            a(f'{rare}:')
            a(f's_cmp_gt_u32 s{S_WAVE}, 4')
            a(f's_cbranch_scc1 {back}')
            a(f'v_cmp_gt_u32 vcc, 32, v{V_LANE}')
            a(f's_mov_b64 s[{S_EX2}:{S_EX2+1}], vcc')
            a(f's_lshl_b32 s{S_U0}, s{S_WAVE}, 1')
            a(f's_add_u32 s{S_U1}, s{S_U0}, 1')
            a(f's_mov_b32 s{S_U2}, 96'); a(f's_mov_b32 s{S_U3}, 31')
            self.unit_consts(0, S_U0, S_U1, S_U2, S_U3)
            a(f'ds_read_b32 v34, v{V_UN+1}')
            a(f'ds_read_b32 v32, v{V_UN+2}')
            a(f's_mov_b32 s{S_C0}, {WS_STAB}')
            a(f's_movk_i32 s{S_U1}, 0x3f0')
            a(f'v_mov_b32 v{V_F}, {SDST}')
            a('s_waitcnt lgkmcnt(0)')
            self.unit_loads(0)
            a('s_waitcnt vmcnt(0) lgkmcnt(0)')
            def chk():
                a(f'v_mov_b32 v{V_F}, 0')
                a(f'v_cmpx_gt_u32 vcc, v34, v{V_UN}')
                self.tagcheck(40, V_F, False, V_B, V_C)
                a('s_mov_b64 exec, -1')
                a(f'v_and_b32 v{V_F}, 0xfff, v{V_F}')
                a(f'v_cmp_ne_u32 vcc, 0, v{V_F}')
            lp = a.label('cpoll'); dn = a.label('cdone')
            a(f'{lp}:')
            chk()
            a(f's_cbranch_vccz {dn}')
            a(f's_add_u32 s{S_POLL}, s{S_POLL}, 1')
            a(f's_cmp_gt_u32 s{S_POLL}, {POLL_MAX}')
            a(f's_cbranch_scc1 {dn}')
            a(f'v_cmpx_gt_u32 vcc, v34, v{V_UN}')
            a(f'buffer_load_dwordx4 v[40:43], v36, s[{S_WS}:{S_WS+3}], s{S_C0} offen sc1')
            a('s_mov_b64 exec, -1')
            a('s_waitcnt vmcnt(0)')
            a(f's_branch {lp}')
            a(f'{dn}:')
            a(f's_mov_b32 s{S_C0}, 0xfffff000')
            self.unit_weights(0)
            a(f's_mov_b32 s{S_FIRST}, 0')
            a(f's_branch {back}')
        self.deferred.append(blk)

    def steptab_read(self):
        a = self.a
        a(f'v_lshlrev_b32 v{V_A}, 2, v{V_LANE}')
        a(f'v_add_u32 v{V_A}, {GCNT}, v{V_A}')
        a(f'v_mov_b32 v{V_B}, {M_SLOW}')
        a(f'ds_read_b32 v84, v{V_A}')
        a(f'ds_read_b32 v85, v{V_B}')

    def steptab(self):
        a = self.a
        a('v_cmp_lt_u32 vcc, 0x80, v84')
        a(f's_and_b32 s{S_T0}, vcc_lo, 0x3ff')
        a(f'v_readfirstlane_b32 s{S_T1}, v85')
        a('v_cmp_lt_u32 vcc, 0x60, v84')
        a(f's_and_b32 s{S_AOFF}, vcc_lo, 0x3ff')
        a(f's_or_b32 s{S_T0}, s{S_T0}, s{S_T1}')
        a(f's_cmp_lg_u32 s{S_T0}, 0')
        a('s_cbranch_scc1 L_slow')
        a(f'v_add_u32 v84, 31, v84')
        a(f'v_lshrrev_b32 v84, 5, v84')
        a(f's_mul_i32 s{S_T2}, s{S_HF}, 5')
        a(f's_mov_b32 s{S_T1}, s{S_T2}')
        N = (S_U0, S_U1, S_U2, S_U3, S_C0)
        for g in range(5):
            a(f'v_readlane_b32 s{N[g]}, v84, s{S_T1}')
            if g < 4: a(f's_add_u32 s{S_T1}, s{S_T1}, 1')
        a(f's_lshl_b32 s{S_T2}, s{S_T2}, 9')
        a(f'v_mov_b32 v{V_TAB}, 5120')
        a(f's_mov_b32 s{S_T0}, 0')
        for g in range(5):
            a(f'v_subrev_u32 v{V_A}, s{S_T0}, v{V_LANE}')
            a(f'v_lshlrev_b32 v{V_A}, 7, v{V_A}')
            a(f'v_cmp_le_u32 vcc, s{S_T0}, v{V_LANE}')
            a(f'v_add_u32 v{V_A}, s{S_T2}, v{V_A}')
            a(f's_add_u32 s{S_T0}, s{S_T0}, s{N[g]}')
            a(f's_add_u32 s{S_T2}, s{S_T2}, 512')
            a(f'v_cndmask_b32 v{V_TAB}, v{V_TAB}, v{V_A}, vcc')
        a(f'v_mov_b32 v{V_A}, 5120')
        a(f'v_cmp_le_u32 vcc, s{S_T0}, v{V_LANE}')
        a(f's_lshl_b32 s{S_NPK}, s{N[4]}, 4')
        for g in (3, 2, 1, 0):
            a(f's_or_b32 s{S_NPK}, s{S_NPK}, s{N[g]}')
            if g: a(f's_lshl_b32 s{S_NPK}, s{S_NPK}, 4')
        a(f'v_cndmask_b32 v{V_TAB}, v{V_TAB}, v{V_A}, vcc')

    def idx_read(self):
        a = self.a
        a(f'v_readlane_b32 s{S_T0}, v{V_TAB}, s{S_J}')
        a(f's_add_u32 s{S_J}, s{S_J}, 1')
        a('s_nop 0')
        a(f'v_add_u32 v{V_G}, s{S_T0}, v{V_LST}')
        a(f'ds_read_b128 v[{V_IDX}:{V_IDX+3}], v{V_G}')

    def xprologue(self):
        a = self.a
        T = 92
        a('s_nop 0')
        for j in range(R):
            a(f'v_readlane_b32 s{S_T0}, v{V_TAB}, {j}')
            a('s_nop 1')
            a(f'v_add_u32 v{V_G}, s{S_T0}, v{V_LST}')
            a(f'ds_read_b128 v[{T+4*j}:{T+4*j+3}], v{V_G}')
        a(f's_mov_b32 s{S_J}, {R}')
        a(f's_mov_b32 s{S_SLOT}, 0')
        a('s_waitcnt lgkmcnt(0)')
        for j in range(R):
            a(f's_add_u32 m0, s{S_RING}, {j*4096}')
            for c in range(4):
                sw = V_SWE if c % 2 == 0 else V_SWO
                a(f'v_and_or_b32 v{T+4*j+c}, v{T+4*j+c}, s{S_M}, v{sw}')
            for c in range(4):
                a(f'buffer_load_dwordx4 v{T+4*j+c}, s[{S_X}:{S_X+3}], s{S_XSO+c} offen offset:{c*1024} lds')
        self.idx_read()

    def sweep(self, base, shift, dst=255, tmp=254):
        a = self.a
        a(f's_lshr_b32 s{S_T0}, s2, 3')
        a(f's_lshl_b32 s{S_T0}, s{S_T0}, 3')
        a(f's_add_u32 s{S_T0}, s{S_T0}, s{S_WAVE}')
        a(f's_lshl_b32 s{S_T0}, s{S_T0}, {shift}')
        a(f's_add_u32 s{S_T0}, s{S_T0}, {WS_WSW + base}')
        a(f'v_lshlrev_b32 v{tmp}, 7, v{V_LANE}')
        a(f'v_cmpx_gt_u32 vcc, {(1 << shift) >> 7}, v{V_LANE}')
        a(f'buffer_load_dword v{dst}, v{tmp}, s[{S_WS}:{S_WS+3}], s{S_T0} offen sc1')
        a('s_mov_b64 exec, -1')

    def wflag_load(self, dst):
        a = self.a
        a(f's_lshl_b32 s{S_T1}, s{S_WAVE}, 10')
        a(f's_add_u32 s{S_T1}, s{S_T1}, {WS_WFLG}')
        a(f'buffer_load_dwordx4 v[{dst}:{dst+3}], v{V_WE}, s[{S_WS}:{S_WS+3}], s{S_T1} offen sc1')

    def wload(self, t):
        a = self.a
        dst = V_W + 16*(t % NPRE)
        a(f's_add_u32 s{S_T1}, s{S_WB}, {t*4096}')
        for j in range(4):
            a(f'buffer_load_dwordx4 v[{dst+4*j}:{dst+4*j+3}], v{V_WE}, s[{S_WS}:{S_WS+3}], s{S_T1} offen offset:{j*1024} {self.o.get("wfl", "sc1")}')

    def group_end_math(self):
        a = self.a
        for h in range(4): a(f'v_fmaak_f32 v{V_DEN+h}, 4.0, v{V_DEN+h}, 0x3189705f')
        for h in range(4): a(f'v_rcp_f32 v{V_DEN+h}, v{V_DEN+h}')
        a('s_nop 0')
        for j in range(4):
            for h in (0, 2):
                r = V_ACC + 4*j + h
                a(f'v_pk_mul_f32 v[{r}:{r+1}], v[{r}:{r+1}], v[{V_DEN+h}:{V_DEN+h+1}]')
        if self.o.get('cvtidx', 1):
            a(f's_set_gpr_idx_on s{S_T0}, gpr_idx(DST)')
            a('s_nop 0')
            for j in range(4):
                for h in (0, 2):
                    r = V_ACC + 4*j + h
                    a(f'v_cvt_pk_bf16_f32 v{V_PK + 2*j + h//2}, v{r}, v{r+1}')
            a('s_set_gpr_idx_off')
        else:
            for j in range(4):
                for h in (0, 2):
                    r = V_ACC + 4*j + h
                    a(f'v_cvt_pk_bf16_f32 v{92 + 2*j + h//2}, v{r}, v{r+1}')
            a(f's_set_gpr_idx_on s{S_T0}, gpr_idx(DST)')
            a('s_nop 0')
            for k in range(8): a(f'v_mov_b32 v{V_PK+k}, v{92+k}')
            a('s_set_gpr_idx_off')
        for i in range(0, 20, 2): a(f'v_mov_b64 v[{V_ACC+i}:{V_ACC+i+1}], 0')

    def aggregate(self):
        a = self.a; o = self.o
        for i in range(0, 20, 2): a(f'v_mov_b64 v[{V_ACC+i}:{V_ACC+i+1}], 0')
        for i in range(4): a(f'v_mov_b32 v{V_ONE+i}, 0x3f803f80')
        a(f's_movk_i32 s{S_C2}, 0x1000')
        a(f's_mov_b32 s{S_G}, 0')
        a(f's_mov_b32 s{S_JC}, 0')
        def addr():
            a(f'v_readlane_b32 s{S_T1}, v{V_TAB}, s{S_JC}')
            a(f's_add_u32 s{S_JC}, s{S_JC}, 1')
            a(f's_lshl_b32 s{S_T1}, s{S_T1}, 3')
            a(f'v_add_u32 v{V_TW}, s{S_T1}, v{V_AW}')
        def reads():
            a(f'ds_read_b128 v[{V_AF}:{V_AF+3}], v{V_TW}')
            for j in range(4):
                a(f'ds_read_b64_tr_b16 v[{V_BF+4*j}:{V_BF+4*j+1}], v{V_TR+j}')
                a(f'ds_read_b64_tr_b16 v[{V_BF+4*j+2}:{V_BF+4*j+3}], v{V_TR+j} offset:512')
        def rowwait():
            a(f's_waitcnt vmcnt({4*(R-1)})')
        a(f's_and_b32 s{S_LEFT}, s{S_NPK}, 15')
        a(f's_lshr_b32 s{S_NPK}, s{S_NPK}, 4')
        addr()
        rowwait()
        reads()
        Lt = a.label('agg_top'); Le = a.label('agg_ge'); Ld = a.label('agg_done')
        a(f's_cmp_eq_u32 s{S_LEFT}, 0')
        a(f's_cbranch_scc1 {Le}')
        a(f'{Lt}:')
        a('s_waitcnt lgkmcnt(0)')
        sw = lambda c: V_SWE if c % 2 == 0 else V_SWO
        mf = lambda d, b: a(f'v_mfma_f32_16x16x32_bf16 v[{d}:{d+3}], v[{V_AF}:{V_AF+3}], v[{b}:{b+3}], v[{d}:{d+3}]')
        dma = lambda c: a(f'buffer_load_dwordx4 v{V_IDX+c}, s[{S_X}:{S_X+3}], s{S_XSO+c} offen offset:{c*1024} lds')
        mf(V_DEN, V_ONE)
        for c in range(4): a(f'v_and_or_b32 v{V_IDX+c}, v{V_IDX+c}, s{S_M}, v{sw(c)}')
        a(f's_add_u32 m0, s{S_RING}, s{S_SLOT}')
        mf(V_ACC, V_BF)
        dma(0)
        mf(V_ACC+4, V_BF+4)
        dma(1)
        mf(V_ACC+8, V_BF+8)
        dma(2)
        mf(V_ACC+12, V_BF+12)
        dma(3)
        a(f's_add_u32 s{S_SLOT}, s{S_SLOT}, 4096')
        a(f's_cmp_eq_u32 s{S_SLOT}, {R*4096}')
        a(f's_cselect_b32 s{S_SLOT}, 0, s{S_SLOT}')
        a(f's_cselect_b32 s{S_DELTA}, s{S_C3}, s{S_C2}')
        addr()
        for j in range(4): a(f'v_add_u32 v{V_TR+j}, s{S_DELTA}, v{V_TR+j}')
        rowwait()
        reads()
        self.idx_read()
        a(f's_sub_u32 s{S_LEFT}, s{S_LEFT}, 1')
        a(f's_cmp_lg_u32 s{S_LEFT}, 0')
        a(f's_cbranch_scc1 {Lt}')
        a(f'{Le}:')
        if o.get('sweep2', 1):
            wq = a.label('agg_wq'); wqb = a.label('agg_wqb')
            a(f's_cmp_eq_u32 s{S_G}, 3')
            a(f's_cbranch_scc1 {wq}')
            a(f'{wqb}:')
            def blk():
                a(f'{wq}:')
                self.sweep(0, 11, 101, 102)
                a(f's_branch {wqb}')
            self.deferred.append(blk)
        a(f's_lshl_b32 s{S_T0}, s{S_G}, 3')
        a(f's_add_u32 s{S_G}, s{S_G}, 1')
        self.group_end_math()
        a(f's_cmp_eq_u32 s{S_G}, 5')
        a(f's_cbranch_scc1 {Ld}')
        a(f's_and_b32 s{S_LEFT}, s{S_NPK}, 15')
        a(f's_lshr_b32 s{S_NPK}, s{S_NPK}, 4')
        a(f's_cmp_lg_u32 s{S_LEFT}, 0')
        a(f's_cbranch_scc1 {Lt}')
        a(f's_branch {Le}')
        a(f'{Ld}:')

    def agg_write(self):
        a = self.a
        a('L_aggw:')
        a(f'v_and_b32 v{V_C}, 15, v{V_LANE}')
        a(f'v_lshrrev_b32 v{V_A}, 4, v{V_LANE}')
        a(f'v_bfe_u32 v{V_D}, v{V_C}, 1, 2')
        a(f'v_lshrrev_b32 v{V_E}, 3, v{V_C}')
        a(f'v_lshl_add_u32 v{V_F}, v{V_E}, 2, v{V_D}')
        a(f'v_and_b32 v{V_G}, 1, v{V_C}')
        a(f'v_lshlrev_b32 v{V_G}, 3, v{V_G}')
        a(f's_mul_i32 s{S_T0}, s{S_SET}, {4*RINGW}')
        a(f's_and_b32 s{S_T1}, s{S_SLICE}, 1')
        a(f's_lshl_b32 s{S_T2}, s{S_T1}, 13')
        a(f's_add_u32 s{S_T2}, s{S_T2}, s{S_T0}')
        a(f's_lshl_b32 s{S_T1}, s{S_T1}, 12')
        a(f's_add_u32 s{S_T1}, s{S_T1}, s{S_T0}')
        a(f'v_lshl_add_u32 v{V_MF}, v{V_D}, 8, v{V_G}')
        a(f'v_lshl_add_u32 v{V_MF}, v{V_E}, 10, v{V_MF}')
        a(f'v_add_u32 v{V_MF}, s{S_T2}, v{V_MF}')
        a(f'v_lshl_add_u32 v{V_MF+1}, v{V_D}, 7, v{V_G}')
        a(f'v_lshl_add_u32 v{V_MF+1}, v{V_E}, 9, v{V_MF+1}')
        a(f'v_add_u32 v{V_MF+1}, s{S_T1}, v{V_MF+1}')
        a(f'v_lshrrev_b32 v{V_B}, 4, v{V_LANE}')
        for par in range(2):
            a(f'v_add_u32 v{V_TW}, {4*par}, v{V_B}')
            a(f'v_xor_b32 v{V_D}, v{V_C}, v{V_TW}')
            a(f'v_lshlrev_b32 v{V_D}, 4, v{V_D}')
            a(f'v_lshl_add_u32 v{V_D}, v{V_B}, 8, v{V_D}')
            a(f'v_add_u32 v{104+par}, s{S_T0}, v{V_D}')
            a(f'v_and_b32 v{V_D}, 7, v{V_C}')
            a(f'v_xor_b32 v{V_D}, v{V_D}, v{V_TW}')
            a(f'v_lshlrev_b32 v{V_D}, 4, v{V_D}')
            a(f'v_lshl_add_u32 v{V_D}, v{V_B}, 7, v{V_D}')
            a(f'v_add_u32 v{106+par}, s{S_T0}, v{V_D}')
        a('s_waitcnt vmcnt(0) lgkmcnt(0)')
        self.wload(NA); self.wload(NA+1)
        self.ts('aggdone')
        a('s_barrier')
        self.ts('B5')
        end = a.label('aggw_end'); h1 = a.label('aggw_h1')
        a(f's_cmp_eq_u32 s{S_HF}, 1')
        a(f's_cbranch_scc1 {h1}')
        for hf in range(2):
            if hf == 1: a(f'{h1}:')
            for gg in range(5):
                node0 = 20*hf + 4*gg
                mt, mb = node0 >> 4, node0 & 15
                TS = 1024 if mt < 2 else 512
                ad = V_AF + (gg & 1)
                a(f'v_add_u32 v{ad}, {mb}, v{V_A}')
                a(f'v_xor_b32 v{ad}, v{ad}, v{V_F}')
                a(f'v_lshl_add_u32 v{ad}, v{ad}, 4, v{V_MF + (0 if mt < 2 else 1)}')
                for j in range(4):
                    pk = V_PK + 8*gg + 2*j
                    a(f'ds_write_b64 v{ad}, v[{pk}:{pk+1}] offset:{mt*16384 + 2*j*TS}')
            if hf == 0: a(f's_branch {end}')
        a(f'{end}:')
        self.wload(NA+2)
        a('s_waitcnt lgkmcnt(0)')
        a('s_barrier')
        self.ts('B6')

    def gemm(self):
        a = self.a
        n = NPRE
        AB = [80, 92]
        def aggread(t):
            buf = AB[t & 1]; par = t & 1
            for mt in range(2):
                a(f'ds_read_b128 v[{buf+4*mt}:{buf+4*mt+3}], v{104+par} offset:{mt*16384 + t*1024}')
            a(f'ds_read_b128 v[{buf+8}:{buf+11}], v{106+par} offset:{32768 + t*512}')
        if self.o.get('gprio'):
            sk = a.label('gprio')
            a(f's_cmp_eq_u32 s{S_SET}, 0')
            a(f's_cbranch_scc1 {sk}')
            a(f's_setprio {self.o["gprio"]}')
            a(f'{sk}:')
        def aggread_list(t):
            buf = AB[t & 1]; par = t & 1
            return [f'ds_read_b128 v[{buf+4*mt}:{buf+4*mt+3}], v{104+par} offset:{mt*16384 + t*1024}' for mt in range(2)] + \
                   [f'ds_read_b128 v[{buf+8}:{buf+11}], v{106+par} offset:{32768 + t*512}']
        def wload_list(t):
            dst = V_W + 16*(t % n)
            return [f's_add_u32 s{S_T1}, s{S_WB}, {t*4096}'] + \
                   [f'buffer_load_dwordx4 v[{dst+4*j}:{dst+4*j+3}], v{V_WE}, s[{S_WS}:{S_WS+3}], s{S_T1} offen offset:{j*1024} {self.o.get("wfl", "sc1")}' for j in range(4)]
        aggread(0)
        for t in range(16):
            waits = []
            if t >= NA and not self.o.get('nowb'): waits.append(f'vmcnt({4*(min(15, NA+2+t) - t)})')
            waits.append('lgkmcnt(0)')
            a('s_waitcnt ' + ' '.join(waits))
            fill = []
            if t + 1 < 16: fill += aggread_list(t+1)
            if NA + 3 + t < 16 and not self.o.get('nowb'): fill += wload_list(NA + 3 + t)
            w = V_W + 16*(t % n); b = AB[t & 1]
            k = 0
            for mt in range(3):
                for j in range(4):
                    acc = V_ACC + 16*mt + 4*j
                    c = '0' if t == 0 else f'v[{acc}:{acc+3}]'
                    a(f'v_mfma_f32_16x16x32_bf16 v[{acc}:{acc+3}], v[{w+4*j}:{w+4*j+3}], v[{b+4*mt}:{b+4*mt+3}], {c}')
                    if k < len(fill): a(fill[k]); k += 1
            if t in (3, 7, 11): self.ts(f'g{t}')
        self.ts('gemm1')

    def finish(self):
        a = self.a
        P = V_W
        a(f's_mul_i32 s{S_T0}, s{S_WAVE}, 6144')
        a(f's_add_u32 s{S_T0}, s{S_T0}, {XCH}')
        a(f'v_add_u32 v{V_D}, s{S_T0}, v{V_WE}')
        a(f's_xor_b32 s{S_T1}, s{S_WAVE}, 4')
        a(f's_mul_i32 s{S_T1}, s{S_T1}, 6144')
        a(f's_add_u32 s{S_T1}, s{S_T1}, {XCH}')
        a(f'v_add_u32 v{V_F}, s{S_T1}, v{V_WE}')
        a(f'v_and_b32 v{V_A}, 15, v{V_LANE}')
        a(f'v_lshrrev_b32 v{V_B}, 4, v{V_LANE}')
        a(f'v_and_b32 v{V_C}, 1, v{V_B}')
        a(f'v_lshrrev_b32 v{V_E}, 1, v{V_B}')
        a(f'v_lshlrev_b32 v{V_C}, 5, v{V_C}')
        a(f'v_lshl_add_u32 v{V_C}, v{V_E}, 4, v{V_C}')
        a(f'v_lshl_add_u32 v{V_C}, v{V_A}, 9, v{V_C}')
        a(f's_mul_i32 s{S_T0}, s2, {40*512}')
        a(f's_lshl_b32 s{S_T1}, s{S_W3}, 7')
        a(f's_add_u32 s{S_T0}, s{S_T0}, s{S_T1}')
        a(f's_lshl_b32 s{S_T1}, s{S_SET}, 6')
        a(f's_add_u32 s{S_T0}, s{S_T0}, s{S_T1}')
        a(f'v_cmp_gt_u32 s[{S_EX2}:{S_EX2+1}], 8, v{V_A}')
        s1 = a.label('fin1'); jn = a.label('finj')
        a(f's_cmp_eq_u32 s{S_SET}, 1')
        a(f's_cbranch_scc1 {s1}')
        for st in range(2):
            if st == 1: a(f'{s1}:')
            send = (2, 3) if st == 0 else (0, 1)
            keep = (0, 1) if st == 0 else (2, 3)
            if st == 0: a('s_nop 0')
            for mt in range(3):
                for i, j in enumerate(send):
                    acc = V_ACC + 16*mt + 4*j
                    a(f'ds_write_b128 v{V_D}, v[{acc}:{acc+3}] offset:{1024*(2*mt+i)}')
            a('s_waitcnt lgkmcnt(0)')
            a('s_barrier')
            for i in range(6):
                a(f'ds_read_b128 v[{P+4*i}:{P+4*i+3}], v{V_F} offset:{1024*i}')
            a('s_waitcnt lgkmcnt(0)')
            for mt in range(3):
                for i, j in enumerate(keep):
                    acc = V_ACC + 16*mt + 4*j; p = P + 4*(2*mt+i)
                    for h in (0, 2):
                        a(f'v_pk_add_f32 v[{acc+h}:{acc+h+1}], v[{acc+h}:{acc+h+1}], v[{p+h}:{p+h+1}]')
            for mt in range(3):
                R0 = P + 4*mt
                for i, j in enumerate(keep):
                    acc = V_ACC + 16*mt + 4*j
                    a(f'v_cvt_pk_bf16_f32 v{R0+2*i}, v{acc}, v{acc+1}')
                    a(f'v_cvt_pk_bf16_f32 v{R0+2*i+1}, v{acc+2}, v{acc+3}')
            if st == 0: a(f's_branch {jn}')
        a(f'{jn}:')
        a('s_nop 1')
        for mt in range(3):
            R0 = P + 4*mt
            a(f'v_permlane16_swap_b32 v{R0}, v{R0+2}')
            a(f'v_permlane16_swap_b32 v{R0+1}, v{R0+3}')
        for mt in range(3):
            R0 = P + 4*mt
            a(f's_add_u32 s{S_T1}, s{S_T0}, {mt*16*512}')
            if mt == 2: a(f's_mov_b64 exec, s[{S_EX2}:{S_EX2+1}]')
            a(f'buffer_store_dwordx4 v[{R0}:{R0+3}], v{V_C}, s[{S_OUT}:{S_OUT+3}], s{S_T1} offen')
        a('s_mov_b64 exec, -1')
        self.ts('end')
        if self.o.get('ts') == 1:
            a(f's_lshl_b32 s{S_T0}, s2, 3')
            a(f's_add_u32 s{S_T0}, s{S_T0}, s{S_WAVE}')
            a(f's_lshl_b32 s{S_T0}, s{S_T0}, 7')
            a(f's_add_u32 s{S_T0}, s{S_T0}, {WS_TS}')
            a(f'v_writelane_b32 v{V_TSR}, s{S_POLL}, 31')
            a(f'v_lshlrev_b32 v{V_A}, 2, v{V_LANE}')
            a(f'v_cmpx_gt_u32 vcc, 32, v{V_LANE}')
            a(f'buffer_store_dword v{V_TSR}, v{V_A}, s[{S_WS}:{S_WS+3}], s{S_T0} offen')
            a('s_mov_b64 exec, -1')

    def slow_path(self):
        from slowpath import emit_slow
        emit_slow(self)

    def build(self):
        a = self.a; o = self.o
        a(f'; @launch grid=({NB},1,1) block=(512,1,1) lds={LDS_SIZE}')
        a('.amdgcn_target "amdgcn-amd-amdhsa--gfx950"')
        a('.text')
        a(f'.globl {KNAME}')
        a('.p2align 8')
        a(f'.type {KNAME},@function')
        a(f'{KNAME}:')
        self.prologue()
        self.issue_loads()
        self.ts('issue')
        self.srd(S_DBG, S_KA+14, 256)
        a('s_barrier')
        self.ts('B0')
        self.late_consts()
        sk = a.label('nop0')
        a(f's_cmp_lg_u32 s{S_WAVE}, 0')
        a(f's_cbranch_scc1 {sk}')
        a(f'buffer_load_dwordx2 v[38:39], off, s[{S_DBG}:{S_DBG+3}], 0 sc1')
        a(f'{sk}:')
        a(f's_cmp_eq_u32 s{S_SET}, 1')
        a('s_cbranch_scc1 L_set1')
        self.t1_set0()
        a('s_branch L_mid')
        a('L_set1:')
        self.t1_set1()
        a('L_mid:')
        self.middle()
        self.aggregate()
        self.agg_write()
        self.gemm()
        self.finish()
        a('s_branch L_end')
        for fn in list(self.deferred): fn()
        a('L_hot_end:')
        n0 = len(self.deferred)
        self.slow_path()
        for fn in self.deferred[n0:]: fn()
        a('L_end:')
        a('s_waitcnt vmcnt(0)')
        a('s_endpgm')
        a('.section .rodata,"a"')
        a('.p2align 6')
        a(f'.amdhsa_kernel {KNAME}')
        a('  .amdhsa_next_free_vgpr 256')
        a('  .amdhsa_next_free_sgpr 102')
        a('  .amdhsa_accum_offset 256')
        a('  .amdhsa_group_segment_fixed_size 0')
        a('  .amdhsa_kernarg_size 72')
        a('  .amdhsa_user_sgpr_count 2')
        a('  .amdhsa_user_sgpr_kernarg_segment_ptr 1')
        a('  .amdhsa_system_sgpr_workgroup_id_x 1')
        a('  .amdhsa_float_denorm_mode_32 3')
        a('  .amdhsa_float_denorm_mode_16_64 3')
        a('.end_amdhsa_kernel')
        return a


def generate(path, **opt):
    global NA
    NA = opt.get('na', 2)
    g = Gen(opt)
    a = g.build()
    probs = check(a.lines)
    open(path, 'w').write(a.text())
    json.dump(g.tsn, open(path + '.ts.json', 'w'))
    return probs

if __name__ == '__main__':
    ap = argparse.ArgumentParser()
    ap.add_argument('out')
    for name, dflt in (('ts', 0), ('cpf', 1), ('sweep', 1), ('edelay', 0), ('prio', 0), ('cvtidx', 1), ('sweep2', 1), ('gprio', 0), ('na', 2), ('nowb', 0)):
        ap.add_argument('--' + name, type=int, default=dflt)
    ap.add_argument('--tsf', default='')
    ap.add_argument('--wfl', default='sc1')
    args = ap.parse_args()
    o = vars(args); out = o.pop('out')
    if o['wfl'] == 'plain': o['wfl'] = ''
    p = generate(out, **o)
    print('hazards:', len(p))
```

```python
import sys, argparse, json
from asmcore import Asm, check

KNAME = 'gather_scatter__graph_attention_gat__graph_kernel'
NB = 250
WS_TABLE = 0
WS_UTAB = 0x400000
WS_STAB = 0x410000
WS_WFLG = 0x440000
WS_WSW = 0x480000
WS_TS = 0x500000
WS_SIZE = 0x600000
RINGW = 12288
R = 3
NPRE = 8
NA = 2
IMG = 4*RINGW
CNT = IMG + 16384
AP = 8*RINGW
XCH = AP
SDST = AP + 40960
GCNT = SDST + 1024
UT = SDST + 2048
MISC = GCNT + 64
LIST = AP + 49152
LDS_SIZE = LIST + 5248
assert LIST % 8192 == 0 and SDST % 1024 == 0 and GCNT % 64 == 0 and LDS_SIZE <= 163840
M_NONCE = MISC
M_SLOW = MISC + 8
M_SCNT = MISC + 12
M_SYNC = MISC + 16
S_X, S_W, S_WS, S_SRC, S_DST, S_DBG, S_OUT = 4, 8, 12, 16, 20, 32, 36
S_WB = 3
S_FIRST = 24
S_RET = 26
S_SYO, S_SYX = 28, 29
S_WAVE, S_SET, S_W3, S_HF = 40, 41, 42, 43
S_T = 44
S_SLICE, S_NPK = 48, 49
S_XSO = 52
S_RING, S_SLOT, S_J, S_DELTA = 56, 57, 58, 59
S_N = 60
S_G, S_LEFT, S_JC, S_AOFF = 60, 61, 62, 63
S_T0, S_T1, S_T2 = 65, 66, 67
S_EX, S_EX2 = 68, 70
S_KA = 72
S_TS = 90
S_C0, S_C1, S_C2, S_C3 = 92, 93, 94, 95
S_POLL, S_M = 96, 97
S_U0, S_U1, S_U2, S_U3 = 98, 99, 100, 101
V_TID, V_LANE = 0, 1
V_TR = 2
V_AW, V_LB, V_LST = 6, 7, 8
V_SWE, V_SWO = 9, 10
V_TAB = 11
V_IDX = 12
V_AF = 16
V_MF = 20
V_A, V_B, V_C, V_D, V_E, V_F, V_G = 24, 25, 26, 27, 28, 29, 30
V_ONE = 24
V_TSR = 31
V_ACC = 32
V_DEN = 48
V_PK = 52
V_TW, V_WE = 100, 23
V_UN = 104
V_W = 112
V_BF = 240

POLL_MAX = 200000
EMPTY = 0xfffff000


class Gen:
    def __init__(self, opt):
        self.o = opt
        self.a = Asm()
        self.tsn = {}
        self.deferred = []

    def ts(self, name):
        if not self.o.get('ts'): return
        tsf = self.o.get('tsf')
        if tsf and name != 'start' and name not in tsf.split(','): return
        a = self.a
        if name not in self.tsn: self.tsn[name] = len(self.tsn)
        idx = self.tsn[name]
        assert idx < 28
        a(f's_memrealtime s[{S_TS}:{S_TS+1}]')
        a('s_waitcnt lgkmcnt(0)')
        a(f'v_writelane_b32 v{V_TSR}, s{S_TS}, {idx}')

    def srd(self, r, base, size, shift=0):
        a = self.a
        if shift:
            a(f's_sub_u32 s{r}, s{base}, {shift}')
            a(f's_subb_u32 s{r+1}, s{base+1}, 0')
            a(f's_and_b32 s{r+1}, s{r+1}, 0xffff')
        else:
            a(f's_mov_b32 s{r}, s{base}')
            a(f's_and_b32 s{r+1}, s{base+1}, 0xffff')
        a(f's_mov_b32 s{r+2}, {size}')
        a(f's_mov_b32 s{r+3}, 0x20000')

    def tagcheck(self, base, acc, first, t0, t1):
        a = self.a
        if first:
            a(f'v_xor_b32 v{acc}, s{S_T}, v{base}')
            a(f'v_xor_b32 v{t0}, s{S_T+1}, v{base+1}')
            a(f'v_xor_b32 v{t1}, s{S_T+2}, v{base+2}')
            a(f'v_or3_b32 v{acc}, v{acc}, v{t0}, v{t1}')
            a(f'v_xor_b32 v{t0}, s{S_T+3}, v{base+3}')
            a(f'v_or_b32 v{acc}, v{acc}, v{t0}')
        else:
            a(f'v_xor_b32 v{t0}, s{S_T}, v{base}')
            a(f'v_xor_b32 v{t1}, s{S_T+1}, v{base+1}')
            a(f'v_or3_b32 v{acc}, v{acc}, v{t0}, v{t1}')
            a(f'v_xor_b32 v{t0}, s{S_T+2}, v{base+2}')
            a(f'v_xor_b32 v{t1}, s{S_T+3}, v{base+3}')
            a(f'v_or3_b32 v{acc}, v{acc}, v{t0}, v{t1}')

    def poll_check(self, acc, reload_fn, name):
        a = self.a
        rt = a.label(name + '_retry'); ok = a.label(name + '_ok')
        a(f'v_and_b32 v{acc}, 0xfff, v{acc}')
        a(f'v_cmp_ne_u32 vcc, 0, v{acc}')
        a(f's_cbranch_vccnz {rt}')
        a(f'{ok}:')
        def blk():
            a(f'{rt}:')
            a(f's_add_u32 s{S_POLL}, s{S_POLL}, 1')
            a(f's_cmp_gt_u32 s{S_POLL}, {POLL_MAX}')
            a(f's_cbranch_scc1 {ok}')
            a('s_sleep 2')
            reload_fn()
            a(f'v_and_b32 v{acc}, 0xfff, v{acc}')
            a(f'v_cmp_ne_u32 vcc, 0, v{acc}')
            a(f's_cbranch_vccnz {rt}')
            a(f's_branch {ok}')
        self.deferred.append(blk)

    def signal(self, k, own=True):
        a = self.a
        a(f'v_mov_b32 v{V_E}, s{S_SYO if own else S_SYX}')
        a(f'v_mov_b32 v{V_F}, 1')
        a('s_waitcnt lgkmcnt(0)')
        a('s_mov_b64 exec, 1')
        a(f'ds_add_u32 v{V_E}, v{V_F} offset:{4*k}')
        a('s_mov_b64 exec, -1')

    def waitfor(self, k, own=True, n=4, have=False):
        a = self.a
        if not have: a(f'v_mov_b32 v{V_E}, s{S_SYO if own else S_SYX}')
        lp = a.label('sync'); dn = a.label('syncd')
        a(f'{lp}:')
        a(f'ds_read_b32 v{V_F}, v{V_E} offset:{4*k}')
        a('s_waitcnt lgkmcnt(0)')
        a(f'v_cmp_gt_u32 vcc, {n}, v{V_F}')
        a(f's_cbranch_vccz {dn}')
        a(f's_add_u32 s{S_POLL}, s{S_POLL}, 1')
        a(f's_cmp_lt_u32 s{S_POLL}, {POLL_MAX*8}')
        a(f's_cbranch_scc1 {lp}')
        a(f'{dn}:')

    def setsync(self, k):
        self.signal(k); self.waitfor(k, have=True)

    def fill(self, base, nbytes, vq, vaddr):
        a = self.a
        n = nbytes // 16
        a(f'v_lshlrev_b32 v{vaddr}, 4, v{V_TID}')
        a(f'v_add_u32 v{vaddr}, {base}, v{vaddr}')
        r = 0
        while n > 0:
            if n >= 512:
                a(f'ds_write_b128 v{vaddr}, v[{vq}:{vq+3}] offset:{r*8192}')
            else:
                a(f'v_cmpx_gt_u32 vcc, {n}, v{V_TID}')
                a(f'ds_write_b128 v{vaddr}, v[{vq}:{vq+3}] offset:{r*8192}')
                a('s_mov_b64 exec, -1')
            n -= 512; r += 1

    def prologue(self):
        a = self.a; o = self.o
        a(f's_cmp_ge_u32 s2, {NB}')
        a('s_cbranch_scc1 L_end')
        a(f's_load_dwordx16 s[{S_KA}:{S_KA+15}], s[0:1], 0')
        a(f's_load_dwordx2 s[{S_KA+16}:{S_KA+17}], s[0:1], 64')
        if o.get('cpf', 1):
            a(f's_getpc_b64 s[{S_U0}:{S_U0+1}]')
            a('L_pc:')
            a('v_lshlrev_b32 v254, 6, v0')
            a('v_min_u32 v254, L_hot_end-L_pc, v254')
            a(f'global_load_dword v255, v254, s[{S_U0}:{S_U0+1}]')
        a('s_memrealtime s[50:51]')
        a(f'v_lshrrev_b32 v{V_A}, 6, v0')
        a(f'v_and_b32 v{V_LANE}, 63, v0')
        if o.get('ts'): a(f'v_mov_b32 v{V_TSR}, 0')
        a(f'v_readfirstlane_b32 s{S_WAVE}, v{V_A}')
        for i in range(4): a(f'v_mov_b32 v{104+i}, {EMPTY}')
        a(f'v_lshlrev_b32 v103, 4, v{V_TID}')
        a(f'v_add_u32 v103, {IMG}, v103')
        a('ds_write_b128 v103, v[104:107]')
        a('ds_write_b128 v103, v[104:107] offset:8192')
        for i in range(4): a(f'v_mov_b32 v{108+i}, 0')
        a(f'v_cmpx_gt_u32 vcc, 64, v{V_TID}')
        a('ds_write_b128 v103, v[108:111] offset:16384')
        a('s_mov_b64 exec, -1')
        a(f's_lshr_b32 s{S_SET}, s{S_WAVE}, 2')
        a(f's_and_b32 s{S_W3}, s{S_WAVE}, 3')
        a(f's_mov_b32 s{S_POLL}, 0')
        a(f'v_and_b32 v{V_C}, 15, v{V_LANE}')
        a(f'v_lshrrev_b32 v{V_E}, 4, v{V_LANE}')
        a(f'v_lshlrev_b32 v{V_E}, 4, v{V_E}')
        a(f'v_lshl_add_u32 v{V_F}, v{V_C}, 9, v{V_E}')
        a(f'v_and_b32 v{V_C}, 1, v{V_LANE}')
        a(f'v_cmp_eq_u32 vcc, 1, v{V_C}')
        a(f'v_lshlrev_b32 v{V_A}, 3, v{V_TID}')
        a(f'v_lshlrev_b32 v{V_B}, 2, v{V_TID}')
        a('s_waitcnt lgkmcnt(0)')
        self.ts('start')

    def tlb_touch(self):
        a = self.a; o = self.o
        k = S_KA
        sk = a.label('notouch')
        a(f's_cmp_lg_u32 s{S_WAVE}, {o.get("tw", 7)}')
        a(f's_cbranch_scc1 {sk}')
        if o['touch'] == 1:
            a(f's_lshr_b32 s{S_T0}, s2, 3')
            a(f's_cmp_lg_u32 s{S_T0}, 30')
            a(f's_cbranch_scc1 {sk}')
        pages = [(0, 0), (0, 1), (0, 2), (2, 0), (4, 0), (6, 0), (8, 0), (10, 0), (12, 0), (12, 1), (12, 2), (14, 0), (16, 0), (16, 1), (16, 2)]
        a(f'v_mov_b32 v250, s{k}')
        a(f'v_mov_b32 v251, s{k+1}')
        for l, (p, n) in enumerate(pages):
            if l == 0: continue
            if n:
                a(f's_add_u32 s{S_T0}, s{k+p}, {n*0x200000}')
                a(f's_addc_u32 s{S_T1}, s{k+p+1}, 0')
                a(f'v_writelane_b32 v250, s{S_T0}, {l}')
                a(f'v_writelane_b32 v251, s{S_T1}, {l}')
            else:
                a(f'v_writelane_b32 v250, s{k+p}, {l}')
                a(f'v_writelane_b32 v251, s{k+p+1}, {l}')
        a(f's_mov_b64 exec, {(1 << len(pages)) - 1}')
        a('global_load_dword v252, v[250:251], off')
        a('s_mov_b64 exec, -1')
        a(f'{sk}:')

    def issue_loads(self):
        a = self.a
        if self.o.get('touch'): self.tlb_touch()
        s1 = a.label('iss1'); dn = a.label('issdone')
        k = S_KA
        a(f's_cmp_eq_u32 s{S_SET}, 1')
        a(f's_cbranch_scc1 {s1}')
        self.srd(S_DST, k+4, 640000)
        self.srd(S_SRC, k+2, 640000)
        a(f's_mul_i32 s{S_T0}, s2, 2560')
        a(f'buffer_load_dwordx2 v[32:33], v{V_A}, s[{S_DST}:{S_DST+3}], s{S_T0} offen')
        a(f'buffer_load_dwordx2 v[34:35], v{V_A}, s[{S_SRC}:{S_SRC+3}], s{S_T0} offen')
        a(f's_cmp_lt_u32 s{S_WAVE}, 2')
        a('s_cselect_b64 exec, -1, 0')
        a(f'buffer_load_dword v36, v{V_B}, s[{S_DST}:{S_DST+3}], s{S_T0} offen offset:2048')
        a(f'buffer_load_dword v37, v{V_B}, s[{S_SRC}:{S_SRC+3}], s{S_T0} offen offset:2048')
        self.srd(S_DBG, k+14, 256)
        a(f's_or_b32 s{S_T0}, s2, s{S_WAVE}')
        a('s_bitset1_b32 s50, 31')
        a('s_bitset1_b32 s51, 31')
        a('v_mov_b32 v38, s50')
        a('v_mov_b32 v39, s51')
        a(f's_cmp_eq_u32 s{S_T0}, 0')
        a('s_cselect_b32 exec_lo, 1, 0')
        a('s_mov_b32 exec_hi, 0')
        a(f'buffer_store_dwordx2 v[38:39], off, s[{S_DBG}:{S_DBG+3}], 0 sc1')
        a('s_mov_b64 exec, -1')
        a(f's_branch {dn}')
        a(f'{s1}:')
        a(f's_sub_u32 s{S_U0}, s{S_WAVE}, 4')
        self.srd(S_W, k+6, 524288)
        t3 = a.label('not3')
        a(f's_sub_u32 s{S_U1}, s2, 64')
        a(f's_cmp_ge_u32 s{S_U1}, 128')
        a(f's_cbranch_scc1 {t3}')
        a(f's_lshr_b32 s{S_T0}, s{S_U1}, 6')
        a(f's_lshl_b32 s{S_T0}, s{S_T0}, 16')
        a(f's_and_b32 s{S_T1}, s{S_U1}, 15')
        a(f's_lshl_b32 s{S_T1}, s{S_T1}, 12')
        a(f's_add_u32 s{S_T0}, s{S_T0}, s{S_T1}')
        a(f's_bfe_u32 s{S_T1}, s{S_U1}, 0x20004')
        a(f's_lshl_b32 s{S_T1}, s{S_T1}, 7')
        a(f's_add_u32 s{S_T0}, s{S_T0}, s{S_T1}')
        a(f's_lshl_b32 s{S_T1}, s{S_U0}, 5')
        a(f's_add_u32 s{S_T0}, s{S_T0}, s{S_T1}')
        a(f'v_and_b32 v{V_C}, 15, v{V_LANE}')
        a(f'v_lshlrev_b32 v{V_C}, 1, v{V_C}')
        a(f'v_lshl_add_u32 v{V_C}, v{V_E}, 6, v{V_C}')
        for i in range(8):
            a(f's_add_u32 s{S_T1}, s{S_T0}, {(i & 3)*131072}')
            a(f'buffer_load_ushort v{(96 if i % 2 == 0 else 92) + (i >> 1)}, v{V_C}, s[{S_W}:{S_W+3}], s{S_T1} offen offset:{(i >> 2)*512}')
        a(f's_branch {dn}')
        a(f'{t3}:')
        a(f's_cmp_lg_u32 s{S_U0}, 3')
        a(f's_cbranch_scc1 {dn}')
        a('s_cmp_ge_u32 s2, 64')
        a(f's_cbranch_scc1 {dn}')
        a(f's_lshl_b32 s{S_T0}, s2, 13')
        for t in range(8):
            a(f'buffer_load_dwordx4 v[{32+4*t}:{35+4*t}], v{V_F}, s[{S_W}:{S_W+3}], s{S_T0} offen offset:{64*t}')
        a(f'v_mov_b32 v{V_C}, s{S_KA+8}')
        a(f'v_mov_b32 v{V_D}, s{S_KA+10}')
        a(f'v_cndmask_b32 v{V_C}, v{V_C}, v{V_D}, vcc')
        a(f'v_mov_b32 v{V_D}, s{S_KA+9}')
        a(f'v_mov_b32 v{V_G}, s{S_KA+11}')
        a(f'v_cndmask_b32 v{V_D}, v{V_D}, v{V_G}, vcc')
        a(f's_lshr_b32 s{S_T1}, s2, 4')
        a(f's_lshl_b32 s{S_T1}, s{S_T1}, 9')
        a(f'v_add_u32 v{V_E}, s{S_T1}, v{V_E}')
        a(f'v_add_co_u32 v{V_C}, vcc, v{V_C}, v{V_E}')
        a('s_nop 1')
        a(f'v_addc_co_u32 v{V_D}, vcc, 0, v{V_D}, vcc')
        for t in range(8):
            a(f'global_load_dwordx4 v[{64+4*t}:{67+4*t}], v[{V_C}:{V_C+1}], off offset:{64*t}')
        a(f'{dn}:')

    def late_consts(self):
        a = self.a; o = self.o
        k = S_KA
        self.srd(S_WS, k+16, WS_SIZE)
        self.srd(S_X, k+0, 5120000+4096, shift=4096)
        self.srd(S_W, k+6, 524288)
        self.srd(S_DST, k+4, 640000)
        self.srd(S_SRC, k+2, 640000)
        self.srd(S_OUT, k+12, 5120000)
        a(f'v_and_b32 v{V_A}, 15, v{V_LANE}')
        a(f'v_lshrrev_b32 v{V_B}, 4, v{V_LANE}')
        a(f's_lshr_b32 s{S_HF}, s{S_W3}, 1')
        a(f's_mul_i32 s{S_RING}, s{S_WAVE}, {RINGW}')
        a(f's_and_b32 s{S_T0}, s{S_W3}, 1')
        a(f's_lshl_b32 s{S_T1}, s{S_SET}, 1')
        a(f's_add_u32 s{S_SLICE}, s{S_T0}, s{S_T1}')
        a(f'v_lshrrev_b32 v{V_C}, 3, v{V_A}')
        a(f'v_and_b32 v{V_D}, 1, v{V_B}')
        a(f'v_lshl_or_b32 v{V_C}, v{V_D}, 1, v{V_C}')
        a(f'v_lshrrev_b32 v{V_D}, 2, v{V_A}')
        a(f'v_lshlrev_b32 v{V_D}, 7, v{V_D}')
        a(f'v_lshl_add_u32 v{V_D}, v{V_B}, 10, v{V_D}')
        a(f'v_bfe_u32 v{V_E}, v{V_A}, 1, 1')
        a(f'v_lshl_add_u32 v{V_D}, v{V_E}, 4, v{V_D}')
        a(f'v_and_b32 v{V_E}, 1, v{V_A}')
        a(f'v_lshl_add_u32 v{V_D}, v{V_E}, 3, v{V_D}')
        a(f'v_add_u32 v{V_D}, s{S_RING}, v{V_D}')
        for j in range(4):
            a(f'v_xor_b32 v{V_E}, {j}, v{V_C}')
            a(f'v_lshl_add_u32 v{V_TR+j}, v{V_E}, 5, v{V_D}')
        a(f'v_lshlrev_b32 v{V_WE}, 4, v{V_LANE}')
        a(f'v_add_u32 v{V_AW}, {AP}, v{V_WE}')
        a(f'v_mov_b32 v{V_LB}, {LIST}')
        a(f'v_lshrrev_b32 v{V_C}, 3, v{V_LANE}')
        a(f'v_lshl_add_u32 v{V_LST}, v{V_C}, 4, v{V_LB}')
        a(f'v_and_b32 v{V_D}, 2, v{V_C}')
        a(f'v_and_b32 v{V_E}, 7, v{V_LANE}')
        a(f'v_xor_b32 v{V_E}, v{V_E}, v{V_D}')
        a(f'v_lshlrev_b32 v{V_SWE}, 4, v{V_E}')
        a(f'v_xor_b32 v{V_SWO}, 64, v{V_SWE}')
        a(f's_mov_b32 s{S_M}, 0xfffffe00')
        a(f's_lshl_b32 s{S_T0}, s{S_SLICE}, 7')
        for c in range(4):
            a(f's_add_u32 s{S_XSO+c}, s{S_T0}, {4096 - c*1024}')
        a(f's_mov_b32 s{S_C3}, {(-(R-1)*4096) & 0xffffffff}')
        a(f's_lshl_b32 s{S_WB}, s{S_WAVE}, 16')
        a(f's_add_u32 s{S_WB}, s{S_WB}, {WS_WSW}')
        a(f's_lshl_b32 s{S_T0}, s{S_SET}, 5')
        a(f's_add_u32 s{S_SYO}, s{S_T0}, {M_SYNC}')
        a(f's_xor_b32 s{S_T0}, s{S_T0}, 32')
        a(f's_add_u32 s{S_SYX}, s{S_T0}, {M_SYNC}')
        self.lds_reset()

    def lds_reset(self):
        a = self.a
        for i in range(4): a(f'v_mov_b32 v{104+i}, 0')
        self.fill(AP, 40960, 104, 103)
        a(f'v_lshlrev_b32 v103, 4, v{V_TID}')
        a(f'v_add_u32 v103, {GCNT}, v103')
        a(f'v_cmpx_gt_u32 vcc, 4, v{V_TID}')
        a(f'ds_write_b128 v103, v[104:107]')
        a('s_mov_b64 exec, -1')
        a(f'v_lshlrev_b32 v103, 3, v{V_TID}')
        a(f'v_add_u32 v103, {M_SLOW}, v103')
        a(f'v_cmpx_gt_u32 vcc, 10, v{V_TID}')
        a(f'ds_write_b64 v103, v[104:105]')
        a('s_mov_b64 exec, -1')
        for i in range(4): a(f'v_mov_b32 v{104+i}, 0x40000000')
        self.fill(LIST, 5248, 104, 103)

    def unit_consts(self, slot, glo, ghi, rb, mask):
        a = self.a
        U = V_UN + 4*slot
        a(f'v_mov_b32 v{V_C}, s{ghi}')
        a(f'v_mov_b32 v{V_D}, s{glo}')
        a(f'v_cndmask_b32 v{V_C}, v{V_C}, v{V_D}, s[{S_EX2}:{S_EX2+1}]')
        a(f'v_and_b32 v{U}, s{mask}, v{V_LANE}')
        a(f'v_add_u32 v{U}, s{rb}, v{U}')
        a(f'v_lshlrev_b32 v{U+1}, 2, v{V_C}')
        a(f'v_add_u32 v{U+1}, {GCNT}, v{U+1}')
        a(f'v_lshl_add_u32 v{V_E}, v{V_C}, 9, v{V_LB}')
        a(f'v_lshl_add_u32 v{U+2}, v{U}, 2, v{V_E}')
        a(f'v_lshlrev_b32 v{V_E}, 12, v{V_C}')
        a(f'v_lshrrev_b32 v{V_D}, 5, v{U}')
        a(f'v_lshl_add_u32 v{V_E}, v{V_D}, 10, v{V_E}')
        a(f'v_and_b32 v{V_D}, 3, v{U}')
        a(f'v_lshl_add_u32 v{V_E}, v{V_D}, 8, v{V_E}')
        a(f'v_bfe_u32 v{V_D}, v{U}, 2, 3')
        a(f'v_lshl_add_u32 v{V_E}, v{V_D}, 1, v{V_E}')
        a(f'v_add_u32 v{U+3}, {AP}, v{V_E}')

    def unit_setup(self):
        a = self.a
        a(f'v_cmp_gt_u32 vcc, 32, v{V_LANE}')
        a(f's_mov_b64 s[{S_EX2}:{S_EX2+1}], vcc')
        a(f's_mov_b32 s{S_U2}, 0')
        a(f's_mov_b32 s{S_U3}, 63')
        self.unit_consts(0, S_WAVE, S_WAVE, S_U2, S_U3)
        a(f's_add_u32 s{S_T0}, s{S_WAVE}, 8')
        a(f's_lshl_b32 s{S_T1}, s{S_WAVE}, 1')
        a(f's_sub_u32 s{S_T1}, s{S_T1}, 4')
        a(f's_add_u32 s{S_T2}, s{S_T1}, 1')
        a(f's_cmp_lt_u32 s{S_WAVE}, 2')
        a(f's_cselect_b32 s{S_C0}, s{S_T0}, s{S_T1}')
        a(f's_cselect_b32 s{S_C1}, s{S_T0}, s{S_T2}')
        a(f's_cselect_b32 s{S_U2}, 0, 64')
        a(f's_cselect_b32 s{S_U3}, 63, 31')
        a(f's_cmp_eq_u32 s{S_WAVE}, 7')
        a(f's_cselect_b32 s{S_C0}, 0, s{S_C0}')
        a(f's_cselect_b32 s{S_C1}, 0, s{S_C1}')
        a(f's_cselect_b32 s{S_U2}, 0x200, s{S_U2}')
        self.unit_consts(1, S_C0, S_C1, S_U2, S_U3)

    def read_tags(self):
        a = self.a
        a(f'v_mov_b32 v{V_A}, {M_NONCE}')
        a(f'ds_read_b64 v[{V_C}:{V_C+1}], v{V_A}')
        a('s_waitcnt lgkmcnt(0)')
        a(f'v_readfirstlane_b32 s{S_T0}, v{V_C}')
        a(f'v_readfirstlane_b32 s{S_T1}, v{V_C+1}')
        a('s_nop 1')
        a(f's_and_b32 s{S_T}, s{S_T0}, 0xfff')
        a(f's_bfe_u32 s{S_T+1}, s{S_T0}, 0xc000c')
        a(f's_bfe_u32 s{S_T+2}, s{S_T0}, 0x70018')
        a(f's_lshl_b32 s{S_T0}, s{S_T1}, 7')
        a(f's_or_b32 s{S_T+2}, s{S_T+2}, s{S_T0}')
        a(f's_bfe_u32 s{S_T+3}, s{S_T1}, 0xc0005')
        for k, (mul, add) in enumerate(((5, 0x123), (9, 0x456), (13, 0x789))):
            a(f's_mul_i32 s{S_T0}, s{S_T}, {mul}')
            a(f's_add_u32 s{S_T+1+k}, s{S_T+1+k}, s{S_T0}')
            a(f's_add_u32 s{S_T+1+k}, s{S_T+1+k}, {add}')
            a(f's_and_b32 s{S_T+1+k}, s{S_T+1+k}, 0xfff')

    def xrows(self):
        a = self.a
        sk = a.label('nox')
        a(f's_cmp_eq_u32 s{S_WAVE}, 7')
        a(f's_cbranch_scc1 {sk}')
        self.srd(S_X, S_KA+0, 5120000+4096, shift=4096)
        a(f's_mul_i32 s{S_T0}, s2, 40')
        a(f's_and_b32 s{S_T1}, s{S_WAVE}, 3')
        a(f's_lshl_b32 s{S_T1}, s{S_T1}, 4')
        a(f's_add_u32 s{S_T0}, s{S_T0}, s{S_T1}')
        a(f's_lshl_b32 s{S_T0}, s{S_T0}, 9')
        a(f's_add_u32 s{S_T0}, s{S_T0}, 4096')
        a(f'v_and_b32 v{V_A}, 15, v{V_LANE}')
        a(f'v_lshlrev_b32 v{V_A}, 9, v{V_A}')
        a(f'v_lshrrev_b32 v{V_B}, 4, v{V_LANE}')
        a(f'v_lshl_add_u32 v{V_A}, v{V_B}, 4, v{V_A}')
        for t in range(8):
            a(f'buffer_load_dwordx4 v[{40+4*t}:{43+4*t}], v{V_A}, s[{S_X}:{S_X+3}], s{S_T0} offen offset:{64*t}')
        a(f'{sk}:')

    def t1_set0(self):
        a = self.a; o = self.o
        a('s_waitcnt vmcnt(1)')
        sk = a.label('w0only')
        a(f's_cmp_eq_u32 s{S_WAVE}, 0')
        a(f's_cbranch_scc1 {sk}')
        a('s_waitcnt vmcnt(0)')
        a(f'{sk}:')
        self.ts('ld1')
        a(f's_mov_b32 s{S_C0}, -40')
        a(f's_mov_b32 s{S_C1}, {CNT}')
        a(f's_mov_b32 s{S_C2}, {IMG}')
        a(f'v_mov_b32 v{V_G}, 1')
        def rnd(vd, vs, t):
            a(f'v_mul_u32_u24 v{t}, 0xcccd, v{vd}')
            a(f'v_lshrrev_b32 v{t}, 21, v{t}')
            a(f'v_mad_i32_i24 v{t+1}, v{t}, s{S_C0}, v{vd}')
            a(f'v_lshlrev_b32 v{t+2}, 18, v{vs}')
            a(f'v_lshl_or_b32 v{t+1}, v{t+1}, 12, v{t+2}')
            a(f'v_lshl_add_u32 v{t+3}, v{t}, 2, s{S_C1}')
            a(f'v_lshl_add_u32 v{t+2}, v{t}, 6, s{S_C2}')
            a(f'ds_add_rtn_u32 v{t+3}, v{t+3}, v{V_G}')
        def wr(t):
            a(f'v_cmpx_gt_u32 vcc, 16, v{t+3}')
            a(f'v_lshl_add_u32 v{t+2}, v{t+3}, 2, v{t+2}')
            a(f'ds_write_b32 v{t+2}, v{t+1}')
            a('s_mov_b64 exec, -1')
        rnd(32, 34, 40); rnd(33, 35, 44)
        a(f's_cmp_lt_u32 s{S_WAVE}, 2')
        a(f's_cselect_b64 s[{S_EX2}:{S_EX2+1}], -1, 0')
        a(f's_mov_b64 exec, s[{S_EX2}:{S_EX2+1}]')
        rnd(36, 37, 48)
        a('s_mov_b64 exec, -1')
        a('s_waitcnt lgkmcnt(0)')
        wr(40); wr(44)
        a(f's_mov_b64 exec, s[{S_EX2}:{S_EX2+1}]')
        wr(48)
        self.ts('t1done')
        sk = a.label('nop1'); rt = a.label('nretry'); ok = a.label('nok')
        a(f's_cmp_lg_u32 s{S_WAVE}, 0')
        a(f's_cbranch_scc1 {sk}')
        def chk():
            a('s_waitcnt vmcnt(0)')
            a(f'v_readfirstlane_b32 s{S_T0}, v38')
            a(f'v_readfirstlane_b32 s{S_T1}, v39')
            a('s_nop 1')
            a(f's_and_b32 s{S_T0}, s{S_T0}, s{S_T1}')
            a(f's_bitcmp1_b32 s{S_T0}, 31')
        chk()
        a(f's_cbranch_scc0 {rt}')
        a(f'{ok}:')
        def blk():
            a(f'{rt}:')
            a(f's_add_u32 s{S_POLL}, s{S_POLL}, 1')
            a(f's_cmp_gt_u32 s{S_POLL}, {POLL_MAX}')
            a(f's_cbranch_scc1 {ok}')
            a(f'buffer_load_dwordx2 v[38:39], off, s[{S_DBG}:{S_DBG+3}], 0 sc1')
            chk()
            a(f's_cbranch_scc0 {rt}')
            a(f's_branch {ok}')
        self.deferred.append(blk)
        self.ts('nonce')
        if o.get('ts'): a(f'v_writelane_b32 v{V_TSR}, s{S_POLL}, 30')
        a(f'v_mov_b32 v{V_A}, {M_NONCE}')
        a(f'ds_write_b64 v{V_A}, v[38:39]')
        a(f'{sk}:')
        a('s_waitcnt lgkmcnt(0)')
        a('s_barrier')
        self.ts('B1')
        self.read_tags()
        self.unit_setup()
        a('s_barrier')

    def t1_set1(self):
        a = self.a; o = self.o
        sk = a.label('nou2')
        a(f's_cmp_lg_u32 s{S_U0}, 3')
        a(f's_cbranch_scc1 {sk}')
        a('s_cmp_ge_u32 s2, 64')
        a(f's_cbranch_scc1 {sk}')
        a('s_waitcnt vmcnt(0)')
        self.ts('ld1')
        for t in range(8):
            c = '0' if t == 0 else 'v[96:99]'
            a(f'v_mfma_f32_16x16x32_bf16 v[96:99], v[{32+4*t}:{35+4*t}], v[{64+4*t}:{67+4*t}], {c}')
        a('s_nop 7')
        for r in range(96, 100): a(f'v_mul_f32 v{r}, 0x3fb8aa3b, v{r}')
        for r in range(96, 100): a(f'v_add_u32 v{r}, 0x800, v{r}')
        a(f'{sk}:')
        sk = a.label('not3b')
        a(f's_sub_u32 s{S_U1}, s2, 64')
        a(f's_cmp_ge_u32 s{S_U1}, 128')
        a(f's_cbranch_scc1 {sk}')
        a(f's_lshl_b32 s{S_T0}, s{S_U1}, 12')
        a(f's_lshl_b32 s{S_T1}, s{S_U0}, 10')
        a(f's_add_u32 s{S_T0}, s{S_T0}, s{S_T1}')
        a(f's_add_u32 s{S_T0}, s{S_T0}, {WS_WSW}')
        a('s_waitcnt vmcnt(0)')
        for r in range(4): a(f'v_lshl_or_b32 v{96+r}, v{92+r}, 16, v{96+r}')
        a(f'buffer_store_dwordx4 v[96:99], v{V_WE}, s[{S_WS}:{S_WS+3}], s{S_T0} offen sc1')
        a('s_waitcnt vmcnt(0)')
        a(f'{sk}:')
        self.ts('t1done')
        a('s_waitcnt lgkmcnt(0)')
        a('s_barrier')
        self.ts('B1')
        self.read_tags()
        a(f's_mov_b32 s{S_C0}, 0xfffff000')
        sk = a.label('nou3')
        a(f's_cmp_lg_u32 s{S_U0}, 3')
        a(f's_cbranch_scc1 {sk}')
        a('s_cmp_ge_u32 s2, 64')
        a(f's_cbranch_scc1 {sk}')
        for k in range(4): a(f'v_and_b32 v{96+k}, s{S_C0}, v{96+k}')
        for k in range(4): a(f'v_or_b32 v{96+k}, s{S_T+k}, v{96+k}')
        a(f'v_and_b32 v{V_A}, 15, v{V_LANE}')
        a(f'v_lshrrev_b32 v{V_B}, 4, v{V_LANE}')
        a(f'v_lshl_add_u32 v{V_B}, v{V_A}, 2, v{V_B}')
        a(f'v_lshlrev_b32 v{V_B}, 4, v{V_B}')
        a(f's_lshl_b32 s{S_T0}, s2, 7')
        a(f's_add_u32 s{S_T0}, s{S_T0}, {WS_UTAB}')
        a(f'v_cmpx_gt_u32 vcc, 2, v{V_A}')
        a(f'buffer_store_dwordx4 v[96:99], v{V_B}, s[{S_WS}:{S_WS+3}], s{S_T0} offen sc1')
        a('s_mov_b64 exec, -1')
        self.ts('ust')
        a(f'{sk}:')
        a(f'v_subrev_u32 v{V_F}, 256, v{V_TID}')
        a(f'v_lshlrev_b32 v{V_A}, 4, v{V_F}')
        a(f'v_add_u32 v{V_A}, {IMG}, v{V_A}')
        a(f'v_lshrrev_b32 v{V_B}, 2, v{V_F}')
        a(f'v_lshlrev_b32 v{V_C}, 2, v{V_B}')
        a(f'v_add_u32 v{V_C}, {CNT}, v{V_C}')
        for i in range(4):
            a(f'ds_read_b128 v[{76+4*i}:{79+4*i}], v{V_A} offset:{4096*i}')
            a(f'ds_read_b32 v{92+i}, v{V_C} offset:{256*i}')
        a(f'v_mul_u32_u24 v{V_B}, 16000, v{V_B}')
        a(f'v_and_b32 v{V_D}, 3, v{V_F}')
        a(f'v_lshl_add_u32 v{V_B}, v{V_D}, 4, v{V_B}')
        a(f'v_cmp_eq_u32 s[{S_EX2}:{S_EX2+1}], 3, v{V_D}')
        a(f'v_mov_b32 v{V_E}, 0xffffe000')
        a(f's_lshl_b32 s{S_C1}, s2, 6')
        a('s_waitcnt lgkmcnt(0)')
        for i in range(4):
            a(f'v_cmp_lt_u32 vcc, 16, v{92+i}')
            a(f's_and_b64 vcc, vcc, s[{S_EX2}:{S_EX2+1}]')
            for k in range(3): a(f'v_or_b32 v{76+4*i+k}, s{S_T+k}, v{76+4*i+k}')
            a(f'v_cndmask_b32 v{79+4*i}, v{79+4*i}, v{V_E}, vcc')
            a(f'v_or_b32 v{79+4*i}, s{S_T+3}, v{79+4*i}')
            if i == 3: a(f'v_cmpx_gt_u32 vcc, 232, v{V_F}')
            a(f'buffer_store_dwordx4 v[{76+4*i}:{79+4*i}], v{V_B}, s[{S_WS}:{S_WS+3}], s{S_C1} offen sc1')
            if i == 3: a('s_mov_b64 exec, -1')
            else: a(f's_add_u32 s{S_C1}, s{S_C1}, 1024000')
        self.ts('p3')
        self.unit_setup()
        a('s_waitcnt vmcnt(0)')
        self.ts('tack')
        a('s_barrier')

    def middle(self):
        a = self.a; o = self.o
        E = 72
        a(f'v_and_b32 v{V_A}, 255, v{V_TID}')
        a(f'v_lshrrev_b32 v{V_B}, 8, v{V_TID}')
        a(f'v_lshlrev_b32 v{V_E}, 6, v{V_A}')
        a(f'v_lshl_add_u32 v{V_E}, v{V_B}, 4, v{V_E}')
        a(f's_mul_i32 s{S_C2}, s2, 16000')
        a(f'v_cmp_gt_u32 vcc, 250, v{V_A}')
        a(f's_mov_b64 s[{S_EX2}:{S_EX2+1}], vcc')
        for i in range(8): a(f'v_mov_b32 v{E+i}, {EMPTY}')
        a(f'v_lshlrev_b32 v{V_F}, 4, v{V_TID}')
        a(f's_mov_b32 s{S_C0}, {WS_UTAB}')
        for _ in range(o.get('edelay', 0)): a('s_sleep 2')
        self.ts('eld')
        def eload():
            a(f's_mov_b64 exec, s[{S_EX2}:{S_EX2+1}]')
            a(f'buffer_load_dwordx4 v[{E}:{E+3}], v{V_E}, s[{S_WS}:{S_WS+3}], s{S_C2} offen sc1')
            a(f'buffer_load_dwordx4 v[{E+4}:{E+7}], v{V_E}, s[{S_WS}:{S_WS+3}], s{S_C2} offen offset:32 sc1')
        def uload():
            a(f'buffer_load_dwordx4 v[84:87], v{V_F}, s[{S_WS}:{S_WS+3}], s{S_C0} offen sc1')
        eload(); a('s_mov_b64 exec, -1')
        uload()
        a('s_barrier')
        sk = a.label('nox1')
        a(f's_cmp_eq_u32 s{S_SET}, 0')
        a(f's_cbranch_scc1 {sk}')
        self.xrows()
        a(f'{sk}:')
        if o.get('sweep', 1): self.sweep(0, 11)
        else: a(f'buffer_load_dword v255, off, s[{S_WS}:{S_WS+3}], 0 sc1')
        w46 = a.label('w46'); w46e = a.label('w46e')
        a(f's_sub_u32 s{S_U0}, s{S_WAVE}, 4')
        a(f's_cmp_le_u32 s{S_U0}, 2')
        a(f's_cbranch_scc1 {w46}')
        a('s_waitcnt vmcnt(1)')
        a(f'{w46e}:')
        def blk():
            a(f'{w46}:')
            a('s_waitcnt vmcnt(9)')
            a(f's_branch {w46e}')
        self.deferred.append(blk)
        self.tagcheck(84, V_A, True, V_B, V_C)
        def ure():
            uload(); a('s_waitcnt vmcnt(0)'); self.tagcheck(84, V_A, True, V_B, V_C)
        self.poll_check(V_A, ure, 'u')
        self.ts('uval')
        a(f's_mov_b32 s{S_C0}, 0xfffff000')
        for i in range(4): a(f'v_and_b32 v{84+i}, s{S_C0}, v{84+i}')
        a(f'v_bfe_u32 v{V_A}, v{V_TID}, 2, 1')
        a(f'v_lshrrev_b32 v{V_B}, 7, v{V_TID}')
        a('v_cvt_pk_bf16_f32 v84, v84, v85')
        a('v_cvt_pk_bf16_f32 v85, v86, v87')
        a(f'v_lshl_add_u32 v{V_A}, v{V_A}, 2, v{V_B}')
        a(f'v_mul_u32_u24 v{V_A}, 528, v{V_A}')
        a(f'v_bfe_u32 v{V_B}, v{V_TID}, 3, 4')
        a(f'v_lshl_add_u32 v{V_A}, v{V_B}, 5, v{V_A}')
        a(f'v_and_b32 v{V_B}, 3, v{V_TID}')
        a(f'v_lshl_add_u32 v{V_A}, v{V_B}, 3, v{V_A}')
        a(f'v_add_u32 v{V_A}, {UT}, v{V_A}')
        a(f'ds_write_b64 v{V_A}, v[84:85]')
        a('s_waitcnt lgkmcnt(0)')
        a('s_barrier')
        self.ts('B2')
        a(f's_mov_b64 exec, s[{S_EX2}:{S_EX2+1}]')
        def echeck():
            self.tagcheck(E, V_A, True, V_B, V_C); self.tagcheck(E+4, V_A, False, V_B, V_C)
        echeck()
        def ere():
            eload(); a('s_waitcnt vmcnt(0)'); echeck()
        self.poll_check(V_A, ere, 'e')
        self.ts('eval')
        a(f's_mov_b32 s{S_C0}, 0xfffc0000')
        a(f's_mov_b32 s{S_C1}, {GCNT}')
        a(f's_movk_i32 s{S_U1}, 0x1e00')
        a(f'v_mov_b32 v{V_G}, 1')
        def sort4(k0):
            for k in range(k0, k0+4):
                a(f'v_cmpx_gt_u32 vcc, s{S_C0}, v{E+k}')
                a(f'v_lshrrev_b32 v{V_A}, 12, v{E+k}')
                a(f'v_and_or_b32 v{V_A}, v{V_A}, 60, s{S_C1}')
                a(f'ds_add_rtn_u32 v{80+(k&3)}, v{V_A}, v{V_G}')
            a(f's_mov_b64 exec, s[{S_EX2}:{S_EX2+1}]')
            a('s_waitcnt lgkmcnt(0)')
            for k in range(k0, k0+4):
                a(f'v_cmpx_gt_u32 vcc, s{S_C0}, v{E+k}')
                a(f'v_lshrrev_b32 v{V_A}, 5, v{E+k}')
                a(f'v_and_or_b32 v{V_A}, v{V_A}, s{S_U1}, v{V_LB}')
                a(f'v_lshl_add_u32 v{V_A}, v{80+(k&3)}, 2, v{V_A}')
                a(f'v_lshrrev_b32 v{V_B}, 9, v{E+k}')
                a(f'ds_write_b32 v{V_A}, v{V_B}')
            a(f's_mov_b64 exec, s[{S_EX2}:{S_EX2+1}]')
        sort4(0)
        rare = a.label('rare'); back = a.label('rareb')
        a(f'v_cmp_gt_u32 vcc, s{S_C0}, v{E+4}')
        a(f's_cbranch_vccnz {rare}')
        a(f'{back}:')
        def blk():
            a(f'{rare}:')
            sort4(4)
            a(f'v_lshrrev_b32 v{V_A}, 12, v{E+7}')
            a(f'v_cmpx_eq_u32 vcc, 0xffffe, v{V_A}')
            a(f'v_mov_b32 v{V_A}, {M_SLOW}')
            a(f'ds_write_b32 v{V_A}, v{V_G}')
            a(f's_mov_b64 exec, s[{S_EX2}:{S_EX2+1}]')
            a(f's_branch {back}')
        self.deferred.append(blk)
        a('s_mov_b64 exec, -1')
        a('s_waitcnt lgkmcnt(0)')
        a('s_barrier')
        self.ts('B3')
        sk = a.label('nos')
        a(f's_sub_u32 s{S_U0}, s{S_WAVE}, 4')
        a(f's_cmp_gt_u32 s{S_U0}, 2')
        a(f's_cbranch_scc1 {sk}')
        a(f's_mov_b32 s{S_C0}, 0xfffff000')
        a(f'v_and_b32 v{V_A}, 7, v{V_LANE}')
        a(f'v_mul_u32_u24 v{V_A}, 528, v{V_A}')
        a(f'v_lshrrev_b32 v{V_B}, 4, v{V_LANE}')
        a(f'v_lshl_add_u32 v{V_A}, v{V_B}, 4, v{V_A}')
        a(f'v_add_u32 v{V_A}, {UT}, v{V_A}')
        UF = 208
        for t in range(8):
            a(f'ds_read_b128 v[{UF+4*t}:{UF+4*t+3}], v{V_A} offset:{64*t}')
        a(f'v_and_b32 v{V_A}, 15, v{V_LANE}')
        a(f's_lshl_b32 s{S_T0}, s{S_U0}, 4')
        a(f'v_add_u32 v{V_A}, s{S_T0}, v{V_A}')
        a(f'v_cmp_gt_u32 s[{S_EX}:{S_EX+1}], 40, v{V_A}')
        a(f'v_lshlrev_b32 v{V_C}, 4, v{V_A}')
        a(f's_mul_i32 s{S_T1}, s2, 640')
        a(f's_add_u32 s{S_T1}, s{S_T1}, {WS_STAB}')
        a(f'v_add_u32 v{V_D}, {SDST}, v{V_C}')
        a('s_waitcnt vmcnt(1) lgkmcnt(0)')
        self.ts('sfr')
        for t in range(8):
            c = '0' if t == 0 else 'v[88:91]'
            a(f'v_mfma_f32_16x16x32_bf16 v[88:91], v[{UF+4*t}:{UF+4*t+3}], v[{40+4*t}:{43+4*t}], {c}')
        a(f'v_cmp_eq_u32 vcc, 0, v{V_B}')
        a(f's_and_b64 s[{S_T0+1}:{S_T0+2}], vcc, s[{S_EX}:{S_EX+1}]')
        a(f'v_cmp_eq_u32 vcc, 1, v{V_B}')
        a(f's_and_b64 vcc, vcc, s[{S_EX}:{S_EX+1}]')
        a('s_nop 3')
        for k in range(4): a(f'v_add_u32 v{92+k}, 0x800, v{88+k}')
        for k in range(4): a(f'v_and_b32 v{92+k}, s{S_C0}, v{92+k}')
        for k in range(4): a(f'v_or_b32 v{92+k}, s{S_T+k}, v{92+k}')
        a('s_mov_b64 exec, vcc')
        a(f'ds_write_b128 v{V_D}, v[88:91]')
        a(f's_mov_b64 exec, s[{S_T0+1}:{S_T0+2}]')
        a(f's_mul_i32 s{S_T1}, s2, 640')
        a(f's_add_u32 s{S_T1}, s{S_T1}, {WS_STAB}')
        a(f'buffer_store_dwordx4 v[92:95], v{V_C}, s[{S_WS}:{S_WS+3}], s{S_T1} offen sc1')
        a('s_mov_b64 exec, -1')
        self.ts('sst')
        a(f'{sk}:')
        self.steptab_read()
        a('s_waitcnt lgkmcnt(0)')
        self.steptab()
        self.xprologue()
        self.ts('xp')
        a('s_waitcnt lgkmcnt(0)')
        a('s_barrier')
        self.ts('B3u')
        for t in range(NA): self.wload(t)
        for u in range(2):
            U = V_UN + 4*u
            a(f'ds_read_b32 v{34+u}, v{U+1}')
            a(f'ds_read_b32 v{32+u}, v{U+2}')
        a(f's_mov_b32 s{S_C0}, {WS_STAB}')
        a(f's_movk_i32 s{S_U1}, 0x3f0')
        a(f'v_mov_b32 v{V_F}, {SDST}')
        a('s_waitcnt lgkmcnt(0)')
        self.unit_loads(0); self.unit_loads(1)
        self.ts('sld')
        a('s_waitcnt vmcnt(0) lgkmcnt(0)')
        def scheck():
            a(f'v_mov_b32 v{V_F}, 0')
            for u in range(2):
                a(f'v_cmpx_gt_u32 vcc, v{34+u}, v{V_UN+4*u}')
                self.tagcheck(40+4*u, V_F, False, V_B, V_C)
                a('s_mov_b64 exec, -1')
        scheck()
        def sre():
            a(f's_mov_b32 s{S_C0}, {WS_STAB}')
            for u in range(2):
                a(f'v_cmpx_gt_u32 vcc, v{34+u}, v{V_UN+4*u}')
                a(f'buffer_load_dwordx4 v[{40+4*u}:{43+4*u}], v{36+u}, s[{S_WS}:{S_WS+3}], s{S_C0} offen sc1')
                a('s_mov_b64 exec, -1')
            a('s_waitcnt vmcnt(0)')
            scheck()
        self.poll_check(V_F, sre, 's')
        self.ts('sval')
        a(f's_mov_b32 s{S_FIRST}, 0')
        a(f's_mov_b32 s{S_C0}, 0xfffff000')
        for u in range(2): self.unit_weights(u)
        self.rare_c_units()
        a('s_waitcnt lgkmcnt(0)')
        a('s_barrier')
        self.ts('B4')

    def unit_loads(self, u):
        a = self.a
        U = V_UN + 4*u
        a(f'v_cmpx_gt_u32 vcc, v{34+u}, v{U}')
        a(f'v_lshrrev_b32 v{V_A}, 5, v{32+u}')
        a(f'v_and_b32 v{36+u}, 0x3fff0, v{V_A}')
        a(f'v_lshlrev_b32 v{V_A}, 1, v{32+u}')
        a(f'v_and_or_b32 v{38+u}, v{V_A}, s{S_U1}, v{V_F}')
        a(f'buffer_load_dwordx4 v[{40+4*u}:{43+4*u}], v{36+u}, s[{S_WS}:{S_WS+3}], s{S_C0} offen sc1')
        a(f'ds_read_b128 v[{48+4*u}:{51+4*u}], v{38+u}')
        a('s_mov_b64 exec, -1')

    def unit_weights(self, u):
        a = self.a
        U = V_UN + 4*u; sv = 40+4*u; dv = 48+4*u; le = 32+u
        a(f'v_cmpx_gt_u32 vcc, v{34+u}, v{U}')
        for h in range(4): a(f'v_and_b32 v{sv+h}, s{S_C0}, v{sv+h}')
        for h in (0, 2): a(f'v_pk_add_f32 v[{sv+h}:{sv+h+1}], v[{sv+h}:{sv+h+1}], v[{dv+h}:{dv+h+1}]')
        for h in range(4): a(f'v_mul_f32 v{dv+h}, 0x3e4ccccd, v{sv+h}')
        for h in range(4): a(f'v_max_f32 v{sv+h}, v{sv+h}, v{dv+h}')
        for h in range(4): a(f'v_exp_f32 v{sv+h}, v{sv+h}')
        a(f'v_bfe_u32 v{V_A}, v{le}, 3, 2')
        a(f'v_lshl_add_u32 v{V_A}, v{V_A}, 6, v{U+3}')
        a(f'v_cvt_pk_bf16_f32 v{dv}, v{sv}, v{sv+1}')
        a(f'v_cvt_pk_bf16_f32 v{dv+1}, v{sv+2}, v{sv+3}')
        a(f'ds_write_b16 v{V_A}, v{dv}')
        a(f'ds_write_b16_d16_hi v{V_A}, v{dv} offset:16')
        a(f'ds_write_b16 v{V_A}, v{dv+1} offset:32')
        a(f'ds_write_b16_d16_hi v{V_A}, v{dv+1} offset:48')
        a('s_mov_b64 exec, -1')

    def rare_c_units(self):
        a = self.a
        rare = a.label('rareC'); back = a.label('rareCb')
        a(f's_cmp_lg_u32 s{S_AOFF}, 0')
        a(f's_cbranch_scc1 {rare}')
        a(f'{back}:')
        def blk():
            a(f'{rare}:')
            a(f's_cmp_gt_u32 s{S_WAVE}, 4')
            a(f's_cbranch_scc1 {back}')
            a(f'v_cmp_gt_u32 vcc, 32, v{V_LANE}')
            a(f's_mov_b64 s[{S_EX2}:{S_EX2+1}], vcc')
            a(f's_lshl_b32 s{S_U0}, s{S_WAVE}, 1')
            a(f's_add_u32 s{S_U1}, s{S_U0}, 1')
            a(f's_mov_b32 s{S_U2}, 96'); a(f's_mov_b32 s{S_U3}, 31')
            self.unit_consts(0, S_U0, S_U1, S_U2, S_U3)
            a(f'ds_read_b32 v34, v{V_UN+1}')
            a(f'ds_read_b32 v32, v{V_UN+2}')
            a(f's_mov_b32 s{S_C0}, {WS_STAB}')
            a(f's_movk_i32 s{S_U1}, 0x3f0')
            a(f'v_mov_b32 v{V_F}, {SDST}')
            a('s_waitcnt lgkmcnt(0)')
            self.unit_loads(0)
            a('s_waitcnt vmcnt(0) lgkmcnt(0)')
            def chk():
                a(f'v_mov_b32 v{V_F}, 0')
                a(f'v_cmpx_gt_u32 vcc, v34, v{V_UN}')
                self.tagcheck(40, V_F, False, V_B, V_C)
                a('s_mov_b64 exec, -1')
                a(f'v_and_b32 v{V_F}, 0xfff, v{V_F}')
                a(f'v_cmp_ne_u32 vcc, 0, v{V_F}')
            lp = a.label('cpoll'); dn = a.label('cdone')
            a(f'{lp}:')
            chk()
            a(f's_cbranch_vccz {dn}')
            a(f's_add_u32 s{S_POLL}, s{S_POLL}, 1')
            a(f's_cmp_gt_u32 s{S_POLL}, {POLL_MAX}')
            a(f's_cbranch_scc1 {dn}')
            a(f'v_cmpx_gt_u32 vcc, v34, v{V_UN}')
            a(f'buffer_load_dwordx4 v[40:43], v36, s[{S_WS}:{S_WS+3}], s{S_C0} offen sc1')
            a('s_mov_b64 exec, -1')
            a('s_waitcnt vmcnt(0)')
            a(f's_branch {lp}')
            a(f'{dn}:')
            a(f's_mov_b32 s{S_C0}, 0xfffff000')
            self.unit_weights(0)
            a(f's_mov_b32 s{S_FIRST}, 0')
            a(f's_branch {back}')
        self.deferred.append(blk)

    def steptab_read(self):
        a = self.a
        a(f'v_lshlrev_b32 v{V_A}, 2, v{V_LANE}')
        a(f'v_add_u32 v{V_A}, {GCNT}, v{V_A}')
        a(f'v_mov_b32 v{V_B}, {M_SLOW}')
        a(f'ds_read_b32 v84, v{V_A}')
        a(f'ds_read_b32 v85, v{V_B}')

    def steptab(self):
        a = self.a
        a('v_cmp_lt_u32 vcc, 0x80, v84')
        a(f's_and_b32 s{S_T0}, vcc_lo, 0x3ff')
        a(f'v_readfirstlane_b32 s{S_T1}, v85')
        a('v_cmp_lt_u32 vcc, 0x60, v84')
        a(f's_and_b32 s{S_AOFF}, vcc_lo, 0x3ff')
        a(f's_or_b32 s{S_T0}, s{S_T0}, s{S_T1}')
        a(f's_cmp_lg_u32 s{S_T0}, 0')
        a('s_cbranch_scc1 L_slow')
        a(f'v_add_u32 v84, 31, v84')
        a(f'v_lshrrev_b32 v84, 5, v84')
        a(f's_mul_i32 s{S_T2}, s{S_HF}, 5')
        a(f's_mov_b32 s{S_T1}, s{S_T2}')
        N = (S_U0, S_U1, S_U2, S_U3, S_C0)
        for g in range(5):
            a(f'v_readlane_b32 s{N[g]}, v84, s{S_T1}')
            if g < 4: a(f's_add_u32 s{S_T1}, s{S_T1}, 1')
        a(f's_lshl_b32 s{S_T2}, s{S_T2}, 9')
        a(f'v_mov_b32 v{V_TAB}, 5120')
        a(f's_mov_b32 s{S_T0}, 0')
        for g in range(5):
            a(f'v_subrev_u32 v{V_A}, s{S_T0}, v{V_LANE}')
            a(f'v_lshlrev_b32 v{V_A}, 7, v{V_A}')
            a(f'v_cmp_le_u32 vcc, s{S_T0}, v{V_LANE}')
            a(f'v_add_u32 v{V_A}, s{S_T2}, v{V_A}')
            a(f's_add_u32 s{S_T0}, s{S_T0}, s{N[g]}')
            a(f's_add_u32 s{S_T2}, s{S_T2}, 512')
            a(f'v_cndmask_b32 v{V_TAB}, v{V_TAB}, v{V_A}, vcc')
        a(f'v_mov_b32 v{V_A}, 5120')
        a(f'v_cmp_le_u32 vcc, s{S_T0}, v{V_LANE}')
        a(f's_lshl_b32 s{S_NPK}, s{N[4]}, 4')
        for g in (3, 2, 1, 0):
            a(f's_or_b32 s{S_NPK}, s{S_NPK}, s{N[g]}')
            if g: a(f's_lshl_b32 s{S_NPK}, s{S_NPK}, 4')
        a(f'v_cndmask_b32 v{V_TAB}, v{V_TAB}, v{V_A}, vcc')

    def idx_read(self):
        a = self.a
        a(f'v_readlane_b32 s{S_T0}, v{V_TAB}, s{S_J}')
        a(f's_add_u32 s{S_J}, s{S_J}, 1')
        a('s_nop 0')
        a(f'v_add_u32 v{V_G}, s{S_T0}, v{V_LST}')
        a(f'ds_read_b128 v[{V_IDX}:{V_IDX+3}], v{V_G}')

    def xprologue(self):
        a = self.a
        T = 92
        a('s_nop 0')
        for j in range(R):
            a(f'v_readlane_b32 s{S_T0}, v{V_TAB}, {j}')
            a('s_nop 1')
            a(f'v_add_u32 v{V_G}, s{S_T0}, v{V_LST}')
            a(f'ds_read_b128 v[{T+4*j}:{T+4*j+3}], v{V_G}')
        a(f's_mov_b32 s{S_J}, {R}')
        a(f's_mov_b32 s{S_SLOT}, 0')
        a('s_waitcnt lgkmcnt(0)')
        for j in range(R):
            a(f's_add_u32 m0, s{S_RING}, {j*4096}')
            for c in range(4):
                sw = V_SWE if c % 2 == 0 else V_SWO
                a(f'v_and_or_b32 v{T+4*j+c}, v{T+4*j+c}, s{S_M}, v{sw}')
            for c in range(4):
                a(f'buffer_load_dwordx4 v{T+4*j+c}, s[{S_X}:{S_X+3}], s{S_XSO+c} offen offset:{c*1024} lds')
        self.idx_read()

    def sweep(self, base, shift, dst=255, tmp=254):
        a = self.a
        a(f's_lshr_b32 s{S_T0}, s2, 3')
        a(f's_lshl_b32 s{S_T0}, s{S_T0}, 3')
        a(f's_add_u32 s{S_T0}, s{S_T0}, s{S_WAVE}')
        a(f's_lshl_b32 s{S_T0}, s{S_T0}, {shift}')
        a(f's_add_u32 s{S_T0}, s{S_T0}, {WS_WSW + base}')
        a(f'v_lshlrev_b32 v{tmp}, 7, v{V_LANE}')
        a(f'v_cmpx_gt_u32 vcc, {(1 << shift) >> 7}, v{V_LANE}')
        a(f'buffer_load_dword v{dst}, v{tmp}, s[{S_WS}:{S_WS+3}], s{S_T0} offen sc1')
        a('s_mov_b64 exec, -1')

    def wflag_load(self, dst):
        a = self.a
        a(f's_lshl_b32 s{S_T1}, s{S_WAVE}, 10')
        a(f's_add_u32 s{S_T1}, s{S_T1}, {WS_WFLG}')
        a(f'buffer_load_dwordx4 v[{dst}:{dst+3}], v{V_WE}, s[{S_WS}:{S_WS+3}], s{S_T1} offen sc1')

    def wload(self, t):
        a = self.a
        dst = V_W + 16*(t % NPRE)
        a(f's_add_u32 s{S_T1}, s{S_WB}, {t*4096}')
        for j in range(4):
            a(f'buffer_load_dwordx4 v[{dst+4*j}:{dst+4*j+3}], v{V_WE}, s[{S_WS}:{S_WS+3}], s{S_T1} offen offset:{j*1024} {self.o.get("wfl", "sc1")}')

    def group_end_math(self):
        a = self.a
        for h in range(4): a(f'v_fmaak_f32 v{V_DEN+h}, 4.0, v{V_DEN+h}, 0x3189705f')
        for h in range(4): a(f'v_rcp_f32 v{V_DEN+h}, v{V_DEN+h}')
        a('s_nop 0')
        for j in range(4):
            for h in (0, 2):
                r = V_ACC + 4*j + h
                a(f'v_pk_mul_f32 v[{r}:{r+1}], v[{r}:{r+1}], v[{V_DEN+h}:{V_DEN+h+1}]')
        if self.o.get('cvtidx', 1):
            a(f's_set_gpr_idx_on s{S_T0}, gpr_idx(DST)')
            a('s_nop 0')
            for j in range(4):
                for h in (0, 2):
                    r = V_ACC + 4*j + h
                    a(f'v_cvt_pk_bf16_f32 v{V_PK + 2*j + h//2}, v{r}, v{r+1}')
            a('s_set_gpr_idx_off')
        else:
            for j in range(4):
                for h in (0, 2):
                    r = V_ACC + 4*j + h
                    a(f'v_cvt_pk_bf16_f32 v{92 + 2*j + h//2}, v{r}, v{r+1}')
            a(f's_set_gpr_idx_on s{S_T0}, gpr_idx(DST)')
            a('s_nop 0')
            for k in range(8): a(f'v_mov_b32 v{V_PK+k}, v{92+k}')
            a('s_set_gpr_idx_off')
        for i in range(0, 20, 2): a(f'v_mov_b64 v[{V_ACC+i}:{V_ACC+i+1}], 0')

    def aggregate(self):
        a = self.a; o = self.o
        for i in range(0, 20, 2): a(f'v_mov_b64 v[{V_ACC+i}:{V_ACC+i+1}], 0')
        for i in range(4): a(f'v_mov_b32 v{V_ONE+i}, 0x3f803f80')
        if o.get('aprio'):
            sk = a.label('aprio')
            a(f's_cmp_eq_u32 s{S_SET}, 0')
            a(f's_cbranch_scc1 {sk}')
            a(f's_setprio {o["aprio"]}')
            a(f'{sk}:')
        a(f's_movk_i32 s{S_C2}, 0x1000')
        a(f's_mov_b32 s{S_G}, 0')
        a(f's_mov_b32 s{S_JC}, 0')
        def addr():
            a(f'v_readlane_b32 s{S_T1}, v{V_TAB}, s{S_JC}')
            a(f's_add_u32 s{S_JC}, s{S_JC}, 1')
            a(f's_lshl_b32 s{S_T1}, s{S_T1}, 3')
            a(f'v_add_u32 v{V_TW}, s{S_T1}, v{V_AW}')
        def reads():
            a(f'ds_read_b128 v[{V_AF}:{V_AF+3}], v{V_TW}')
            for j in range(4):
                a(f'ds_read_b64_tr_b16 v[{V_BF+4*j}:{V_BF+4*j+1}], v{V_TR+j}')
                a(f'ds_read_b64_tr_b16 v[{V_BF+4*j+2}:{V_BF+4*j+3}], v{V_TR+j} offset:512')
        def rowwait():
            a(f's_waitcnt vmcnt({4*(R-1)})')
        a(f's_and_b32 s{S_LEFT}, s{S_NPK}, 15')
        a(f's_lshr_b32 s{S_NPK}, s{S_NPK}, 4')
        addr()
        rowwait()
        reads()
        Lt = a.label('agg_top'); Le = a.label('agg_ge'); Ld = a.label('agg_done')
        a(f's_cmp_eq_u32 s{S_LEFT}, 0')
        a(f's_cbranch_scc1 {Le}')
        a(f'{Lt}:')
        a('s_waitcnt lgkmcnt(0)')
        sw = lambda c: V_SWE if c % 2 == 0 else V_SWO
        mf = lambda d, b: a(f'v_mfma_f32_16x16x32_bf16 v[{d}:{d+3}], v[{V_AF}:{V_AF+3}], v[{b}:{b+3}], v[{d}:{d+3}]')
        dma = lambda c: a(f'buffer_load_dwordx4 v{V_IDX+c}, s[{S_X}:{S_X+3}], s{S_XSO+c} offen offset:{c*1024} lds')
        mf(V_DEN, V_ONE)
        for c in range(4): a(f'v_and_or_b32 v{V_IDX+c}, v{V_IDX+c}, s{S_M}, v{sw(c)}')
        a(f's_add_u32 m0, s{S_RING}, s{S_SLOT}')
        mf(V_ACC, V_BF)
        dma(0)
        mf(V_ACC+4, V_BF+4)
        dma(1)
        mf(V_ACC+8, V_BF+8)
        dma(2)
        mf(V_ACC+12, V_BF+12)
        dma(3)
        a(f's_add_u32 s{S_SLOT}, s{S_SLOT}, 4096')
        a(f's_cmp_eq_u32 s{S_SLOT}, {R*4096}')
        a(f's_cselect_b32 s{S_SLOT}, 0, s{S_SLOT}')
        a(f's_cselect_b32 s{S_DELTA}, s{S_C3}, s{S_C2}')
        addr()
        for j in range(4): a(f'v_add_u32 v{V_TR+j}, s{S_DELTA}, v{V_TR+j}')
        rowwait()
        reads()
        self.idx_read()
        a(f's_sub_u32 s{S_LEFT}, s{S_LEFT}, 1')
        a(f's_cmp_lg_u32 s{S_LEFT}, 0')
        a(f's_cbranch_scc1 {Lt}')
        a(f'{Le}:')
        if o.get('sweep2', 1):
            wq = a.label('agg_wq'); wqb = a.label('agg_wqb')
            a(f's_cmp_eq_u32 s{S_G}, 3')
            a(f's_cbranch_scc1 {wq}')
            a(f'{wqb}:')
            def blk():
                a(f'{wq}:')
                self.sweep(0, 11, 101, 102)
                a(f's_branch {wqb}')
            self.deferred.append(blk)
        a(f's_lshl_b32 s{S_T0}, s{S_G}, 3')
        a(f's_add_u32 s{S_G}, s{S_G}, 1')
        self.group_end_math()
        a(f's_cmp_eq_u32 s{S_G}, 5')
        a(f's_cbranch_scc1 {Ld}')
        a(f's_and_b32 s{S_LEFT}, s{S_NPK}, 15')
        a(f's_lshr_b32 s{S_NPK}, s{S_NPK}, 4')
        a(f's_cmp_lg_u32 s{S_LEFT}, 0')
        a(f's_cbranch_scc1 {Lt}')
        a(f's_branch {Le}')
        a(f'{Ld}:')

    def agg_write(self):
        a = self.a
        a('L_aggw:')
        a(f'v_and_b32 v{V_C}, 15, v{V_LANE}')
        a(f'v_lshrrev_b32 v{V_A}, 4, v{V_LANE}')
        a(f'v_bfe_u32 v{V_D}, v{V_C}, 1, 2')
        a(f'v_lshrrev_b32 v{V_E}, 3, v{V_C}')
        a(f'v_lshl_add_u32 v{V_F}, v{V_E}, 2, v{V_D}')
        a(f'v_and_b32 v{V_G}, 1, v{V_C}')
        a(f'v_lshlrev_b32 v{V_G}, 3, v{V_G}')
        a(f's_mul_i32 s{S_T0}, s{S_SET}, {4*RINGW}')
        a(f's_and_b32 s{S_T1}, s{S_SLICE}, 1')
        a(f's_lshl_b32 s{S_T2}, s{S_T1}, 13')
        a(f's_add_u32 s{S_T2}, s{S_T2}, s{S_T0}')
        a(f's_lshl_b32 s{S_T1}, s{S_T1}, 12')
        a(f's_add_u32 s{S_T1}, s{S_T1}, s{S_T0}')
        a(f'v_lshl_add_u32 v{V_MF}, v{V_D}, 8, v{V_G}')
        a(f'v_lshl_add_u32 v{V_MF}, v{V_E}, 10, v{V_MF}')
        a(f'v_add_u32 v{V_MF}, s{S_T2}, v{V_MF}')
        a(f'v_lshl_add_u32 v{V_MF+1}, v{V_D}, 7, v{V_G}')
        a(f'v_lshl_add_u32 v{V_MF+1}, v{V_E}, 9, v{V_MF+1}')
        a(f'v_add_u32 v{V_MF+1}, s{S_T1}, v{V_MF+1}')
        a(f'v_lshrrev_b32 v{V_B}, 4, v{V_LANE}')
        for par in range(2):
            a(f'v_add_u32 v{V_TW}, {4*par}, v{V_B}')
            a(f'v_xor_b32 v{V_D}, v{V_C}, v{V_TW}')
            a(f'v_lshlrev_b32 v{V_D}, 4, v{V_D}')
            a(f'v_lshl_add_u32 v{V_D}, v{V_B}, 8, v{V_D}')
            a(f'v_add_u32 v{104+par}, s{S_T0}, v{V_D}')
            a(f'v_and_b32 v{V_D}, 7, v{V_C}')
            a(f'v_xor_b32 v{V_D}, v{V_D}, v{V_TW}')
            a(f'v_lshlrev_b32 v{V_D}, 4, v{V_D}')
            a(f'v_lshl_add_u32 v{V_D}, v{V_B}, 7, v{V_D}')
            a(f'v_add_u32 v{106+par}, s{S_T0}, v{V_D}')
        a('s_waitcnt vmcnt(0) lgkmcnt(0)')
        self.wload(NA); self.wload(NA+1)
        self.ts('aggdone')
        a(f'v_mov_b32 v{V_AF+2}, v{V_E}'); a(f'v_mov_b32 v{V_AF+3}, v{V_F}')
        self.setsync(1)
        a(f'v_mov_b32 v{V_F}, v{V_AF+3}')
        self.ts('B5')
        end = a.label('aggw_end'); h1 = a.label('aggw_h1')
        a(f's_cmp_eq_u32 s{S_HF}, 1')
        a(f's_cbranch_scc1 {h1}')
        for hf in range(2):
            if hf == 1: a(f'{h1}:')
            for gg in range(5):
                node0 = 20*hf + 4*gg
                mt, mb = node0 >> 4, node0 & 15
                TS = 1024 if mt < 2 else 512
                ad = V_AF + (gg & 1)
                a(f'v_add_u32 v{ad}, {mb}, v{V_A}')
                a(f'v_xor_b32 v{ad}, v{ad}, v{V_F}')
                a(f'v_lshl_add_u32 v{ad}, v{ad}, 4, v{V_MF + (0 if mt < 2 else 1)}')
                for j in range(4):
                    pk = V_PK + 8*gg + 2*j
                    a(f'ds_write_b64 v{ad}, v[{pk}:{pk+1}] offset:{mt*16384 + 2*j*TS}')
            if hf == 0: a(f's_branch {end}')
        a(f'{end}:')
        self.wload(NA+2)
        self.setsync(2)
        self.ts('B6')

    def gemm(self):
        a = self.a
        n = NPRE
        AB = [80, 92]
        def aggread(t):
            buf = AB[t & 1]; par = t & 1
            for mt in range(2):
                a(f'ds_read_b128 v[{buf+4*mt}:{buf+4*mt+3}], v{104+par} offset:{mt*16384 + t*1024}')
            a(f'ds_read_b128 v[{buf+8}:{buf+11}], v{106+par} offset:{32768 + t*512}')
        if self.o.get('gprio'):
            sk = a.label('gprio')
            a(f's_cmp_eq_u32 s{S_SET}, 0')
            a(f's_cbranch_scc1 {sk}')
            a(f's_setprio {self.o["gprio"]}')
            a(f'{sk}:')
        def aggread_list(t):
            buf = AB[t & 1]; par = t & 1
            return [f'ds_read_b128 v[{buf+4*mt}:{buf+4*mt+3}], v{104+par} offset:{mt*16384 + t*1024}' for mt in range(2)] + \
                   [f'ds_read_b128 v[{buf+8}:{buf+11}], v{106+par} offset:{32768 + t*512}']
        def wload_list(t):
            dst = V_W + 16*(t % n)
            return [f's_add_u32 s{S_T1}, s{S_WB}, {t*4096}'] + \
                   [f'buffer_load_dwordx4 v[{dst+4*j}:{dst+4*j+3}], v{V_WE}, s[{S_WS}:{S_WS+3}], s{S_T1} offen offset:{j*1024} {self.o.get("wfl", "sc1")}' for j in range(4)]
        aggread(0)
        for t in range(16):
            waits = []
            if t >= NA and not self.o.get('nowb'): waits.append(f'vmcnt({4*(min(15, NA+2+t) - t)})')
            waits.append('lgkmcnt(0)')
            a('s_waitcnt ' + ' '.join(waits))
            fill = []
            if t + 1 < 16: fill += aggread_list(t+1)
            if NA + 3 + t < 16 and not self.o.get('nowb'): fill += wload_list(NA + 3 + t)
            w = V_W + 16*(t % n); b = AB[t & 1]
            k = 0
            for mt in range(3):
                for j in range(4):
                    acc = V_ACC + 16*mt + 4*j
                    c = '0' if t == 0 else f'v[{acc}:{acc+3}]'
                    a(f'v_mfma_f32_16x16x32_bf16 v[{acc}:{acc+3}], v[{w+4*j}:{w+4*j+3}], v[{b+4*mt}:{b+4*mt+3}], {c}')
                    if k < len(fill): a(fill[k]); k += 1
            if t in (3, 7, 11): self.ts(f'g{t}')
        self.ts('gemm1')

    def finish(self):
        a = self.a
        P = V_W
        a(f's_mul_i32 s{S_T0}, s{S_W3}, {RINGW}')
        a(f's_add_u32 s{S_T0}, s{S_T0}, {4*RINGW}')
        a(f'v_add_u32 v{V_D}, s{S_T0}, v{V_WE}')
        s0 = a.label('fin0')
        a(f's_cmp_eq_u32 s{S_SET}, 0')
        a(f's_cbranch_scc1 {s0}')
        a('s_setprio 0')
        self.setsync(3)
        for i in range(12):
            a(f'ds_write_b128 v{V_D}, v[{V_ACC+4*i}:{V_ACC+4*i+3}] offset:{1024*i}')
        self.signal(4)
        a('s_branch L_fin')
        a(f'{s0}:')
        a(f'v_and_b32 v{V_A}, 15, v{V_LANE}')
        a(f'v_lshrrev_b32 v{V_B}, 4, v{V_LANE}')
        a(f'v_and_b32 v{V_C}, 1, v{V_B}')
        a(f'v_lshrrev_b32 v{V_G}, 1, v{V_B}')
        a(f'v_lshlrev_b32 v{V_C}, 5, v{V_C}')
        a(f'v_lshl_add_u32 v{V_C}, v{V_G}, 4, v{V_C}')
        a(f'v_lshl_add_u32 v{V_C}, v{V_A}, 9, v{V_C}')
        a(f's_mul_i32 s{S_T0}, s2, {40*512}')
        a(f's_lshl_b32 s{S_T1}, s{S_W3}, 7')
        a(f's_add_u32 s{S_T0}, s{S_T0}, s{S_T1}')
        a(f'v_cmp_gt_u32 s[{S_EX2}:{S_EX2+1}], 8, v{V_A}')
        self.waitfor(4, own=False)
        for i in range(12):
            a(f'ds_read_b128 v[{P+4*i}:{P+4*i+3}], v{V_D} offset:{1024*i}')
        for mt in range(3):
            a(f's_waitcnt lgkmcnt({8-4*mt})')
            for j in range(4):
                acc = V_ACC + 16*mt + 4*j; p = P + 16*mt + 4*j
                for h in (0, 2):
                    a(f'v_pk_add_f32 v[{acc+h}:{acc+h+1}], v[{acc+h}:{acc+h+1}], v[{p+h}:{p+h+1}]')
            for jp in range(2):
                R0 = P + 16*mt + 4*jp
                for jj in range(2):
                    acc = V_ACC + 16*mt + 4*(2*jp+jj)
                    a(f'v_cvt_pk_bf16_f32 v{R0+2*jj}, v{acc}, v{acc+1}')
                    a(f'v_cvt_pk_bf16_f32 v{R0+2*jj+1}, v{acc+2}, v{acc+3}')
            a(f's_add_u32 s{S_T1}, s{S_T0}, {mt*16*512}')
            a('s_nop 0')
            for jp in range(2):
                R0 = P + 16*mt + 4*jp
                a(f'v_permlane16_swap_b32 v{R0}, v{R0+2}')
                a(f'v_permlane16_swap_b32 v{R0+1}, v{R0+3}')
            if mt == 2: a(f's_mov_b64 exec, s[{S_EX2}:{S_EX2+1}]')
            for jp in range(2):
                R0 = P + 16*mt + 4*jp
                a(f'buffer_store_dwordx4 v[{R0}:{R0+3}], v{V_C}, s[{S_OUT}:{S_OUT+3}], s{S_T1} offen offset:{64*jp}')
        a('L_fin:')
        a('s_mov_b64 exec, -1')
        self.ts('end')
        if self.o.get('ts') == 1:
            a(f's_lshl_b32 s{S_T0}, s2, 3')
            a(f's_add_u32 s{S_T0}, s{S_T0}, s{S_WAVE}')
            a(f's_lshl_b32 s{S_T0}, s{S_T0}, 7')
            a(f's_add_u32 s{S_T0}, s{S_T0}, {WS_TS}')
            a(f'v_writelane_b32 v{V_TSR}, s{S_POLL}, 31')
            a(f'v_lshlrev_b32 v{V_A}, 2, v{V_LANE}')
            a(f'v_cmpx_gt_u32 vcc, 32, v{V_LANE}')
            a(f'buffer_store_dword v{V_TSR}, v{V_A}, s[{S_WS}:{S_WS+3}], s{S_T0} offen')
            a('s_mov_b64 exec, -1')

    def slow_path(self):
        from slowpath import emit_slow
        emit_slow(self)

    def build(self):
        a = self.a; o = self.o
        a(f'; @launch grid=({NB},1,1) block=(512,1,1) lds={LDS_SIZE}')
        a('.amdgcn_target "amdgcn-amd-amdhsa--gfx950"')
        a('.text')
        a(f'.globl {KNAME}')
        a('.p2align 8')
        a(f'.type {KNAME},@function')
        a(f'{KNAME}:')
        self.prologue()
        self.issue_loads()
        self.ts('issue')
        self.srd(S_DBG, S_KA+14, 256)
        a('s_barrier')
        self.ts('B0')
        self.late_consts()
        sk = a.label('nop0')
        a(f's_cmp_lg_u32 s{S_WAVE}, 0')
        a(f's_cbranch_scc1 {sk}')
        a(f'buffer_load_dwordx2 v[38:39], off, s[{S_DBG}:{S_DBG+3}], 0 sc1')
        a(f'{sk}:')
        a(f's_cmp_eq_u32 s{S_SET}, 1')
        a('s_cbranch_scc1 L_set1')
        self.t1_set0()
        a('s_branch L_mid')
        a('L_set1:')
        self.t1_set1()
        a('L_mid:')
        self.middle()
        self.aggregate()
        self.agg_write()
        self.gemm()
        self.finish()
        a('s_branch L_end')
        for fn in list(self.deferred): fn()
        a('L_hot_end:')
        n0 = len(self.deferred)
        self.slow_path()
        for fn in self.deferred[n0:]: fn()
        a('L_end:')
        a('s_waitcnt vmcnt(0)')
        a('s_endpgm')
        a('.section .rodata,"a"')
        a('.p2align 6')
        a(f'.amdhsa_kernel {KNAME}')
        a('  .amdhsa_next_free_vgpr 256')
        a('  .amdhsa_next_free_sgpr 102')
        a('  .amdhsa_accum_offset 256')
        a('  .amdhsa_group_segment_fixed_size 0')
        a('  .amdhsa_kernarg_size 72')
        a('  .amdhsa_user_sgpr_count 2')
        a('  .amdhsa_user_sgpr_kernarg_segment_ptr 1')
        a('  .amdhsa_system_sgpr_workgroup_id_x 1')
        a('  .amdhsa_float_denorm_mode_32 3')
        a('  .amdhsa_float_denorm_mode_16_64 3')
        a('.end_amdhsa_kernel')
        return a


def generate(path, **opt):
    global NA
    NA = opt.get('na', 2)
    g = Gen(opt)
    a = g.build()
    probs = check(a.lines)
    open(path, 'w').write(a.text())
    json.dump(g.tsn, open(path + '.ts.json', 'w'))
    return probs

if __name__ == '__main__':
    ap = argparse.ArgumentParser()
    ap.add_argument('out')
    for name, dflt in (('ts', 0), ('cpf', 1), ('sweep', 1), ('edelay', 0), ('prio', 0), ('cvtidx', 1), ('sweep2', 1), ('gprio', 0), ('na', 2), ('nowb', 0), ('aprio', 0), ('touch', 0), ('tw', 7), ('cpf2', 0)):
        ap.add_argument('--' + name, type=int, default=dflt)
    ap.add_argument('--tsf', default='')
    ap.add_argument('--wfl', default='sc1')
    args = ap.parse_args()
    o = vars(args); out = o.pop('out')
    if o['wfl'] == 'plain': o['wfl'] = ''
    p = generate(out, **o)
    print('hazards:', len(p))
```

```python
import sys, argparse, json
from asmcore import Asm, check

KNAME = 'gather_scatter__graph_attention_gat__graph_kernel'
NB = 250
WS_TABLE = 0
WS_UTAB = 0x400000
WS_STAB = 0x410000
WS_WFLG = 0x440000
WS_WSW = 0x480000
WS_TS = 0x500000
WS_SIZE = 0x600000
RINGW = 12288
R = 3
NPRE = 8
NA = 2
IMG = 4*RINGW
CNT = IMG + 16384
AP = 8*RINGW
XCH = AP
SDST = AP + 40960
GCNT = SDST + 1024
UT = SDST + 2048
MISC = GCNT + 64
LIST = AP + 49152
LDS_SIZE = LIST + 5248
assert LIST % 8192 == 0 and SDST % 1024 == 0 and GCNT % 64 == 0 and LDS_SIZE <= 163840
M_NONCE = MISC
M_SLOW = MISC + 8
M_SCNT = MISC + 12
M_SYNC = MISC + 16
S_X, S_W, S_WS, S_SRC, S_DST, S_DBG, S_OUT = 4, 8, 12, 16, 20, 32, 36
S_WB = 3
S_FIRST = 24
S_RET = 26
S_SYO, S_SYX = 28, 29
S_WAVE, S_SET, S_W3, S_HF = 40, 41, 42, 43
S_T = 44
S_SLICE, S_NPK = 48, 49
S_XSO = 52
S_RING, S_SLOT, S_J, S_DELTA = 56, 57, 58, 59
S_N = 60
S_G, S_LEFT, S_JC, S_AOFF = 60, 61, 62, 63
S_T0, S_T1, S_T2 = 65, 66, 67
S_EX, S_EX2 = 68, 70
S_KA = 72
S_TS = 90
S_C0, S_C1, S_C2, S_C3 = 92, 93, 94, 95
S_POLL, S_M = 96, 97
S_U0, S_U1, S_U2, S_U3 = 98, 99, 100, 101
V_TID, V_LANE = 0, 1
V_TR = 2
V_AW, V_LB, V_LST = 6, 7, 8
V_SWE, V_SWO = 9, 10
V_TAB = 11
V_IDX = 12
V_AF = 16
V_MF = 20
V_A, V_B, V_C, V_D, V_E, V_F, V_G = 24, 25, 26, 27, 28, 29, 30
V_ONE = 24
V_TSR = 31
V_ACC = 32
V_DEN = 48
V_PK = 52
V_TW, V_WE = 100, 23
V_UN = 104
V_W = 112
V_BF = 240

POLL_MAX = 200000
EMPTY = 0xfffff000


class Gen:
    def __init__(self, opt):
        self.o = opt
        self.a = Asm()
        self.tsn = {}
        self.deferred = []

    def ts(self, name):
        if not self.o.get('ts'): return
        tsf = self.o.get('tsf')
        if tsf and name != 'start' and name not in tsf.split(','): return
        a = self.a
        if name not in self.tsn: self.tsn[name] = len(self.tsn)
        idx = self.tsn[name]
        assert idx < 28
        a(f's_memrealtime s[{S_TS}:{S_TS+1}]')
        a('s_waitcnt lgkmcnt(0)')
        a(f'v_writelane_b32 v{V_TSR}, s{S_TS}, {idx}')

    def srd(self, r, base, size, shift=0):
        a = self.a
        if shift:
            a(f's_sub_u32 s{r}, s{base}, {shift}')
            a(f's_subb_u32 s{r+1}, s{base+1}, 0')
            a(f's_and_b32 s{r+1}, s{r+1}, 0xffff')
        else:
            a(f's_mov_b32 s{r}, s{base}')
            a(f's_and_b32 s{r+1}, s{base+1}, 0xffff')
        a(f's_mov_b32 s{r+2}, {size}')
        a(f's_mov_b32 s{r+3}, 0x20000')

    def tagcheck(self, base, acc, first, t0, t1):
        a = self.a
        if first:
            a(f'v_xor_b32 v{acc}, s{S_T}, v{base}')
            a(f'v_xor_b32 v{t0}, s{S_T+1}, v{base+1}')
            a(f'v_xor_b32 v{t1}, s{S_T+2}, v{base+2}')
            a(f'v_or3_b32 v{acc}, v{acc}, v{t0}, v{t1}')
            a(f'v_xor_b32 v{t0}, s{S_T+3}, v{base+3}')
            a(f'v_or_b32 v{acc}, v{acc}, v{t0}')
        else:
            a(f'v_xor_b32 v{t0}, s{S_T}, v{base}')
            a(f'v_xor_b32 v{t1}, s{S_T+1}, v{base+1}')
            a(f'v_or3_b32 v{acc}, v{acc}, v{t0}, v{t1}')
            a(f'v_xor_b32 v{t0}, s{S_T+2}, v{base+2}')
            a(f'v_xor_b32 v{t1}, s{S_T+3}, v{base+3}')
            a(f'v_or3_b32 v{acc}, v{acc}, v{t0}, v{t1}')

    def poll_check(self, acc, reload_fn, name):
        a = self.a
        rt = a.label(name + '_retry'); ok = a.label(name + '_ok')
        a(f'v_and_b32 v{acc}, 0xfff, v{acc}')
        a(f'v_cmp_ne_u32 vcc, 0, v{acc}')
        a(f's_cbranch_vccnz {rt}')
        a(f'{ok}:')
        def blk():
            a(f'{rt}:')
            a(f's_add_u32 s{S_POLL}, s{S_POLL}, 1')
            a(f's_cmp_gt_u32 s{S_POLL}, {POLL_MAX}')
            a(f's_cbranch_scc1 {ok}')
            a('s_sleep 2')
            reload_fn()
            a(f'v_and_b32 v{acc}, 0xfff, v{acc}')
            a(f'v_cmp_ne_u32 vcc, 0, v{acc}')
            a(f's_cbranch_vccnz {rt}')
            a(f's_branch {ok}')
        self.deferred.append(blk)

    def signal(self, k, own=True):
        a = self.a
        a(f'v_mov_b32 v{V_E}, s{S_SYO if own else S_SYX}')
        a(f'v_mov_b32 v{V_F}, 1')
        a('s_waitcnt lgkmcnt(0)')
        a('s_mov_b64 exec, 1')
        a(f'ds_add_u32 v{V_E}, v{V_F} offset:{4*k}')
        a('s_mov_b64 exec, -1')

    def waitfor(self, k, own=True, n=4, have=False):
        a = self.a
        if not have: a(f'v_mov_b32 v{V_E}, s{S_SYO if own else S_SYX}')
        lp = a.label('sync'); dn = a.label('syncd')
        a(f'{lp}:')
        a(f'ds_read_b32 v{V_F}, v{V_E} offset:{4*k}')
        a('s_waitcnt lgkmcnt(0)')
        a(f'v_cmp_gt_u32 vcc, {n}, v{V_F}')
        a(f's_cbranch_vccz {dn}')
        a(f's_add_u32 s{S_POLL}, s{S_POLL}, 1')
        a(f's_cmp_lt_u32 s{S_POLL}, {POLL_MAX*8}')
        a(f's_cbranch_scc1 {lp}')
        a(f'{dn}:')

    def setsync(self, k):
        self.signal(k); self.waitfor(k, have=True)

    def fill(self, base, nbytes, vq, vaddr):
        a = self.a
        n = nbytes // 16
        a(f'v_lshlrev_b32 v{vaddr}, 4, v{V_TID}')
        a(f'v_add_u32 v{vaddr}, {base}, v{vaddr}')
        r = 0
        while n > 0:
            if n >= 512:
                a(f'ds_write_b128 v{vaddr}, v[{vq}:{vq+3}] offset:{r*8192}')
            else:
                a(f'v_cmpx_gt_u32 vcc, {n}, v{V_TID}')
                a(f'ds_write_b128 v{vaddr}, v[{vq}:{vq+3}] offset:{r*8192}')
                a('s_mov_b64 exec, -1')
            n -= 512; r += 1

    def prologue(self):
        a = self.a; o = self.o
        a(f's_cmp_ge_u32 s2, {NB}')
        a('s_cbranch_scc1 L_end')
        a(f's_load_dwordx16 s[{S_KA}:{S_KA+15}], s[0:1], 0')
        a(f's_load_dwordx2 s[{S_KA+16}:{S_KA+17}], s[0:1], 64')
        if o.get('cpf', 1):
            a(f's_getpc_b64 s[{S_U0}:{S_U0+1}]')
            a('L_pc:')
            a('v_lshlrev_b32 v254, 6, v0')
            a('v_min_u32 v254, L_hot_end-L_pc, v254')
            a(f'global_load_dword v255, v254, s[{S_U0}:{S_U0+1}]')
            if o.get('cpfw') == 1: a('s_waitcnt vmcnt(0)')
        a('s_memrealtime s[50:51]')
        a(f'v_lshrrev_b32 v{V_A}, 6, v0')
        a(f'v_and_b32 v{V_LANE}, 63, v0')
        if o.get('ts'): a(f'v_mov_b32 v{V_TSR}, 0')
        a(f'v_readfirstlane_b32 s{S_WAVE}, v{V_A}')
        for i in range(4): a(f'v_mov_b32 v{104+i}, {EMPTY}')
        a(f'v_lshlrev_b32 v103, 4, v{V_TID}')
        a(f'v_add_u32 v103, {IMG}, v103')
        a('ds_write_b128 v103, v[104:107]')
        a('ds_write_b128 v103, v[104:107] offset:8192')
        for i in range(4): a(f'v_mov_b32 v{108+i}, 0')
        a(f'v_cmpx_gt_u32 vcc, 64, v{V_TID}')
        a('ds_write_b128 v103, v[108:111] offset:16384')
        a('s_mov_b64 exec, -1')
        a(f's_lshr_b32 s{S_SET}, s{S_WAVE}, 2')
        a(f's_and_b32 s{S_W3}, s{S_WAVE}, 3')
        a(f's_mov_b32 s{S_POLL}, 0')
        a(f'v_and_b32 v{V_C}, 15, v{V_LANE}')
        a(f'v_lshrrev_b32 v{V_E}, 4, v{V_LANE}')
        a(f'v_lshlrev_b32 v{V_E}, 4, v{V_E}')
        a(f'v_lshl_add_u32 v{V_F}, v{V_C}, 9, v{V_E}')
        a(f'v_and_b32 v{V_C}, 1, v{V_LANE}')
        a(f'v_cmp_eq_u32 vcc, 1, v{V_C}')
        a(f'v_lshlrev_b32 v{V_A}, 3, v{V_TID}')
        a(f'v_lshlrev_b32 v{V_B}, 2, v{V_TID}')
        a('s_waitcnt lgkmcnt(0)')
        if o.get('cpfw') == 2: a('s_waitcnt vmcnt(0)')
        self.ts('start')

    def tlb_touch(self):
        a = self.a; o = self.o
        k = S_KA
        sk = a.label('notouch')
        a(f's_cmp_lg_u32 s{S_WAVE}, {o.get("tw", 7)}')
        a(f's_cbranch_scc1 {sk}')
        if o['touch'] == 1:
            a(f's_lshr_b32 s{S_T0}, s2, 3')
            a(f's_cmp_lg_u32 s{S_T0}, 30')
            a(f's_cbranch_scc1 {sk}')
        pages = [(0, 0), (0, 1), (0, 2), (2, 0), (4, 0), (6, 0), (8, 0), (10, 0), (12, 0), (12, 1), (12, 2), (14, 0), (16, 0), (16, 1), (16, 2)]
        a(f'v_mov_b32 v250, s{k}')
        a(f'v_mov_b32 v251, s{k+1}')
        for l, (p, n) in enumerate(pages):
            if l == 0: continue
            if n:
                a(f's_add_u32 s{S_T0}, s{k+p}, {n*0x200000}')
                a(f's_addc_u32 s{S_T1}, s{k+p+1}, 0')
                a(f'v_writelane_b32 v250, s{S_T0}, {l}')
                a(f'v_writelane_b32 v251, s{S_T1}, {l}')
            else:
                a(f'v_writelane_b32 v250, s{k+p}, {l}')
                a(f'v_writelane_b32 v251, s{k+p+1}, {l}')
        a(f's_mov_b64 exec, {(1 << len(pages)) - 1}')
        a('global_load_dword v252, v[250:251], off')
        a('s_mov_b64 exec, -1')
        a(f'{sk}:')

    def issue_loads(self):
        a = self.a
        if self.o.get('touch'): self.tlb_touch()
        s1 = a.label('iss1'); dn = a.label('issdone')
        k = S_KA
        a(f's_cmp_eq_u32 s{S_SET}, 1')
        a(f's_cbranch_scc1 {s1}')
        self.srd(S_DST, k+4, 640000)
        self.srd(S_SRC, k+2, 640000)
        a(f's_mul_i32 s{S_T0}, s2, 2560')
        a(f'buffer_load_dwordx2 v[32:33], v{V_A}, s[{S_DST}:{S_DST+3}], s{S_T0} offen')
        a(f'buffer_load_dwordx2 v[34:35], v{V_A}, s[{S_SRC}:{S_SRC+3}], s{S_T0} offen')
        a(f's_cmp_lt_u32 s{S_WAVE}, 2')
        a('s_cselect_b64 exec, -1, 0')
        a(f'buffer_load_dword v36, v{V_B}, s[{S_DST}:{S_DST+3}], s{S_T0} offen offset:2048')
        a(f'buffer_load_dword v37, v{V_B}, s[{S_SRC}:{S_SRC+3}], s{S_T0} offen offset:2048')
        self.srd(S_DBG, k+14, 256)
        a(f's_or_b32 s{S_T0}, s2, s{S_WAVE}')
        a('s_bitset1_b32 s50, 31')
        a('s_bitset1_b32 s51, 31')
        a('v_mov_b32 v38, s50')
        a('v_mov_b32 v39, s51')
        a(f's_cmp_eq_u32 s{S_T0}, 0')
        a('s_cselect_b32 exec_lo, 1, 0')
        a('s_mov_b32 exec_hi, 0')
        a(f'buffer_store_dwordx2 v[38:39], off, s[{S_DBG}:{S_DBG+3}], 0 sc1')
        a('s_mov_b64 exec, -1')
        a(f's_branch {dn}')
        a(f'{s1}:')
        a(f's_sub_u32 s{S_U0}, s{S_WAVE}, 4')
        self.srd(S_W, k+6, 524288)
        t3 = a.label('not3')
        a(f's_sub_u32 s{S_U1}, s2, 64')
        a(f's_cmp_ge_u32 s{S_U1}, 128')
        a(f's_cbranch_scc1 {t3}')
        a(f's_lshr_b32 s{S_T0}, s{S_U1}, 6')
        a(f's_lshl_b32 s{S_T0}, s{S_T0}, 16')
        a(f's_and_b32 s{S_T1}, s{S_U1}, 15')
        a(f's_lshl_b32 s{S_T1}, s{S_T1}, 12')
        a(f's_add_u32 s{S_T0}, s{S_T0}, s{S_T1}')
        a(f's_bfe_u32 s{S_T1}, s{S_U1}, 0x20004')
        a(f's_lshl_b32 s{S_T1}, s{S_T1}, 7')
        a(f's_add_u32 s{S_T0}, s{S_T0}, s{S_T1}')
        a(f's_lshl_b32 s{S_T1}, s{S_U0}, 5')
        a(f's_add_u32 s{S_T0}, s{S_T0}, s{S_T1}')
        a(f'v_and_b32 v{V_C}, 15, v{V_LANE}')
        a(f'v_lshlrev_b32 v{V_C}, 1, v{V_C}')
        a(f'v_lshl_add_u32 v{V_C}, v{V_E}, 6, v{V_C}')
        for i in range(8):
            a(f's_add_u32 s{S_T1}, s{S_T0}, {(i & 3)*131072}')
            a(f'buffer_load_ushort v{(96 if i % 2 == 0 else 92) + (i >> 1)}, v{V_C}, s[{S_W}:{S_W+3}], s{S_T1} offen offset:{(i >> 2)*512}')
        a(f's_branch {dn}')
        a(f'{t3}:')
        a(f's_cmp_lg_u32 s{S_U0}, 3')
        a(f's_cbranch_scc1 {dn}')
        a('s_cmp_ge_u32 s2, 64')
        a(f's_cbranch_scc1 {dn}')
        a(f's_lshl_b32 s{S_T0}, s2, 13')
        for t in range(8):
            a(f'buffer_load_dwordx4 v[{32+4*t}:{35+4*t}], v{V_F}, s[{S_W}:{S_W+3}], s{S_T0} offen offset:{64*t}')
        a(f'v_mov_b32 v{V_C}, s{S_KA+8}')
        a(f'v_mov_b32 v{V_D}, s{S_KA+10}')
        a(f'v_cndmask_b32 v{V_C}, v{V_C}, v{V_D}, vcc')
        a(f'v_mov_b32 v{V_D}, s{S_KA+9}')
        a(f'v_mov_b32 v{V_G}, s{S_KA+11}')
        a(f'v_cndmask_b32 v{V_D}, v{V_D}, v{V_G}, vcc')
        a(f's_lshr_b32 s{S_T1}, s2, 4')
        a(f's_lshl_b32 s{S_T1}, s{S_T1}, 9')
        a(f'v_add_u32 v{V_E}, s{S_T1}, v{V_E}')
        a(f'v_add_co_u32 v{V_C}, vcc, v{V_C}, v{V_E}')
        a('s_nop 1')
        a(f'v_addc_co_u32 v{V_D}, vcc, 0, v{V_D}, vcc')
        for t in range(8):
            a(f'global_load_dwordx4 v[{64+4*t}:{67+4*t}], v[{V_C}:{V_C+1}], off offset:{64*t}')
        a(f'{dn}:')

    def late_consts(self):
        a = self.a; o = self.o
        k = S_KA
        self.srd(S_WS, k+16, WS_SIZE)
        self.srd(S_X, k+0, 5120000+4096, shift=4096)
        self.srd(S_W, k+6, 524288)
        self.srd(S_DST, k+4, 640000)
        self.srd(S_SRC, k+2, 640000)
        self.srd(S_OUT, k+12, 5120000)
        a(f'v_and_b32 v{V_A}, 15, v{V_LANE}')
        a(f'v_lshrrev_b32 v{V_B}, 4, v{V_LANE}')
        a(f's_lshr_b32 s{S_HF}, s{S_W3}, 1')
        a(f's_mul_i32 s{S_RING}, s{S_WAVE}, {RINGW}')
        a(f's_and_b32 s{S_T0}, s{S_W3}, 1')
        a(f's_lshl_b32 s{S_T1}, s{S_SET}, 1')
        a(f's_add_u32 s{S_SLICE}, s{S_T0}, s{S_T1}')
        a(f'v_lshrrev_b32 v{V_C}, 3, v{V_A}')
        a(f'v_and_b32 v{V_D}, 1, v{V_B}')
        a(f'v_lshl_or_b32 v{V_C}, v{V_D}, 1, v{V_C}')
        a(f'v_lshrrev_b32 v{V_D}, 2, v{V_A}')
        a(f'v_lshlrev_b32 v{V_D}, 7, v{V_D}')
        a(f'v_lshl_add_u32 v{V_D}, v{V_B}, 10, v{V_D}')
        a(f'v_bfe_u32 v{V_E}, v{V_A}, 1, 1')
        a(f'v_lshl_add_u32 v{V_D}, v{V_E}, 4, v{V_D}')
        a(f'v_and_b32 v{V_E}, 1, v{V_A}')
        a(f'v_lshl_add_u32 v{V_D}, v{V_E}, 3, v{V_D}')
        a(f'v_add_u32 v{V_D}, s{S_RING}, v{V_D}')
        for j in range(4):
            a(f'v_xor_b32 v{V_E}, {j}, v{V_C}')
            a(f'v_lshl_add_u32 v{V_TR+j}, v{V_E}, 5, v{V_D}')
        a(f'v_lshlrev_b32 v{V_WE}, 4, v{V_LANE}')
        a(f'v_add_u32 v{V_AW}, {AP}, v{V_WE}')
        a(f'v_mov_b32 v{V_LB}, {LIST}')
        a(f'v_lshrrev_b32 v{V_C}, 3, v{V_LANE}')
        a(f'v_lshl_add_u32 v{V_LST}, v{V_C}, 4, v{V_LB}')
        a(f'v_and_b32 v{V_D}, 2, v{V_C}')
        a(f'v_and_b32 v{V_E}, 7, v{V_LANE}')
        a(f'v_xor_b32 v{V_E}, v{V_E}, v{V_D}')
        a(f'v_lshlrev_b32 v{V_SWE}, 4, v{V_E}')
        a(f'v_xor_b32 v{V_SWO}, 64, v{V_SWE}')
        a(f's_mov_b32 s{S_M}, 0xfffffe00')
        a(f's_lshl_b32 s{S_T0}, s{S_SLICE}, 7')
        for c in range(4):
            a(f's_add_u32 s{S_XSO+c}, s{S_T0}, {4096 - c*1024}')
        a(f's_mov_b32 s{S_C3}, {(-(R-1)*4096) & 0xffffffff}')
        a(f's_lshl_b32 s{S_WB}, s{S_WAVE}, 16')
        a(f's_add_u32 s{S_WB}, s{S_WB}, {WS_WSW}')
        a(f's_lshl_b32 s{S_T0}, s{S_SET}, 5')
        a(f's_add_u32 s{S_SYO}, s{S_T0}, {M_SYNC}')
        a(f's_xor_b32 s{S_T0}, s{S_T0}, 32')
        a(f's_add_u32 s{S_SYX}, s{S_T0}, {M_SYNC}')
        self.lds_reset()

    def lds_reset(self):
        a = self.a
        for i in range(4): a(f'v_mov_b32 v{104+i}, 0')
        self.fill(AP, 40960, 104, 103)
        a(f'v_lshlrev_b32 v103, 4, v{V_TID}')
        a(f'v_add_u32 v103, {GCNT}, v103')
        a(f'v_cmpx_gt_u32 vcc, 4, v{V_TID}')
        a(f'ds_write_b128 v103, v[104:107]')
        a('s_mov_b64 exec, -1')
        a(f'v_lshlrev_b32 v103, 3, v{V_TID}')
        a(f'v_add_u32 v103, {M_SLOW}, v103')
        a(f'v_cmpx_gt_u32 vcc, 10, v{V_TID}')
        a(f'ds_write_b64 v103, v[104:105]')
        a('s_mov_b64 exec, -1')
        for i in range(4): a(f'v_mov_b32 v{104+i}, 0x40000000')
        self.fill(LIST, 5248, 104, 103)

    def unit_consts(self, slot, glo, ghi, rb, mask):
        a = self.a
        U = V_UN + 4*slot
        a(f'v_mov_b32 v{V_C}, s{ghi}')
        a(f'v_mov_b32 v{V_D}, s{glo}')
        a(f'v_cndmask_b32 v{V_C}, v{V_C}, v{V_D}, s[{S_EX2}:{S_EX2+1}]')
        a(f'v_and_b32 v{U}, s{mask}, v{V_LANE}')
        a(f'v_add_u32 v{U}, s{rb}, v{U}')
        a(f'v_lshlrev_b32 v{U+1}, 2, v{V_C}')
        a(f'v_add_u32 v{U+1}, {GCNT}, v{U+1}')
        a(f'v_lshl_add_u32 v{V_E}, v{V_C}, 9, v{V_LB}')
        a(f'v_lshl_add_u32 v{U+2}, v{U}, 2, v{V_E}')
        a(f'v_lshlrev_b32 v{V_E}, 12, v{V_C}')
        a(f'v_lshrrev_b32 v{V_D}, 5, v{U}')
        a(f'v_lshl_add_u32 v{V_E}, v{V_D}, 10, v{V_E}')
        a(f'v_and_b32 v{V_D}, 3, v{U}')
        a(f'v_lshl_add_u32 v{V_E}, v{V_D}, 8, v{V_E}')
        a(f'v_bfe_u32 v{V_D}, v{U}, 2, 3')
        a(f'v_lshl_add_u32 v{V_E}, v{V_D}, 1, v{V_E}')
        a(f'v_add_u32 v{U+3}, {AP}, v{V_E}')

    def unit_setup(self):
        a = self.a
        a(f'v_cmp_gt_u32 vcc, 32, v{V_LANE}')
        a(f's_mov_b64 s[{S_EX2}:{S_EX2+1}], vcc')
        a(f's_mov_b32 s{S_U2}, 0')
        a(f's_mov_b32 s{S_U3}, 63')
        self.unit_consts(0, S_WAVE, S_WAVE, S_U2, S_U3)
        a(f's_add_u32 s{S_T0}, s{S_WAVE}, 8')
        a(f's_lshl_b32 s{S_T1}, s{S_WAVE}, 1')
        a(f's_sub_u32 s{S_T1}, s{S_T1}, 4')
        a(f's_add_u32 s{S_T2}, s{S_T1}, 1')
        a(f's_cmp_lt_u32 s{S_WAVE}, 2')
        a(f's_cselect_b32 s{S_C0}, s{S_T0}, s{S_T1}')
        a(f's_cselect_b32 s{S_C1}, s{S_T0}, s{S_T2}')
        a(f's_cselect_b32 s{S_U2}, 0, 64')
        a(f's_cselect_b32 s{S_U3}, 63, 31')
        a(f's_cmp_eq_u32 s{S_WAVE}, 7')
        a(f's_cselect_b32 s{S_C0}, 0, s{S_C0}')
        a(f's_cselect_b32 s{S_C1}, 0, s{S_C1}')
        a(f's_cselect_b32 s{S_U2}, 0x200, s{S_U2}')
        self.unit_consts(1, S_C0, S_C1, S_U2, S_U3)

    def read_tags(self):
        a = self.a
        a(f'v_mov_b32 v{V_A}, {M_NONCE}')
        a(f'ds_read_b64 v[{V_C}:{V_C+1}], v{V_A}')
        a('s_waitcnt lgkmcnt(0)')
        a(f'v_readfirstlane_b32 s{S_T0}, v{V_C}')
        a(f'v_readfirstlane_b32 s{S_T1}, v{V_C+1}')
        a('s_nop 1')
        a(f's_and_b32 s{S_T}, s{S_T0}, 0xfff')
        a(f's_bfe_u32 s{S_T+1}, s{S_T0}, 0xc000c')
        a(f's_bfe_u32 s{S_T+2}, s{S_T0}, 0x70018')
        a(f's_lshl_b32 s{S_T0}, s{S_T1}, 7')
        a(f's_or_b32 s{S_T+2}, s{S_T+2}, s{S_T0}')
        a(f's_bfe_u32 s{S_T+3}, s{S_T1}, 0xc0005')
        for k, (mul, add) in enumerate(((5, 0x123), (9, 0x456), (13, 0x789))):
            a(f's_mul_i32 s{S_T0}, s{S_T}, {mul}')
            a(f's_add_u32 s{S_T+1+k}, s{S_T+1+k}, s{S_T0}')
            a(f's_add_u32 s{S_T+1+k}, s{S_T+1+k}, {add}')
            a(f's_and_b32 s{S_T+1+k}, s{S_T+1+k}, 0xfff')

    def xrows(self):
        a = self.a
        sk = a.label('nox')
        a(f's_cmp_eq_u32 s{S_WAVE}, 7')
        a(f's_cbranch_scc1 {sk}')
        self.srd(S_X, S_KA+0, 5120000+4096, shift=4096)
        a(f's_mul_i32 s{S_T0}, s2, 40')
        a(f's_and_b32 s{S_T1}, s{S_WAVE}, 3')
        a(f's_lshl_b32 s{S_T1}, s{S_T1}, 4')
        a(f's_add_u32 s{S_T0}, s{S_T0}, s{S_T1}')
        a(f's_lshl_b32 s{S_T0}, s{S_T0}, 9')
        a(f's_add_u32 s{S_T0}, s{S_T0}, 4096')
        a(f'v_and_b32 v{V_A}, 15, v{V_LANE}')
        a(f'v_lshlrev_b32 v{V_A}, 9, v{V_A}')
        a(f'v_lshrrev_b32 v{V_B}, 4, v{V_LANE}')
        a(f'v_lshl_add_u32 v{V_A}, v{V_B}, 4, v{V_A}')
        for t in range(8):
            a(f'buffer_load_dwordx4 v[{40+4*t}:{43+4*t}], v{V_A}, s[{S_X}:{S_X+3}], s{S_T0} offen offset:{64*t}')
        a(f'{sk}:')

    def t1_set0(self):
        a = self.a; o = self.o
        a('s_waitcnt vmcnt(1)')
        sk = a.label('w0only')
        a(f's_cmp_eq_u32 s{S_WAVE}, 0')
        a(f's_cbranch_scc1 {sk}')
        a('s_waitcnt vmcnt(0)')
        a(f'{sk}:')
        self.ts('ld1')
        a(f's_mov_b32 s{S_C0}, -40')
        a(f's_mov_b32 s{S_C1}, {CNT}')
        a(f's_mov_b32 s{S_C2}, {IMG}')
        a(f'v_mov_b32 v{V_G}, 1')
        def rnd(vd, vs, t):
            a(f'v_mul_u32_u24 v{t}, 0xcccd, v{vd}')
            a(f'v_lshrrev_b32 v{t}, 21, v{t}')
            a(f'v_mad_i32_i24 v{t+1}, v{t}, s{S_C0}, v{vd}')
            a(f'v_lshlrev_b32 v{t+2}, 18, v{vs}')
            a(f'v_lshl_or_b32 v{t+1}, v{t+1}, 12, v{t+2}')
            a(f'v_lshl_add_u32 v{t+3}, v{t}, 2, s{S_C1}')
            a(f'v_lshl_add_u32 v{t+2}, v{t}, 6, s{S_C2}')
            a(f'ds_add_rtn_u32 v{t+3}, v{t+3}, v{V_G}')
        def wr(t):
            a(f'v_cmpx_gt_u32 vcc, 16, v{t+3}')
            a(f'v_lshl_add_u32 v{t+2}, v{t+3}, 2, v{t+2}')
            a(f'ds_write_b32 v{t+2}, v{t+1}')
            a('s_mov_b64 exec, -1')
        rnd(32, 34, 40); rnd(33, 35, 44)
        a(f's_cmp_lt_u32 s{S_WAVE}, 2')
        a(f's_cselect_b64 s[{S_EX2}:{S_EX2+1}], -1, 0')
        a(f's_mov_b64 exec, s[{S_EX2}:{S_EX2+1}]')
        rnd(36, 37, 48)
        a('s_mov_b64 exec, -1')
        a('s_waitcnt lgkmcnt(0)')
        wr(40); wr(44)
        a(f's_mov_b64 exec, s[{S_EX2}:{S_EX2+1}]')
        wr(48)
        self.ts('t1done')
        sk = a.label('nop1'); rt = a.label('nretry'); ok = a.label('nok')
        a(f's_cmp_lg_u32 s{S_WAVE}, 0')
        a(f's_cbranch_scc1 {sk}')
        def chk():
            a('s_waitcnt vmcnt(0)')
            a(f'v_readfirstlane_b32 s{S_T0}, v38')
            a(f'v_readfirstlane_b32 s{S_T1}, v39')
            a('s_nop 1')
            a(f's_and_b32 s{S_T0}, s{S_T0}, s{S_T1}')
            a(f's_bitcmp1_b32 s{S_T0}, 31')
        chk()
        a(f's_cbranch_scc0 {rt}')
        a(f'{ok}:')
        def blk():
            a(f'{rt}:')
            a(f's_add_u32 s{S_POLL}, s{S_POLL}, 1')
            a(f's_cmp_gt_u32 s{S_POLL}, {POLL_MAX}')
            a(f's_cbranch_scc1 {ok}')
            a(f'buffer_load_dwordx2 v[38:39], off, s[{S_DBG}:{S_DBG+3}], 0 sc1')
            chk()
            a(f's_cbranch_scc0 {rt}')
            a(f's_branch {ok}')
        self.deferred.append(blk)
        self.ts('nonce')
        if o.get('ts'): a(f'v_writelane_b32 v{V_TSR}, s{S_POLL}, 30')
        a(f'v_mov_b32 v{V_A}, {M_NONCE}')
        a(f'ds_write_b64 v{V_A}, v[38:39]')
        a(f'{sk}:')
        a('s_waitcnt lgkmcnt(0)')
        a('s_barrier')
        self.ts('B1')
        self.read_tags()
        self.unit_setup()
        a('s_barrier')

    def t1_set1(self):
        a = self.a; o = self.o
        sk = a.label('nou2')
        a(f's_cmp_lg_u32 s{S_U0}, 3')
        a(f's_cbranch_scc1 {sk}')
        a('s_cmp_ge_u32 s2, 64')
        a(f's_cbranch_scc1 {sk}')
        a('s_waitcnt vmcnt(0)')
        self.ts('ld1')
        for t in range(8):
            c = '0' if t == 0 else 'v[96:99]'
            a(f'v_mfma_f32_16x16x32_bf16 v[96:99], v[{32+4*t}:{35+4*t}], v[{64+4*t}:{67+4*t}], {c}')
        a('s_nop 7')
        for r in range(96, 100): a(f'v_mul_f32 v{r}, 0x3fb8aa3b, v{r}')
        for r in range(96, 100): a(f'v_add_u32 v{r}, 0x800, v{r}')
        a(f'{sk}:')
        sk = a.label('not3b')
        a(f's_sub_u32 s{S_U1}, s2, 64')
        a(f's_cmp_ge_u32 s{S_U1}, 128')
        a(f's_cbranch_scc1 {sk}')
        a(f's_lshl_b32 s{S_T0}, s{S_U1}, 12')
        a(f's_lshl_b32 s{S_T1}, s{S_U0}, 10')
        a(f's_add_u32 s{S_T0}, s{S_T0}, s{S_T1}')
        a(f's_add_u32 s{S_T0}, s{S_T0}, {WS_WSW}')
        a('s_waitcnt vmcnt(0)')
        for r in range(4): a(f'v_lshl_or_b32 v{96+r}, v{92+r}, 16, v{96+r}')
        a(f'buffer_store_dwordx4 v[96:99], v{V_WE}, s[{S_WS}:{S_WS+3}], s{S_T0} offen sc1')
        a('s_waitcnt vmcnt(0)')
        a(f'{sk}:')
        self.ts('t1done')
        a('s_waitcnt lgkmcnt(0)')
        a('s_barrier')
        self.ts('B1')
        self.read_tags()
        a(f's_mov_b32 s{S_C0}, 0xfffff000')
        sk = a.label('nou3')
        a(f's_cmp_lg_u32 s{S_U0}, 3')
        a(f's_cbranch_scc1 {sk}')
        a('s_cmp_ge_u32 s2, 64')
        a(f's_cbranch_scc1 {sk}')
        for k in range(4): a(f'v_and_b32 v{96+k}, s{S_C0}, v{96+k}')
        for k in range(4): a(f'v_or_b32 v{96+k}, s{S_T+k}, v{96+k}')
        a(f'v_and_b32 v{V_A}, 15, v{V_LANE}')
        a(f'v_lshrrev_b32 v{V_B}, 4, v{V_LANE}')
        a(f'v_lshl_add_u32 v{V_B}, v{V_A}, 2, v{V_B}')
        a(f'v_lshlrev_b32 v{V_B}, 4, v{V_B}')
        a(f's_lshl_b32 s{S_T0}, s2, 7')
        a(f's_add_u32 s{S_T0}, s{S_T0}, {WS_UTAB}')
        a(f'v_cmpx_gt_u32 vcc, 2, v{V_A}')
        a(f'buffer_store_dwordx4 v[96:99], v{V_B}, s[{S_WS}:{S_WS+3}], s{S_T0} offen sc1')
        a('s_mov_b64 exec, -1')
        self.ts('ust')
        a(f'{sk}:')
        a(f'v_subrev_u32 v{V_F}, 256, v{V_TID}')
        a(f'v_lshlrev_b32 v{V_A}, 4, v{V_F}')
        a(f'v_add_u32 v{V_A}, {IMG}, v{V_A}')
        a(f'v_lshrrev_b32 v{V_B}, 2, v{V_F}')
        a(f'v_lshlrev_b32 v{V_C}, 2, v{V_B}')
        a(f'v_add_u32 v{V_C}, {CNT}, v{V_C}')
        for i in range(4):
            a(f'ds_read_b128 v[{76+4*i}:{79+4*i}], v{V_A} offset:{4096*i}')
            a(f'ds_read_b32 v{92+i}, v{V_C} offset:{256*i}')
        a(f'v_mul_u32_u24 v{V_B}, 16000, v{V_B}')
        a(f'v_and_b32 v{V_D}, 3, v{V_F}')
        a(f'v_lshl_add_u32 v{V_B}, v{V_D}, 4, v{V_B}')
        a(f'v_cmp_eq_u32 s[{S_EX2}:{S_EX2+1}], 3, v{V_D}')
        a(f'v_mov_b32 v{V_E}, 0xffffe000')
        a(f's_lshl_b32 s{S_C1}, s2, 6')
        a('s_waitcnt lgkmcnt(0)')
        for i in range(4):
            a(f'v_cmp_lt_u32 vcc, 16, v{92+i}')
            a(f's_and_b64 vcc, vcc, s[{S_EX2}:{S_EX2+1}]')
            for k in range(3): a(f'v_or_b32 v{76+4*i+k}, s{S_T+k}, v{76+4*i+k}')
            a(f'v_cndmask_b32 v{79+4*i}, v{79+4*i}, v{V_E}, vcc')
            a(f'v_or_b32 v{79+4*i}, s{S_T+3}, v{79+4*i}')
            if i == 3: a(f'v_cmpx_gt_u32 vcc, 232, v{V_F}')
            a(f'buffer_store_dwordx4 v[{76+4*i}:{79+4*i}], v{V_B}, s[{S_WS}:{S_WS+3}], s{S_C1} offen sc1')
            if i == 3: a('s_mov_b64 exec, -1')
            else: a(f's_add_u32 s{S_C1}, s{S_C1}, 1024000')
        self.ts('p3')
        self.unit_setup()
        a('s_waitcnt vmcnt(0)')
        self.ts('tack')
        a('s_barrier')

    def middle(self):
        a = self.a; o = self.o
        E = 72
        a(f'v_and_b32 v{V_A}, 255, v{V_TID}')
        a(f'v_lshrrev_b32 v{V_B}, 8, v{V_TID}')
        a(f'v_lshlrev_b32 v{V_E}, 6, v{V_A}')
        a(f'v_lshl_add_u32 v{V_E}, v{V_B}, 4, v{V_E}')
        a(f's_mul_i32 s{S_C2}, s2, 16000')
        a(f'v_cmp_gt_u32 vcc, 250, v{V_A}')
        a(f's_mov_b64 s[{S_EX2}:{S_EX2+1}], vcc')
        for i in range(8): a(f'v_mov_b32 v{E+i}, {EMPTY}')
        a(f'v_lshlrev_b32 v{V_F}, 4, v{V_TID}')
        a(f's_mov_b32 s{S_C0}, {WS_UTAB}')
        for _ in range(o.get('edelay', 0)): a('s_sleep 2')
        self.ts('eld')
        def eload():
            a(f's_mov_b64 exec, s[{S_EX2}:{S_EX2+1}]')
            a(f'buffer_load_dwordx4 v[{E}:{E+3}], v{V_E}, s[{S_WS}:{S_WS+3}], s{S_C2} offen sc1')
            a(f'buffer_load_dwordx4 v[{E+4}:{E+7}], v{V_E}, s[{S_WS}:{S_WS+3}], s{S_C2} offen offset:32 sc1')
        def uload():
            a(f'buffer_load_dwordx4 v[84:87], v{V_F}, s[{S_WS}:{S_WS+3}], s{S_C0} offen sc1')
        eload(); a('s_mov_b64 exec, -1')
        uload()
        a('s_barrier')
        sk = a.label('nox1')
        a(f's_cmp_eq_u32 s{S_SET}, 0')
        a(f's_cbranch_scc1 {sk}')
        self.xrows()
        a(f'{sk}:')
        if o.get('sweep', 1): self.sweep(0, 11)
        else: a(f'buffer_load_dword v255, off, s[{S_WS}:{S_WS+3}], 0 sc1')
        w46 = a.label('w46'); w46e = a.label('w46e')
        a(f's_sub_u32 s{S_U0}, s{S_WAVE}, 4')
        a(f's_cmp_le_u32 s{S_U0}, 2')
        a(f's_cbranch_scc1 {w46}')
        a('s_waitcnt vmcnt(1)')
        a(f'{w46e}:')
        def blk():
            a(f'{w46}:')
            a('s_waitcnt vmcnt(9)')
            a(f's_branch {w46e}')
        self.deferred.append(blk)
        self.tagcheck(84, V_A, True, V_B, V_C)
        def ure():
            uload(); a('s_waitcnt vmcnt(0)'); self.tagcheck(84, V_A, True, V_B, V_C)
        self.poll_check(V_A, ure, 'u')
        self.ts('uval')
        a(f's_mov_b32 s{S_C0}, 0xfffff000')
        for i in range(4): a(f'v_and_b32 v{84+i}, s{S_C0}, v{84+i}')
        a(f'v_bfe_u32 v{V_A}, v{V_TID}, 2, 1')
        a(f'v_lshrrev_b32 v{V_B}, 7, v{V_TID}')
        a('v_cvt_pk_bf16_f32 v84, v84, v85')
        a('v_cvt_pk_bf16_f32 v85, v86, v87')
        a(f'v_lshl_add_u32 v{V_A}, v{V_A}, 2, v{V_B}')
        a(f'v_mul_u32_u24 v{V_A}, 528, v{V_A}')
        a(f'v_bfe_u32 v{V_B}, v{V_TID}, 3, 4')
        a(f'v_lshl_add_u32 v{V_A}, v{V_B}, 5, v{V_A}')
        a(f'v_and_b32 v{V_B}, 3, v{V_TID}')
        a(f'v_lshl_add_u32 v{V_A}, v{V_B}, 3, v{V_A}')
        a(f'v_add_u32 v{V_A}, {UT}, v{V_A}')
        a(f'ds_write_b64 v{V_A}, v[84:85]')
        a('s_waitcnt lgkmcnt(0)')
        a('s_barrier')
        self.ts('B2')
        a(f's_mov_b64 exec, s[{S_EX2}:{S_EX2+1}]')
        def echeck():
            self.tagcheck(E, V_A, True, V_B, V_C); self.tagcheck(E+4, V_A, False, V_B, V_C)
        echeck()
        def ere():
            eload(); a('s_waitcnt vmcnt(0)'); echeck()
        self.poll_check(V_A, ere, 'e')
        self.ts('eval')
        a(f's_mov_b32 s{S_C0}, 0xfffc0000')
        a(f's_mov_b32 s{S_C1}, {GCNT}')
        a(f's_movk_i32 s{S_U1}, 0x1e00')
        a(f'v_mov_b32 v{V_G}, 1')
        def sort4(k0):
            for k in range(k0, k0+4):
                a(f'v_cmpx_gt_u32 vcc, s{S_C0}, v{E+k}')
                a(f'v_lshrrev_b32 v{V_A}, 12, v{E+k}')
                a(f'v_and_or_b32 v{V_A}, v{V_A}, 60, s{S_C1}')
                a(f'ds_add_rtn_u32 v{80+(k&3)}, v{V_A}, v{V_G}')
            a(f's_mov_b64 exec, s[{S_EX2}:{S_EX2+1}]')
            a('s_waitcnt lgkmcnt(0)')
            for k in range(k0, k0+4):
                a(f'v_cmpx_gt_u32 vcc, s{S_C0}, v{E+k}')
                a(f'v_lshrrev_b32 v{V_A}, 5, v{E+k}')
                a(f'v_and_or_b32 v{V_A}, v{V_A}, s{S_U1}, v{V_LB}')
                a(f'v_lshl_add_u32 v{V_A}, v{80+(k&3)}, 2, v{V_A}')
                a(f'v_lshrrev_b32 v{V_B}, 9, v{E+k}')
                a(f'ds_write_b32 v{V_A}, v{V_B}')
            a(f's_mov_b64 exec, s[{S_EX2}:{S_EX2+1}]')
        sort4(0)
        rare = a.label('rare'); back = a.label('rareb')
        a(f'v_cmp_gt_u32 vcc, s{S_C0}, v{E+4}')
        a(f's_cbranch_vccnz {rare}')
        a(f'{back}:')
        def blk():
            a(f'{rare}:')
            sort4(4)
            a(f'v_lshrrev_b32 v{V_A}, 12, v{E+7}')
            a(f'v_cmpx_eq_u32 vcc, 0xffffe, v{V_A}')
            a(f'v_mov_b32 v{V_A}, {M_SLOW}')
            a(f'ds_write_b32 v{V_A}, v{V_G}')
            a(f's_mov_b64 exec, s[{S_EX2}:{S_EX2+1}]')
            a(f's_branch {back}')
        self.deferred.append(blk)
        a('s_mov_b64 exec, -1')
        a('s_waitcnt lgkmcnt(0)')
        a('s_barrier')
        self.ts('B3')
        sk = a.label('nos')
        a(f's_sub_u32 s{S_U0}, s{S_WAVE}, 4')
        a(f's_cmp_gt_u32 s{S_U0}, 2')
        a(f's_cbranch_scc1 {sk}')
        a(f's_mov_b32 s{S_C0}, 0xfffff000')
        a(f'v_and_b32 v{V_A}, 7, v{V_LANE}')
        a(f'v_mul_u32_u24 v{V_A}, 528, v{V_A}')
        a(f'v_lshrrev_b32 v{V_B}, 4, v{V_LANE}')
        a(f'v_lshl_add_u32 v{V_A}, v{V_B}, 4, v{V_A}')
        a(f'v_add_u32 v{V_A}, {UT}, v{V_A}')
        UF = 208
        for t in range(8):
            a(f'ds_read_b128 v[{UF+4*t}:{UF+4*t+3}], v{V_A} offset:{64*t}')
        a(f'v_and_b32 v{V_A}, 15, v{V_LANE}')
        a(f's_lshl_b32 s{S_T0}, s{S_U0}, 4')
        a(f'v_add_u32 v{V_A}, s{S_T0}, v{V_A}')
        a(f'v_cmp_gt_u32 s[{S_EX}:{S_EX+1}], 40, v{V_A}')
        a(f'v_lshlrev_b32 v{V_C}, 4, v{V_A}')
        a(f's_mul_i32 s{S_T1}, s2, 640')
        a(f's_add_u32 s{S_T1}, s{S_T1}, {WS_STAB}')
        a(f'v_add_u32 v{V_D}, {SDST}, v{V_C}')
        a('s_waitcnt vmcnt(1) lgkmcnt(0)')
        self.ts('sfr')
        for t in range(8):
            c = '0' if t == 0 else 'v[88:91]'
            a(f'v_mfma_f32_16x16x32_bf16 v[88:91], v[{UF+4*t}:{UF+4*t+3}], v[{40+4*t}:{43+4*t}], {c}')
        a(f'v_cmp_eq_u32 vcc, 0, v{V_B}')
        a(f's_and_b64 s[{S_T0+1}:{S_T0+2}], vcc, s[{S_EX}:{S_EX+1}]')
        a(f'v_cmp_eq_u32 vcc, 1, v{V_B}')
        a(f's_and_b64 vcc, vcc, s[{S_EX}:{S_EX+1}]')
        a('s_nop 3')
        for k in range(4): a(f'v_add_u32 v{92+k}, 0x800, v{88+k}')
        for k in range(4): a(f'v_and_b32 v{92+k}, s{S_C0}, v{92+k}')
        for k in range(4): a(f'v_or_b32 v{92+k}, s{S_T+k}, v{92+k}')
        a('s_mov_b64 exec, vcc')
        a(f'ds_write_b128 v{V_D}, v[88:91]')
        a(f's_mov_b64 exec, s[{S_T0+1}:{S_T0+2}]')
        a(f's_mul_i32 s{S_T1}, s2, 640')
        a(f's_add_u32 s{S_T1}, s{S_T1}, {WS_STAB}')
        a(f'buffer_store_dwordx4 v[92:95], v{V_C}, s[{S_WS}:{S_WS+3}], s{S_T1} offen sc1')
        a('s_mov_b64 exec, -1')
        self.ts('sst')
        a(f'{sk}:')
        self.steptab_read()
        a('s_waitcnt lgkmcnt(0)')
        self.steptab()
        self.xprologue()
        self.ts('xp')
        a('s_waitcnt lgkmcnt(0)')
        a('s_barrier')
        self.ts('B3u')
        for t in range(NA): self.wload(t)
        for u in range(2):
            U = V_UN + 4*u
            a(f'ds_read_b32 v{34+u}, v{U+1}')
            a(f'ds_read_b32 v{32+u}, v{U+2}')
        a(f's_mov_b32 s{S_C0}, {WS_STAB}')
        a(f's_movk_i32 s{S_U1}, 0x3f0')
        a(f'v_mov_b32 v{V_F}, {SDST}')
        a('s_waitcnt lgkmcnt(0)')
        self.unit_loads(0); self.unit_loads(1)
        self.ts('sld')
        a('s_waitcnt vmcnt(0) lgkmcnt(0)')
        def scheck():
            a(f'v_mov_b32 v{V_F}, 0')
            for u in range(2):
                a(f'v_cmpx_gt_u32 vcc, v{34+u}, v{V_UN+4*u}')
                self.tagcheck(40+4*u, V_F, False, V_B, V_C)
                a('s_mov_b64 exec, -1')
        scheck()
        def sre():
            a(f's_mov_b32 s{S_C0}, {WS_STAB}')
            for u in range(2):
                a(f'v_cmpx_gt_u32 vcc, v{34+u}, v{V_UN+4*u}')
                a(f'buffer_load_dwordx4 v[{40+4*u}:{43+4*u}], v{36+u}, s[{S_WS}:{S_WS+3}], s{S_C0} offen sc1')
                a('s_mov_b64 exec, -1')
            a('s_waitcnt vmcnt(0)')
            scheck()
        self.poll_check(V_F, sre, 's')
        self.ts('sval')
        a(f's_mov_b32 s{S_FIRST}, 0')
        a(f's_mov_b32 s{S_C0}, 0xfffff000')
        for u in range(2): self.unit_weights(u)
        self.rare_c_units()
        a('s_waitcnt lgkmcnt(0)')
        a('s_barrier')
        self.ts('B4')

    def unit_loads(self, u):
        a = self.a
        U = V_UN + 4*u
        a(f'v_cmpx_gt_u32 vcc, v{34+u}, v{U}')
        a(f'v_lshrrev_b32 v{V_A}, 5, v{32+u}')
        a(f'v_and_b32 v{36+u}, 0x3fff0, v{V_A}')
        a(f'v_lshlrev_b32 v{V_A}, 1, v{32+u}')
        a(f'v_and_or_b32 v{38+u}, v{V_A}, s{S_U1}, v{V_F}')
        a(f'buffer_load_dwordx4 v[{40+4*u}:{43+4*u}], v{36+u}, s[{S_WS}:{S_WS+3}], s{S_C0} offen sc1')
        a(f'ds_read_b128 v[{48+4*u}:{51+4*u}], v{38+u}')
        a('s_mov_b64 exec, -1')

    def unit_weights(self, u):
        a = self.a
        U = V_UN + 4*u; sv = 40+4*u; dv = 48+4*u; le = 32+u
        a(f'v_cmpx_gt_u32 vcc, v{34+u}, v{U}')
        for h in range(4): a(f'v_and_b32 v{sv+h}, s{S_C0}, v{sv+h}')
        for h in (0, 2): a(f'v_pk_add_f32 v[{sv+h}:{sv+h+1}], v[{sv+h}:{sv+h+1}], v[{dv+h}:{dv+h+1}]')
        for h in range(4): a(f'v_mul_f32 v{dv+h}, 0x3e4ccccd, v{sv+h}')
        for h in range(4): a(f'v_max_f32 v{sv+h}, v{sv+h}, v{dv+h}')
        for h in range(4): a(f'v_exp_f32 v{sv+h}, v{sv+h}')
        a(f'v_bfe_u32 v{V_A}, v{le}, 3, 2')
        a(f'v_lshl_add_u32 v{V_A}, v{V_A}, 6, v{U+3}')
        a(f'v_cvt_pk_bf16_f32 v{dv}, v{sv}, v{sv+1}')
        a(f'v_cvt_pk_bf16_f32 v{dv+1}, v{sv+2}, v{sv+3}')
        a(f'ds_write_b16 v{V_A}, v{dv}')
        a(f'ds_write_b16_d16_hi v{V_A}, v{dv} offset:16')
        a(f'ds_write_b16 v{V_A}, v{dv+1} offset:32')
        a(f'ds_write_b16_d16_hi v{V_A}, v{dv+1} offset:48')
        a('s_mov_b64 exec, -1')

    def rare_c_units(self):
        a = self.a
        rare = a.label('rareC'); back = a.label('rareCb')
        a(f's_cmp_lg_u32 s{S_AOFF}, 0')
        a(f's_cbranch_scc1 {rare}')
        a(f'{back}:')
        def blk():
            a(f'{rare}:')
            a(f's_cmp_gt_u32 s{S_WAVE}, 4')
            a(f's_cbranch_scc1 {back}')
            a(f'v_cmp_gt_u32 vcc, 32, v{V_LANE}')
            a(f's_mov_b64 s[{S_EX2}:{S_EX2+1}], vcc')
            a(f's_lshl_b32 s{S_U0}, s{S_WAVE}, 1')
            a(f's_add_u32 s{S_U1}, s{S_U0}, 1')
            a(f's_mov_b32 s{S_U2}, 96'); a(f's_mov_b32 s{S_U3}, 31')
            self.unit_consts(0, S_U0, S_U1, S_U2, S_U3)
            a(f'ds_read_b32 v34, v{V_UN+1}')
            a(f'ds_read_b32 v32, v{V_UN+2}')
            a(f's_mov_b32 s{S_C0}, {WS_STAB}')
            a(f's_movk_i32 s{S_U1}, 0x3f0')
            a(f'v_mov_b32 v{V_F}, {SDST}')
            a('s_waitcnt lgkmcnt(0)')
            self.unit_loads(0)
            a('s_waitcnt vmcnt(0) lgkmcnt(0)')
            def chk():
                a(f'v_mov_b32 v{V_F}, 0')
                a(f'v_cmpx_gt_u32 vcc, v34, v{V_UN}')
                self.tagcheck(40, V_F, False, V_B, V_C)
                a('s_mov_b64 exec, -1')
                a(f'v_and_b32 v{V_F}, 0xfff, v{V_F}')
                a(f'v_cmp_ne_u32 vcc, 0, v{V_F}')
            lp = a.label('cpoll'); dn = a.label('cdone')
            a(f'{lp}:')
            chk()
            a(f's_cbranch_vccz {dn}')
            a(f's_add_u32 s{S_POLL}, s{S_POLL}, 1')
            a(f's_cmp_gt_u32 s{S_POLL}, {POLL_MAX}')
            a(f's_cbranch_scc1 {dn}')
            a(f'v_cmpx_gt_u32 vcc, v34, v{V_UN}')
            a(f'buffer_load_dwordx4 v[40:43], v36, s[{S_WS}:{S_WS+3}], s{S_C0} offen sc1')
            a('s_mov_b64 exec, -1')
            a('s_waitcnt vmcnt(0)')
            a(f's_branch {lp}')
            a(f'{dn}:')
            a(f's_mov_b32 s{S_C0}, 0xfffff000')
            self.unit_weights(0)
            a(f's_mov_b32 s{S_FIRST}, 0')
            a(f's_branch {back}')
        self.deferred.append(blk)

    def steptab_read(self):
        a = self.a
        a(f'v_lshlrev_b32 v{V_A}, 2, v{V_LANE}')
        a(f'v_add_u32 v{V_A}, {GCNT}, v{V_A}')
        a(f'v_mov_b32 v{V_B}, {M_SLOW}')
        a(f'ds_read_b32 v84, v{V_A}')
        a(f'ds_read_b32 v85, v{V_B}')

    def steptab(self):
        a = self.a
        a('v_cmp_lt_u32 vcc, 0x80, v84')
        a(f's_and_b32 s{S_T0}, vcc_lo, 0x3ff')
        a(f'v_readfirstlane_b32 s{S_T1}, v85')
        a('v_cmp_lt_u32 vcc, 0x60, v84')
        a(f's_and_b32 s{S_AOFF}, vcc_lo, 0x3ff')
        a(f's_or_b32 s{S_T0}, s{S_T0}, s{S_T1}')
        a(f's_cmp_lg_u32 s{S_T0}, 0')
        a('s_cbranch_scc1 L_slow')
        a(f'v_add_u32 v84, 31, v84')
        a(f'v_lshrrev_b32 v84, 5, v84')
        a(f's_mul_i32 s{S_T2}, s{S_HF}, 5')
        a(f's_mov_b32 s{S_T1}, s{S_T2}')
        N = (S_U0, S_U1, S_U2, S_U3, S_C0)
        for g in range(5):
            a(f'v_readlane_b32 s{N[g]}, v84, s{S_T1}')
            if g < 4: a(f's_add_u32 s{S_T1}, s{S_T1}, 1')
        a(f's_lshl_b32 s{S_T2}, s{S_T2}, 9')
        a(f'v_mov_b32 v{V_TAB}, 5120')
        a(f's_mov_b32 s{S_T0}, 0')
        for g in range(5):
            a(f'v_subrev_u32 v{V_A}, s{S_T0}, v{V_LANE}')
            a(f'v_lshlrev_b32 v{V_A}, 7, v{V_A}')
            a(f'v_cmp_le_u32 vcc, s{S_T0}, v{V_LANE}')
            a(f'v_add_u32 v{V_A}, s{S_T2}, v{V_A}')
            a(f's_add_u32 s{S_T0}, s{S_T0}, s{N[g]}')
            a(f's_add_u32 s{S_T2}, s{S_T2}, 512')
            a(f'v_cndmask_b32 v{V_TAB}, v{V_TAB}, v{V_A}, vcc')
        a(f'v_mov_b32 v{V_A}, 5120')
        a(f'v_cmp_le_u32 vcc, s{S_T0}, v{V_LANE}')
        a(f's_lshl_b32 s{S_NPK}, s{N[4]}, 4')
        for g in (3, 2, 1, 0):
            a(f's_or_b32 s{S_NPK}, s{S_NPK}, s{N[g]}')
            if g: a(f's_lshl_b32 s{S_NPK}, s{S_NPK}, 4')
        a(f'v_cndmask_b32 v{V_TAB}, v{V_TAB}, v{V_A}, vcc')

    def idx_read(self):
        a = self.a
        a(f'v_readlane_b32 s{S_T0}, v{V_TAB}, s{S_J}')
        a(f's_add_u32 s{S_J}, s{S_J}, 1')
        a('s_nop 0')
        a(f'v_add_u32 v{V_G}, s{S_T0}, v{V_LST}')
        a(f'ds_read_b128 v[{V_IDX}:{V_IDX+3}], v{V_G}')

    def xprologue(self):
        a = self.a
        T = 92
        a('s_nop 0')
        for j in range(R):
            a(f'v_readlane_b32 s{S_T0}, v{V_TAB}, {j}')
            a('s_nop 1')
            a(f'v_add_u32 v{V_G}, s{S_T0}, v{V_LST}')
            a(f'ds_read_b128 v[{T+4*j}:{T+4*j+3}], v{V_G}')
        a(f's_mov_b32 s{S_J}, {R}')
        a(f's_mov_b32 s{S_SLOT}, 0')
        a('s_waitcnt lgkmcnt(0)')
        for j in range(R):
            a(f's_add_u32 m0, s{S_RING}, {j*4096}')
            for c in range(4):
                sw = V_SWE if c % 2 == 0 else V_SWO
                a(f'v_and_or_b32 v{T+4*j+c}, v{T+4*j+c}, s{S_M}, v{sw}')
            for c in range(4):
                a(f'buffer_load_dwordx4 v{T+4*j+c}, s[{S_X}:{S_X+3}], s{S_XSO+c} offen offset:{c*1024} lds')
        self.idx_read()

    def sweep(self, base, shift, dst=255, tmp=254):
        a = self.a
        a(f's_lshr_b32 s{S_T0}, s2, 3')
        a(f's_lshl_b32 s{S_T0}, s{S_T0}, 3')
        a(f's_add_u32 s{S_T0}, s{S_T0}, s{S_WAVE}')
        a(f's_lshl_b32 s{S_T0}, s{S_T0}, {shift}')
        a(f's_add_u32 s{S_T0}, s{S_T0}, {WS_WSW + base}')
        a(f'v_lshlrev_b32 v{tmp}, 7, v{V_LANE}')
        a(f'v_cmpx_gt_u32 vcc, {(1 << shift) >> 7}, v{V_LANE}')
        a(f'buffer_load_dword v{dst}, v{tmp}, s[{S_WS}:{S_WS+3}], s{S_T0} offen sc1')
        a('s_mov_b64 exec, -1')

    def wflag_load(self, dst):
        a = self.a
        a(f's_lshl_b32 s{S_T1}, s{S_WAVE}, 10')
        a(f's_add_u32 s{S_T1}, s{S_T1}, {WS_WFLG}')
        a(f'buffer_load_dwordx4 v[{dst}:{dst+3}], v{V_WE}, s[{S_WS}:{S_WS+3}], s{S_T1} offen sc1')

    def wload(self, t):
        a = self.a
        dst = V_W + 16*(t % NPRE)
        a(f's_add_u32 s{S_T1}, s{S_WB}, {t*4096}')
        for j in range(4):
            a(f'buffer_load_dwordx4 v[{dst+4*j}:{dst+4*j+3}], v{V_WE}, s[{S_WS}:{S_WS+3}], s{S_T1} offen offset:{j*1024} {self.o.get("wfl", "sc1")}')

    def group_end_math(self):
        a = self.a
        for h in range(4): a(f'v_fmaak_f32 v{V_DEN+h}, 4.0, v{V_DEN+h}, 0x3189705f')
        for h in range(4): a(f'v_rcp_f32 v{V_DEN+h}, v{V_DEN+h}')
        a('s_nop 0')
        for j in range(4):
            for h in (0, 2):
                r = V_ACC + 4*j + h
                a(f'v_pk_mul_f32 v[{r}:{r+1}], v[{r}:{r+1}], v[{V_DEN+h}:{V_DEN+h+1}]')
        if self.o.get('cvtidx', 1):
            a(f's_set_gpr_idx_on s{S_T0}, gpr_idx(DST)')
            a('s_nop 0')
            for j in range(4):
                for h in (0, 2):
                    r = V_ACC + 4*j + h
                    a(f'v_cvt_pk_bf16_f32 v{V_PK + 2*j + h//2}, v{r}, v{r+1}')
            a('s_set_gpr_idx_off')
        else:
            for j in range(4):
                for h in (0, 2):
                    r = V_ACC + 4*j + h
                    a(f'v_cvt_pk_bf16_f32 v{92 + 2*j + h//2}, v{r}, v{r+1}')
            a(f's_set_gpr_idx_on s{S_T0}, gpr_idx(DST)')
            a('s_nop 0')
            for k in range(8): a(f'v_mov_b32 v{V_PK+k}, v{92+k}')
            a('s_set_gpr_idx_off')
        for i in range(0, 20, 2): a(f'v_mov_b64 v[{V_ACC+i}:{V_ACC+i+1}], 0')

    def aggregate(self):
        a = self.a; o = self.o
        for i in range(0, 20, 2): a(f'v_mov_b64 v[{V_ACC+i}:{V_ACC+i+1}], 0')
        for i in range(4): a(f'v_mov_b32 v{V_ONE+i}, 0x3f803f80')
        if o.get('aprio'):
            sk = a.label('aprio')
            a(f's_cmp_eq_u32 s{S_SET}, 0')
            a(f's_cbranch_scc1 {sk}')
            a(f's_setprio {o["aprio"]}')
            a(f'{sk}:')
            if o.get('lprio'):
                sk = a.label('lprio')
                a(f's_cmp_eq_u32 s{S_SET}, 1')
                a(f's_cbranch_scc1 {sk}')
                a(f's_setprio {o["lprio"]}')
                a(f'{sk}:')
        a(f's_movk_i32 s{S_C2}, 0x1000')
        a(f's_mov_b32 s{S_G}, 0')
        a(f's_mov_b32 s{S_JC}, 0')
        def addr():
            a(f'v_readlane_b32 s{S_T1}, v{V_TAB}, s{S_JC}')
            a(f's_add_u32 s{S_JC}, s{S_JC}, 1')
            a(f's_lshl_b32 s{S_T1}, s{S_T1}, 3')
            a(f'v_add_u32 v{V_TW}, s{S_T1}, v{V_AW}')
        def reads():
            a(f'ds_read_b128 v[{V_AF}:{V_AF+3}], v{V_TW}')
            for j in range(4):
                a(f'ds_read_b64_tr_b16 v[{V_BF+4*j}:{V_BF+4*j+1}], v{V_TR+j}')
                a(f'ds_read_b64_tr_b16 v[{V_BF+4*j+2}:{V_BF+4*j+3}], v{V_TR+j} offset:512')
        def rowwait():
            a(f's_waitcnt vmcnt({4*(R-1)})')
        a(f's_and_b32 s{S_LEFT}, s{S_NPK}, 15')
        a(f's_lshr_b32 s{S_NPK}, s{S_NPK}, 4')
        addr()
        rowwait()
        reads()
        Lt = a.label('agg_top'); Le = a.label('agg_ge'); Ld = a.label('agg_done')
        a(f's_cmp_eq_u32 s{S_LEFT}, 0')
        a(f's_cbranch_scc1 {Le}')
        a(f'{Lt}:')
        a('s_waitcnt lgkmcnt(0)')
        sw = lambda c: V_SWE if c % 2 == 0 else V_SWO
        mf = lambda d, b: a(f'v_mfma_f32_16x16x32_bf16 v[{d}:{d+3}], v[{V_AF}:{V_AF+3}], v[{b}:{b+3}], v[{d}:{d+3}]')
        dma = lambda c: a(f'buffer_load_dwordx4 v{V_IDX+c}, s[{S_X}:{S_X+3}], s{S_XSO+c} offen offset:{c*1024} lds')
        mf(V_DEN, V_ONE)
        for c in range(4): a(f'v_and_or_b32 v{V_IDX+c}, v{V_IDX+c}, s{S_M}, v{sw(c)}')
        a(f's_add_u32 m0, s{S_RING}, s{S_SLOT}')
        mf(V_ACC, V_BF)
        dma(0)
        mf(V_ACC+4, V_BF+4)
        dma(1)
        mf(V_ACC+8, V_BF+8)
        dma(2)
        mf(V_ACC+12, V_BF+12)
        dma(3)
        a(f's_add_u32 s{S_SLOT}, s{S_SLOT}, 4096')
        a(f's_cmp_eq_u32 s{S_SLOT}, {R*4096}')
        a(f's_cselect_b32 s{S_SLOT}, 0, s{S_SLOT}')
        a(f's_cselect_b32 s{S_DELTA}, s{S_C3}, s{S_C2}')
        addr()
        for j in range(4): a(f'v_add_u32 v{V_TR+j}, s{S_DELTA}, v{V_TR+j}')
        rowwait()
        reads()
        self.idx_read()
        a(f's_sub_u32 s{S_LEFT}, s{S_LEFT}, 1')
        a(f's_cmp_lg_u32 s{S_LEFT}, 0')
        a(f's_cbranch_scc1 {Lt}')
        a(f'{Le}:')
        if o.get('sweep2', 1):
            wq = a.label('agg_wq'); wqb = a.label('agg_wqb')
            a(f's_cmp_eq_u32 s{S_G}, 3')
            a(f's_cbranch_scc1 {wq}')
            a(f'{wqb}:')
            def blk():
                a(f'{wq}:')
                self.sweep(0, 11, 101, 102)
                a(f's_branch {wqb}')
            self.deferred.append(blk)
        a(f's_lshl_b32 s{S_T0}, s{S_G}, 3')
        a(f's_add_u32 s{S_G}, s{S_G}, 1')
        self.group_end_math()
        a(f's_cmp_eq_u32 s{S_G}, 5')
        a(f's_cbranch_scc1 {Ld}')
        a(f's_and_b32 s{S_LEFT}, s{S_NPK}, 15')
        a(f's_lshr_b32 s{S_NPK}, s{S_NPK}, 4')
        a(f's_cmp_lg_u32 s{S_LEFT}, 0')
        a(f's_cbranch_scc1 {Lt}')
        a(f's_branch {Le}')
        a(f'{Ld}:')

    def agg_write(self):
        a = self.a
        a('L_aggw:')
        if self.o.get('lprio') and self.o.get('gp1', -1) < 0:
            sk = a.label('gp0')
            a(f's_cmp_eq_u32 s{S_SET}, 0')
            a(f's_cbranch_scc1 {sk}')
            a('s_setprio 0')
            a(f'{sk}:')
        a(f'v_and_b32 v{V_C}, 15, v{V_LANE}')
        a(f'v_lshrrev_b32 v{V_A}, 4, v{V_LANE}')
        a(f'v_bfe_u32 v{V_D}, v{V_C}, 1, 2')
        a(f'v_lshrrev_b32 v{V_E}, 3, v{V_C}')
        a(f'v_lshl_add_u32 v{V_F}, v{V_E}, 2, v{V_D}')
        a(f'v_and_b32 v{V_G}, 1, v{V_C}')
        a(f'v_lshlrev_b32 v{V_G}, 3, v{V_G}')
        a(f's_mul_i32 s{S_T0}, s{S_SET}, {4*RINGW}')
        a(f's_and_b32 s{S_T1}, s{S_SLICE}, 1')
        a(f's_lshl_b32 s{S_T2}, s{S_T1}, 13')
        a(f's_add_u32 s{S_T2}, s{S_T2}, s{S_T0}')
        a(f's_lshl_b32 s{S_T1}, s{S_T1}, 12')
        a(f's_add_u32 s{S_T1}, s{S_T1}, s{S_T0}')
        a(f'v_lshl_add_u32 v{V_MF}, v{V_D}, 8, v{V_G}')
        a(f'v_lshl_add_u32 v{V_MF}, v{V_E}, 10, v{V_MF}')
        a(f'v_add_u32 v{V_MF}, s{S_T2}, v{V_MF}')
        a(f'v_lshl_add_u32 v{V_MF+1}, v{V_D}, 7, v{V_G}')
        a(f'v_lshl_add_u32 v{V_MF+1}, v{V_E}, 9, v{V_MF+1}')
        a(f'v_add_u32 v{V_MF+1}, s{S_T1}, v{V_MF+1}')
        a(f'v_lshrrev_b32 v{V_B}, 4, v{V_LANE}')
        for par in range(2):
            a(f'v_add_u32 v{V_TW}, {4*par}, v{V_B}')
            a(f'v_xor_b32 v{V_D}, v{V_C}, v{V_TW}')
            a(f'v_lshlrev_b32 v{V_D}, 4, v{V_D}')
            a(f'v_lshl_add_u32 v{V_D}, v{V_B}, 8, v{V_D}')
            a(f'v_add_u32 v{104+par}, s{S_T0}, v{V_D}')
            a(f'v_and_b32 v{V_D}, 7, v{V_C}')
            a(f'v_xor_b32 v{V_D}, v{V_D}, v{V_TW}')
            a(f'v_lshlrev_b32 v{V_D}, 4, v{V_D}')
            a(f'v_lshl_add_u32 v{V_D}, v{V_B}, 7, v{V_D}')
            a(f'v_add_u32 v{106+par}, s{S_T0}, v{V_D}')
        a('s_waitcnt vmcnt(0) lgkmcnt(0)')
        self.wload(NA); self.wload(NA+1)
        self.ts('aggdone')
        a(f'v_mov_b32 v{V_AF+2}, v{V_E}'); a(f'v_mov_b32 v{V_AF+3}, v{V_F}')
        self.setsync(1)
        a(f'v_mov_b32 v{V_F}, v{V_AF+3}')
        self.ts('B5')
        end = a.label('aggw_end'); h1 = a.label('aggw_h1')
        a(f's_cmp_eq_u32 s{S_HF}, 1')
        a(f's_cbranch_scc1 {h1}')
        for hf in range(2):
            if hf == 1: a(f'{h1}:')
            for gg in range(5):
                node0 = 20*hf + 4*gg
                mt, mb = node0 >> 4, node0 & 15
                TS = 1024 if mt < 2 else 512
                ad = V_AF + (gg & 1)
                a(f'v_add_u32 v{ad}, {mb}, v{V_A}')
                a(f'v_xor_b32 v{ad}, v{ad}, v{V_F}')
                a(f'v_lshl_add_u32 v{ad}, v{ad}, 4, v{V_MF + (0 if mt < 2 else 1)}')
                for j in range(4):
                    pk = V_PK + 8*gg + 2*j
                    a(f'ds_write_b64 v{ad}, v[{pk}:{pk+1}] offset:{mt*16384 + 2*j*TS}')
            if hf == 0: a(f's_branch {end}')
        a(f'{end}:')
        self.wload(NA+2)
        self.setsync(2)
        self.ts('B6')

    def gemm(self):
        a = self.a
        n = NPRE
        AB = [80, 92]
        def aggread(t):
            buf = AB[t & 1]; par = t & 1
            for mt in range(2):
                a(f'ds_read_b128 v[{buf+4*mt}:{buf+4*mt+3}], v{104+par} offset:{mt*16384 + t*1024}')
            a(f'ds_read_b128 v[{buf+8}:{buf+11}], v{106+par} offset:{32768 + t*512}')
        if self.o.get('gp1', -1) >= 0:
            sk = a.label('gpa'); sk2 = a.label('gpb')
            a(f's_cmp_eq_u32 s{S_SET}, 0')
            a(f's_cbranch_scc1 {sk}')
            a(f's_setprio {self.o["gp1"]}')
            a(f's_branch {sk2}')
            a(f'{sk}:')
            a(f's_setprio {self.o["gp0"]}')
            a(f'{sk2}:')
        if self.o.get('gprio'):
            sk = a.label('gprio')
            a(f's_cmp_eq_u32 s{S_SET}, 0')
            a(f's_cbranch_scc1 {sk}')
            a(f's_setprio {self.o["gprio"]}')
            a(f'{sk}:')
        def aggread_list(t):
            buf = AB[t & 1]; par = t & 1
            return [f'ds_read_b128 v[{buf+4*mt}:{buf+4*mt+3}], v{104+par} offset:{mt*16384 + t*1024}' for mt in range(2)] + \
                   [f'ds_read_b128 v[{buf+8}:{buf+11}], v{106+par} offset:{32768 + t*512}']
        def wload_list(t):
            dst = V_W + 16*(t % n)
            return [f's_add_u32 s{S_T1}, s{S_WB}, {t*4096}'] + \
                   [f'buffer_load_dwordx4 v[{dst+4*j}:{dst+4*j+3}], v{V_WE}, s[{S_WS}:{S_WS+3}], s{S_T1} offen offset:{j*1024} {self.o.get("wfl", "sc1")}' for j in range(4)]
        aggread(0)
        for t in range(16):
            waits = []
            if t >= NA and not self.o.get('nowb'): waits.append(f'vmcnt({4*(min(15, NA+2+t) - t)})')
            waits.append('lgkmcnt(0)')
            a('s_waitcnt ' + ' '.join(waits))
            fill = []
            if t + 1 < 16: fill += aggread_list(t+1)
            if NA + 3 + t < 16 and not self.o.get('nowb'): fill += wload_list(NA + 3 + t)
            w = V_W + 16*(t % n); b = AB[t & 1]
            k = 0
            for mt in range(3):
                for j in range(4):
                    acc = V_ACC + 16*mt + 4*j
                    c = '0' if t == 0 else f'v[{acc}:{acc+3}]'
                    a(f'v_mfma_f32_16x16x32_bf16 v[{acc}:{acc+3}], v[{w+4*j}:{w+4*j+3}], v[{b+4*mt}:{b+4*mt+3}], {c}')
                    if k < len(fill): a(fill[k]); k += 1
            if t in (3, 7, 11): self.ts(f'g{t}')
        self.ts('gemm1')

    def finish(self):
        a = self.a
        P = V_W
        a(f's_mul_i32 s{S_T0}, s{S_W3}, {RINGW}')
        a(f's_add_u32 s{S_T0}, s{S_T0}, {4*RINGW}')
        a(f'v_add_u32 v{V_D}, s{S_T0}, v{V_WE}')
        s0 = a.label('fin0')
        a(f's_cmp_eq_u32 s{S_SET}, 0')
        a(f's_cbranch_scc1 {s0}')
        a('s_setprio 0')
        self.setsync(3)
        for i in range(12):
            a(f'ds_write_b128 v{V_D}, v[{V_ACC+4*i}:{V_ACC+4*i+3}] offset:{1024*i}')
        self.signal(4)
        a('s_branch L_fin')
        a(f'{s0}:')
        a(f'v_and_b32 v{V_A}, 15, v{V_LANE}')
        a(f'v_lshrrev_b32 v{V_B}, 4, v{V_LANE}')
        a(f'v_and_b32 v{V_C}, 1, v{V_B}')
        a(f'v_lshrrev_b32 v{V_G}, 1, v{V_B}')
        a(f'v_lshlrev_b32 v{V_C}, 5, v{V_C}')
        a(f'v_lshl_add_u32 v{V_C}, v{V_G}, 4, v{V_C}')
        a(f'v_lshl_add_u32 v{V_C}, v{V_A}, 9, v{V_C}')
        a(f's_mul_i32 s{S_T0}, s2, {40*512}')
        a(f's_lshl_b32 s{S_T1}, s{S_W3}, 7')
        a(f's_add_u32 s{S_T0}, s{S_T0}, s{S_T1}')
        a(f'v_cmp_gt_u32 s[{S_EX2}:{S_EX2+1}], 8, v{V_A}')
        self.waitfor(4, own=False)
        for i in range(12):
            a(f'ds_read_b128 v[{P+4*i}:{P+4*i+3}], v{V_D} offset:{1024*i}')
        for mt in range(3):
            a(f's_waitcnt lgkmcnt({8-4*mt})')
            for j in range(4):
                acc = V_ACC + 16*mt + 4*j; p = P + 16*mt + 4*j
                for h in (0, 2):
                    a(f'v_pk_add_f32 v[{acc+h}:{acc+h+1}], v[{acc+h}:{acc+h+1}], v[{p+h}:{p+h+1}]')
            for jp in range(2):
                R0 = P + 16*mt + 4*jp
                for jj in range(2):
                    acc = V_ACC + 16*mt + 4*(2*jp+jj)
                    a(f'v_cvt_pk_bf16_f32 v{R0+2*jj}, v{acc}, v{acc+1}')
                    a(f'v_cvt_pk_bf16_f32 v{R0+2*jj+1}, v{acc+2}, v{acc+3}')
            a(f's_add_u32 s{S_T1}, s{S_T0}, {mt*16*512}')
            a('s_nop 0')
            for jp in range(2):
                R0 = P + 16*mt + 4*jp
                a(f'v_permlane16_swap_b32 v{R0}, v{R0+2}')
                a(f'v_permlane16_swap_b32 v{R0+1}, v{R0+3}')
            if mt == 2: a(f's_mov_b64 exec, s[{S_EX2}:{S_EX2+1}]')
            for jp in range(2):
                R0 = P + 16*mt + 4*jp
                a(f'buffer_store_dwordx4 v[{R0}:{R0+3}], v{V_C}, s[{S_OUT}:{S_OUT+3}], s{S_T1} offen offset:{64*jp}')
        a('L_fin:')
        a('s_mov_b64 exec, -1')
        self.ts('end')
        if self.o.get('ts') == 1:
            a(f's_lshl_b32 s{S_T0}, s2, 3')
            a(f's_add_u32 s{S_T0}, s{S_T0}, s{S_WAVE}')
            a(f's_lshl_b32 s{S_T0}, s{S_T0}, 7')
            a(f's_add_u32 s{S_T0}, s{S_T0}, {WS_TS}')
            a(f'v_writelane_b32 v{V_TSR}, s{S_POLL}, 31')
            a(f'v_lshlrev_b32 v{V_A}, 2, v{V_LANE}')
            a(f'v_cmpx_gt_u32 vcc, 32, v{V_LANE}')
            a(f'buffer_store_dword v{V_TSR}, v{V_A}, s[{S_WS}:{S_WS+3}], s{S_T0} offen')
            a('s_mov_b64 exec, -1')

    def slow_path(self):
        from slowpath import emit_slow
        emit_slow(self)

    def build(self):
        a = self.a; o = self.o
        a(f'; @launch grid=({NB},1,1) block=(512,1,1) lds={LDS_SIZE}')
        a('.amdgcn_target "amdgcn-amd-amdhsa--gfx950"')
        a('.text')
        a(f'.globl {KNAME}')
        a('.p2align 8')
        a(f'.type {KNAME},@function')
        a(f'{KNAME}:')
        self.prologue()
        self.issue_loads()
        self.ts('issue')
        self.srd(S_DBG, S_KA+14, 256)
        a('s_barrier')
        self.ts('B0')
        self.late_consts()
        sk = a.label('nop0')
        a(f's_cmp_lg_u32 s{S_WAVE}, 0')
        a(f's_cbranch_scc1 {sk}')
        a(f'buffer_load_dwordx2 v[38:39], off, s[{S_DBG}:{S_DBG+3}], 0 sc1')
        a(f'{sk}:')
        a(f's_cmp_eq_u32 s{S_SET}, 1')
        a('s_cbranch_scc1 L_set1')
        self.t1_set0()
        a('s_branch L_mid')
        a('L_set1:')
        self.t1_set1()
        a('L_mid:')
        self.middle()
        self.aggregate()
        self.agg_write()
        self.gemm()
        self.finish()
        a('s_branch L_end')
        for fn in list(self.deferred): fn()
        a('L_hot_end:')
        n0 = len(self.deferred)
        self.slow_path()
        for fn in self.deferred[n0:]: fn()
        a('L_end:')
        a('s_waitcnt vmcnt(0)')
        a('s_endpgm')
        a('.section .rodata,"a"')
        a('.p2align 6')
        a(f'.amdhsa_kernel {KNAME}')
        a('  .amdhsa_next_free_vgpr 256')
        a('  .amdhsa_next_free_sgpr 102')
        a('  .amdhsa_accum_offset 256')
        a('  .amdhsa_group_segment_fixed_size 0')
        a('  .amdhsa_kernarg_size 72')
        a('  .amdhsa_user_sgpr_count 2')
        a('  .amdhsa_user_sgpr_kernarg_segment_ptr 1')
        a('  .amdhsa_system_sgpr_workgroup_id_x 1')
        a('  .amdhsa_float_denorm_mode_32 3')
        a('  .amdhsa_float_denorm_mode_16_64 3')
        a('.end_amdhsa_kernel')
        return a


def generate(path, **opt):
    global NA
    NA = opt.get('na', 2)
    g = Gen(opt)
    a = g.build()
    probs = check(a.lines)
    open(path, 'w').write(a.text())
    json.dump(g.tsn, open(path + '.ts.json', 'w'))
    return probs

if __name__ == '__main__':
    ap = argparse.ArgumentParser()
    ap.add_argument('out')
    for name, dflt in (('ts', 0), ('cpf', 1), ('sweep', 1), ('edelay', 0), ('prio', 0), ('cvtidx', 1), ('sweep2', 1), ('gprio', 0), ('na', 2), ('nowb', 0), ('aprio', 0), ('touch', 0), ('tw', 7), ('lprio', 0), ('gp1', -1), ('gp0', 0), ('cpfw', 0), ('slowdbg', 0)):
        ap.add_argument('--' + name, type=int, default=dflt)
    ap.add_argument('--tsf', default='')
    ap.add_argument('--wfl', default='sc1')
    args = ap.parse_args()
    o = vars(args); out = o.pop('out')
    if o['wfl'] == 'plain': o['wfl'] = ''
    p = generate(out, **o)
    print('hazards:', len(p))
```

```python
def emit_slow(g):
    import sys
    m = sys.modules[type(g).__module__]
    globals().update({k: v for k, v in vars(m).items() if k.isupper() or k == 'R'})
    a = g.a
    VD, VS, VLE, VCNT, VSV, VDV = 112, 113, 114, 115, 116, 120
    T0, T1, T2, T3 = 124, 125, 126, 127
    VZ = 128
    S_CH, S_GG, S_CNT, S_STEP = 30, 31, 62, 63
    a('L_slow:')
    a('s_waitcnt vmcnt(0) lgkmcnt(0)')
    a('s_mov_b64 exec, -1')
    for i in range(4): a(f'v_mov_b32 v{VZ+i}, 0')
    for i in range(4): a(f'v_mov_b32 v{VZ+4+i}, 0x40000000')
    a('s_barrier')
    a(f's_mov_b32 s{S_GG}, 0')
    Lg = a.label('sl_g'); Lc = a.label('sl_c'); Lnext = a.label('sl_next'); Lge = a.label('sl_ge')

    def reset():
        a(f'v_lshlrev_b32 v{T0}, 4, v{V_TID}')
        a(f'v_add_u32 v{T1}, {AP}, v{T0}')
        a(f'v_cmpx_gt_u32 vcc, 0x100, v{V_TID}')
        a(f'ds_write_b128 v{T1}, v[{VZ}:{VZ+3}]')
        a(f'v_add_u32 v{T1}, {LIST}, v{T0}')
        a(f'v_cmpx_gt_u32 vcc, 32, v{V_TID}')
        a(f'ds_write_b128 v{T1}, v[{VZ+4}:{VZ+7}]')
        a(f'v_mov_b32 v{T1}, {M_SCNT}')
        a(f'ds_write_b32 v{T1}, v{VZ}')
        a('s_mov_b64 exec, -1')
        a('s_waitcnt lgkmcnt(0)')
        a('s_barrier')

    a(f'{Lg}:')
    for i in range(0, 20, 2): a(f'v_mov_b64 v[{V_ACC+i}:{V_ACC+i+1}], 0')
    reset()
    a(f's_mov_b32 s{S_CH}, 0')
    a(f'{Lc}:')
    a(f'v_lshlrev_b32 v{T0}, 2, v{V_TID}')
    a(f's_lshl_b32 s{S_T0}, s{S_CH}, 9')
    a(f'v_cmpx_gt_u32 vcc, 0x80, v{V_TID}')
    a(f'buffer_load_dword v{VD}, v{T0}, s[{S_DST}:{S_DST+3}], s{S_T0} offen')
    a(f'buffer_load_dword v{VS}, v{T0}, s[{S_SRC}:{S_SRC+3}], s{S_T0} offen')
    a(f's_mul_i32 s{S_T1}, s2, 40')
    a(f's_lshl_b32 s{S_T2}, s{S_GG}, 2')
    a(f's_add_u32 s{S_T2}, s{S_T2}, s{S_T1}')
    a('s_waitcnt vmcnt(0)')
    a(f'v_subrev_u32 v{T1}, s{S_T2}, v{VD}')
    a(f'v_subrev_u32 v{T2}, s{S_T1}, v{VD}')
    a(f'v_cmpx_gt_u32 vcc, 4, v{T1}')
    a(f'v_mov_b32 v{T0}, {M_SCNT}')
    a(f'v_mov_b32 v{T1}, 1')
    a(f'ds_add_rtn_u32 v{T3}, v{T0}, v{T1}')
    a(f'v_lshlrev_b32 v{VLE}, 9, v{VS}')
    a(f'v_lshl_or_b32 v{VLE}, v{T2}, 3, v{VLE}')
    a('s_waitcnt lgkmcnt(0)')
    a(f'v_lshl_add_u32 v{T3}, v{T3}, 2, v{V_LB}')
    a(f'ds_write_b32 v{T3}, v{VLE}')
    a('s_mov_b64 exec, -1')
    a('s_waitcnt lgkmcnt(0)')
    a('s_barrier')
    a(f'v_mov_b32 v{T0}, {M_SCNT}')
    a(f'ds_read_b32 v{VCNT}, v{T0}')
    a('s_waitcnt lgkmcnt(0)')
    a(f'v_readfirstlane_b32 s{S_CNT}, v{VCNT}')
    a('s_barrier')
    a(f's_cmp_eq_u32 s{S_CNT}, 0')
    a(f's_cbranch_scc1 {Lnext}')
    noe = a.label('sl_noe')
    a(f'v_cmpx_gt_u32 vcc, s{S_CNT}, v{V_TID}')
    a(f's_cbranch_execz {noe}')
    a(f'v_lshl_add_u32 v{T0}, v{V_TID}, 2, v{V_LB}')
    a(f'ds_read_b32 v{VLE}, v{T0}')
    a('s_waitcnt lgkmcnt(0)')
    a(f'v_lshrrev_b32 v{T0}, 5, v{VLE}')
    a(f'v_and_b32 v{VD}, 0x3fff0, v{T0}')
    a(f'v_lshlrev_b32 v{T0}, 1, v{VLE}')
    a(f'v_and_b32 v{T0}, 0x3f0, v{T0}')
    a(f'v_add_u32 v{T0}, {SDST}, v{T0}')
    a(f'ds_read_b128 v[{VDV}:{VDV+3}], v{T0}')
    a(f's_mov_b32 s{S_T0}, {WS_STAB}')
    lp = a.label('sl_poll'); ok = a.label('sl_ok')
    a(f'{lp}:')
    a(f'buffer_load_dwordx4 v[{VSV}:{VSV+3}], v{VD}, s[{S_WS}:{S_WS+3}], s{S_T0} offen sc1')
    a('s_waitcnt vmcnt(0) lgkmcnt(0)')
    g.tagcheck(VSV, T0, True, T1, T2)
    a(f'v_and_b32 v{T0}, 0xfff, v{T0}')
    a(f'v_cmp_ne_u32 vcc, 0, v{T0}')
    a(f's_cbranch_vccz {ok}')
    a(f's_add_u32 s{S_POLL}, s{S_POLL}, 1')
    a(f's_cmp_lt_u32 s{S_POLL}, {POLL_MAX*16}')
    a(f's_cbranch_scc1 {lp}')
    a(f'{ok}:')
    a(f's_mov_b32 s{S_T0}, 0xfffff000')
    for h in range(4): a(f'v_and_b32 v{VSV+h}, s{S_T0}, v{VSV+h}')
    for h in range(4): a(f'v_add_f32 v{VSV+h}, v{VSV+h}, v{VDV+h}')
    for h in range(4): a(f'v_mul_f32 v{VDV+h}, 0x3e4ccccd, v{VSV+h}')
    for h in range(4): a(f'v_max_f32 v{VSV+h}, v{VSV+h}, v{VDV+h}')
    for h in range(4): a(f'v_exp_f32 v{VSV+h}, v{VSV+h}')
    a(f'v_lshrrev_b32 v{T0}, 5, v{V_TID}')
    a(f'v_lshlrev_b32 v{T0}, 10, v{T0}')
    a(f'v_and_b32 v{T1}, 3, v{V_TID}')
    a(f'v_lshl_add_u32 v{T0}, v{T1}, 8, v{T0}')
    a(f'v_bfe_u32 v{T1}, v{V_TID}, 2, 3')
    a(f'v_lshl_add_u32 v{T0}, v{T1}, 1, v{T0}')
    a(f'v_bfe_u32 v{T1}, v{VLE}, 3, 2')
    a(f'v_lshl_add_u32 v{T0}, v{T1}, 6, v{T0}')
    a(f'v_add_u32 v{T0}, {AP}, v{T0}')
    a(f'v_cvt_pk_bf16_f32 v{VDV}, v{VSV}, v{VSV+1}')
    a(f'v_cvt_pk_bf16_f32 v{VDV+1}, v{VSV+2}, v{VSV+3}')
    a(f'ds_write_b16 v{T0}, v{VDV}')
    a(f'ds_write_b16_d16_hi v{T0}, v{VDV} offset:16')
    a(f'ds_write_b16 v{T0}, v{VDV+1} offset:32')
    a(f'ds_write_b16_d16_hi v{T0}, v{VDV+1} offset:48')
    a(f'{noe}:')
    a('s_mov_b64 exec, -1')
    a('s_waitcnt lgkmcnt(0)')
    a('s_barrier')
    nom = a.label('sl_nom'); ls = a.label('sl_step')
    a(f's_cmp_ge_u32 s{S_GG}, 5')
    a(f's_cselect_b32 s{S_T0}, 1, 0')
    a(f's_cmp_lg_u32 s{S_T0}, s{S_HF}')
    a(f's_cbranch_scc1 {nom}')
    for i in range(4): a(f'v_mov_b32 v{V_ONE+i}, 0x3f803f80')
    a(f's_mov_b32 s{S_STEP}, 0')
    a(f'{ls}:')
    a(f's_lshl_b32 s{S_T0}, s{S_STEP}, 7')
    a(f'v_add_u32 v{T0}, s{S_T0}, v{V_LST}')
    a(f's_lshl_b32 s{S_T0}, s{S_STEP}, 10')
    a(f'v_add_u32 v{T1}, s{S_T0}, v{V_AW}')
    a(f'ds_read_b128 v[{V_IDX}:{V_IDX+3}], v{T0}')
    a(f'ds_read_b128 v[{V_AF}:{V_AF+3}], v{T1}')
    a(f's_mov_b32 m0, s{S_RING}')
    a('s_waitcnt lgkmcnt(0)')
    for c in range(4):
        a(f'v_and_or_b32 v{V_IDX+c}, v{V_IDX+c}, s{S_M}, v{V_SWE if c % 2 == 0 else V_SWO}')
    for c in range(4):
        a(f'buffer_load_dwordx4 v{V_IDX+c}, s[{S_X}:{S_X+3}], s{S_XSO+c} offen offset:{c*1024} lds')
    a('s_waitcnt vmcnt(0)')
    for j in range(4):
        a(f'ds_read_b64_tr_b16 v[{V_BF+4*j}:{V_BF+4*j+1}], v{V_TR+j}')
        a(f'ds_read_b64_tr_b16 v[{V_BF+4*j+2}:{V_BF+4*j+3}], v{V_TR+j} offset:512')
    a('s_waitcnt lgkmcnt(0)')
    a(f'v_mfma_f32_16x16x32_bf16 v[{V_DEN}:{V_DEN+3}], v[{V_AF}:{V_AF+3}], v[{V_ONE}:{V_ONE+3}], v[{V_DEN}:{V_DEN+3}]')
    for j in range(4):
        d = V_ACC + 4*j
        a(f'v_mfma_f32_16x16x32_bf16 v[{d}:{d+3}], v[{V_AF}:{V_AF+3}], v[{V_BF+4*j}:{V_BF+4*j+3}], v[{d}:{d+3}]')
    a(f's_add_u32 s{S_STEP}, s{S_STEP}, 1')
    a(f's_lshl_b32 s{S_T0}, s{S_STEP}, 5')
    a(f's_cmp_lt_u32 s{S_T0}, s{S_CNT}')
    a(f's_cbranch_scc1 {ls}')
    a(f'{nom}:')
    a('s_barrier')
    reset()
    a(f'{Lnext}:')
    a(f's_add_u32 s{S_CH}, s{S_CH}, 1')
    a(f's_cmp_lt_u32 s{S_CH}, 1250')
    a(f's_cbranch_scc1 {Lc}')
    a(f's_cmp_ge_u32 s{S_GG}, 5')
    a(f's_cselect_b32 s{S_T0}, 1, 0')
    a(f's_cmp_lg_u32 s{S_T0}, s{S_HF}')
    a(f's_cbranch_scc1 {Lge}')
    a(f's_mul_i32 s{S_T1}, s{S_HF}, 5')
    a(f's_sub_u32 s{S_T0}, s{S_GG}, s{S_T1}')
    a(f's_lshl_b32 s{S_T0}, s{S_T0}, 3')
    a('s_nop 7')
    g.group_end_math()
    a(f'{Lge}:')
    a(f's_add_u32 s{S_GG}, s{S_GG}, 1')
    a(f's_cmp_lt_u32 s{S_GG}, 10')
    a(f's_cbranch_scc1 {Lg}')
    for t in range(NA): g.wload(t)
    a('s_waitcnt vmcnt(0)')
    a('s_branch L_aggw')
```

```python
def emit_slow(g):
    import sys
    m = sys.modules[type(g).__module__]
    globals().update({k: v for k, v in vars(m).items() if k.isupper() or k == 'R'})
    a = g.a
    VD, VS, VLE, VCNT, VSV, VDV = 112, 113, 114, 115, 116, 120
    T0, T1, T2, T3 = 124, 125, 126, 127
    VZ = 128
    S_CH, S_GG, S_CNT, S_STEP = 30, 31, 62, 63
    a('L_slow:')
    a('s_waitcnt vmcnt(0) lgkmcnt(0)')
    a('s_mov_b64 exec, -1')
    for i in range(4): a(f'v_mov_b32 v{VZ+i}, 0')
    for i in range(4): a(f'v_mov_b32 v{VZ+4+i}, 0x40000000')
    if g.o.get('slowdbg'):
        a(f'v_mov_b32 v{T0}, 1')
        a(f'v_mov_b32 v{T1}, s{S_T0}')
        a(f'v_mov_b32 v{T2}, s2')
        a('s_mov_b64 exec, 1')
        a(f'buffer_atomic_add v{T0}, off, s[{S_DBG}:{S_DBG+3}], 0 offset:16')
        a(f'buffer_store_dword v{T1}, off, s[{S_DBG}:{S_DBG+3}], 0 offset:20')
        a(f'buffer_store_dword v{T2}, off, s[{S_DBG}:{S_DBG+3}], 0 offset:24')
        a('s_mov_b64 exec, -1')
    a('s_barrier')
    a(f's_mov_b32 s{S_GG}, 0')
    Lg = a.label('sl_g'); Lc = a.label('sl_c'); Lnext = a.label('sl_next'); Lge = a.label('sl_ge')

    def reset():
        a(f'v_lshlrev_b32 v{T0}, 4, v{V_TID}')
        a(f'v_add_u32 v{T1}, {AP}, v{T0}')
        a(f'v_cmpx_gt_u32 vcc, 0x100, v{V_TID}')
        a(f'ds_write_b128 v{T1}, v[{VZ}:{VZ+3}]')
        a(f'v_add_u32 v{T1}, {LIST}, v{T0}')
        a(f'v_cmpx_gt_u32 vcc, 32, v{V_TID}')
        a(f'ds_write_b128 v{T1}, v[{VZ+4}:{VZ+7}]')
        a(f'v_mov_b32 v{T1}, {M_SCNT}')
        a(f'ds_write_b32 v{T1}, v{VZ}')
        a('s_mov_b64 exec, -1')
        a('s_waitcnt lgkmcnt(0)')
        a('s_barrier')

    a(f'{Lg}:')
    for i in range(0, 20, 2): a(f'v_mov_b64 v[{V_ACC+i}:{V_ACC+i+1}], 0')
    reset()
    a(f's_mov_b32 s{S_CH}, 0')
    a(f'{Lc}:')
    a(f'v_lshlrev_b32 v{T0}, 2, v{V_TID}')
    a(f's_lshl_b32 s{S_T0}, s{S_CH}, 9')
    a(f'v_cmpx_gt_u32 vcc, 0x80, v{V_TID}')
    a(f'buffer_load_dword v{VD}, v{T0}, s[{S_DST}:{S_DST+3}], s{S_T0} offen')
    a(f'buffer_load_dword v{VS}, v{T0}, s[{S_SRC}:{S_SRC+3}], s{S_T0} offen')
    a(f's_mul_i32 s{S_T1}, s2, 40')
    a(f's_lshl_b32 s{S_T2}, s{S_GG}, 2')
    a(f's_add_u32 s{S_T2}, s{S_T2}, s{S_T1}')
    a('s_waitcnt vmcnt(0)')
    a(f'v_subrev_u32 v{T1}, s{S_T2}, v{VD}')
    a(f'v_subrev_u32 v{T2}, s{S_T1}, v{VD}')
    a(f'v_cmpx_gt_u32 vcc, 4, v{T1}')
    a(f'v_mov_b32 v{T0}, {M_SCNT}')
    a(f'v_mov_b32 v{T1}, 1')
    a(f'ds_add_rtn_u32 v{T3}, v{T0}, v{T1}')
    a(f'v_lshlrev_b32 v{VLE}, 9, v{VS}')
    a(f'v_lshl_or_b32 v{VLE}, v{T2}, 3, v{VLE}')
    a('s_waitcnt lgkmcnt(0)')
    a(f'v_lshl_add_u32 v{T3}, v{T3}, 2, v{V_LB}')
    a(f'ds_write_b32 v{T3}, v{VLE}')
    a('s_mov_b64 exec, -1')
    a('s_waitcnt lgkmcnt(0)')
    a('s_barrier')
    a(f'v_mov_b32 v{T0}, {M_SCNT}')
    a(f'ds_read_b32 v{VCNT}, v{T0}')
    a('s_waitcnt lgkmcnt(0)')
    a(f'v_readfirstlane_b32 s{S_CNT}, v{VCNT}')
    a('s_barrier')
    a(f's_cmp_eq_u32 s{S_CNT}, 0')
    a(f's_cbranch_scc1 {Lnext}')
    noe = a.label('sl_noe')
    a(f'v_cmpx_gt_u32 vcc, s{S_CNT}, v{V_TID}')
    a(f's_cbranch_execz {noe}')
    a(f'v_lshl_add_u32 v{T0}, v{V_TID}, 2, v{V_LB}')
    a(f'ds_read_b32 v{VLE}, v{T0}')
    a('s_waitcnt lgkmcnt(0)')
    a(f'v_lshrrev_b32 v{T0}, 5, v{VLE}')
    a(f'v_and_b32 v{VD}, 0x3fff0, v{T0}')
    a(f'v_lshlrev_b32 v{T0}, 1, v{VLE}')
    a(f'v_and_b32 v{T0}, 0x3f0, v{T0}')
    a(f'v_add_u32 v{T0}, {SDST}, v{T0}')
    a(f'ds_read_b128 v[{VDV}:{VDV+3}], v{T0}')
    a(f's_mov_b32 s{S_T0}, {WS_STAB}')
    lp = a.label('sl_poll'); ok = a.label('sl_ok')
    a(f'{lp}:')
    a(f'buffer_load_dwordx4 v[{VSV}:{VSV+3}], v{VD}, s[{S_WS}:{S_WS+3}], s{S_T0} offen sc1')
    a('s_waitcnt vmcnt(0) lgkmcnt(0)')
    g.tagcheck(VSV, T0, True, T1, T2)
    a(f'v_and_b32 v{T0}, 0xfff, v{T0}')
    a(f'v_cmp_ne_u32 vcc, 0, v{T0}')
    a(f's_cbranch_vccz {ok}')
    a(f's_add_u32 s{S_POLL}, s{S_POLL}, 1')
    a(f's_cmp_lt_u32 s{S_POLL}, {POLL_MAX*16}')
    a(f's_cbranch_scc1 {lp}')
    a(f'{ok}:')
    a(f's_mov_b32 s{S_T0}, 0xfffff000')
    for h in range(4): a(f'v_and_b32 v{VSV+h}, s{S_T0}, v{VSV+h}')
    for h in range(4): a(f'v_add_f32 v{VSV+h}, v{VSV+h}, v{VDV+h}')
    for h in range(4): a(f'v_mul_f32 v{VDV+h}, 0x3e4ccccd, v{VSV+h}')
    for h in range(4): a(f'v_max_f32 v{VSV+h}, v{VSV+h}, v{VDV+h}')
    for h in range(4): a(f'v_exp_f32 v{VSV+h}, v{VSV+h}')
    a(f'v_lshrrev_b32 v{T0}, 5, v{V_TID}')
    a(f'v_lshlrev_b32 v{T0}, 10, v{T0}')
    a(f'v_and_b32 v{T1}, 3, v{V_TID}')
    a(f'v_lshl_add_u32 v{T0}, v{T1}, 8, v{T0}')
    a(f'v_bfe_u32 v{T1}, v{V_TID}, 2, 3')
    a(f'v_lshl_add_u32 v{T0}, v{T1}, 1, v{T0}')
    a(f'v_bfe_u32 v{T1}, v{VLE}, 3, 2')
    a(f'v_lshl_add_u32 v{T0}, v{T1}, 6, v{T0}')
    a(f'v_add_u32 v{T0}, {AP}, v{T0}')
    a(f'v_cvt_pk_bf16_f32 v{VDV}, v{VSV}, v{VSV+1}')
    a(f'v_cvt_pk_bf16_f32 v{VDV+1}, v{VSV+2}, v{VSV+3}')
    a(f'ds_write_b16 v{T0}, v{VDV}')
    a(f'ds_write_b16_d16_hi v{T0}, v{VDV} offset:16')
    a(f'ds_write_b16 v{T0}, v{VDV+1} offset:32')
    a(f'ds_write_b16_d16_hi v{T0}, v{VDV+1} offset:48')
    a(f'{noe}:')
    a('s_mov_b64 exec, -1')
    a('s_waitcnt lgkmcnt(0)')
    a('s_barrier')
    nom = a.label('sl_nom'); ls = a.label('sl_step')
    a(f's_cmp_ge_u32 s{S_GG}, 5')
    a(f's_cselect_b32 s{S_T0}, 1, 0')
    a(f's_cmp_lg_u32 s{S_T0}, s{S_HF}')
    a(f's_cbranch_scc1 {nom}')
    for i in range(4): a(f'v_mov_b32 v{V_ONE+i}, 0x3f803f80')
    a(f's_mov_b32 s{S_STEP}, 0')
    a(f'{ls}:')
    a(f's_lshl_b32 s{S_T0}, s{S_STEP}, 7')
    a(f'v_add_u32 v{T0}, s{S_T0}, v{V_LST}')
    a(f's_lshl_b32 s{S_T0}, s{S_STEP}, 10')
    a(f'v_add_u32 v{T1}, s{S_T0}, v{V_AW}')
    a(f'ds_read_b128 v[{V_IDX}:{V_IDX+3}], v{T0}')
    a(f'ds_read_b128 v[{V_AF}:{V_AF+3}], v{T1}')
    a(f's_mov_b32 m0, s{S_RING}')
    a('s_waitcnt lgkmcnt(0)')
    for c in range(4):
        a(f'v_and_or_b32 v{V_IDX+c}, v{V_IDX+c}, s{S_M}, v{V_SWE if c % 2 == 0 else V_SWO}')
    for c in range(4):
        a(f'buffer_load_dwordx4 v{V_IDX+c}, s[{S_X}:{S_X+3}], s{S_XSO+c} offen offset:{c*1024} lds')
    a('s_waitcnt vmcnt(0)')
    for j in range(4):
        a(f'ds_read_b64_tr_b16 v[{V_BF+4*j}:{V_BF+4*j+1}], v{V_TR+j}')
        a(f'ds_read_b64_tr_b16 v[{V_BF+4*j+2}:{V_BF+4*j+3}], v{V_TR+j} offset:512')
    a('s_waitcnt lgkmcnt(0)')
    a(f'v_mfma_f32_16x16x32_bf16 v[{V_DEN}:{V_DEN+3}], v[{V_AF}:{V_AF+3}], v[{V_ONE}:{V_ONE+3}], v[{V_DEN}:{V_DEN+3}]')
    for j in range(4):
        d = V_ACC + 4*j
        a(f'v_mfma_f32_16x16x32_bf16 v[{d}:{d+3}], v[{V_AF}:{V_AF+3}], v[{V_BF+4*j}:{V_BF+4*j+3}], v[{d}:{d+3}]')
    a(f's_add_u32 s{S_STEP}, s{S_STEP}, 1')
    a(f's_lshl_b32 s{S_T0}, s{S_STEP}, 5')
    a(f's_cmp_lt_u32 s{S_T0}, s{S_CNT}')
    a(f's_cbranch_scc1 {ls}')
    a(f'{nom}:')
    a('s_barrier')
    reset()
    a(f'{Lnext}:')
    a(f's_add_u32 s{S_CH}, s{S_CH}, 1')
    a(f's_cmp_lt_u32 s{S_CH}, 1250')
    a(f's_cbranch_scc1 {Lc}')
    a(f's_cmp_ge_u32 s{S_GG}, 5')
    a(f's_cselect_b32 s{S_T0}, 1, 0')
    a(f's_cmp_lg_u32 s{S_T0}, s{S_HF}')
    a(f's_cbranch_scc1 {Lge}')
    a(f's_mul_i32 s{S_T1}, s{S_HF}, 5')
    a(f's_sub_u32 s{S_T0}, s{S_GG}, s{S_T1}')
    a(f's_lshl_b32 s{S_T0}, s{S_T0}, 3')
    a('s_nop 7')
    g.group_end_math()
    a(f'{Lge}:')
    a(f's_add_u32 s{S_GG}, s{S_GG}, 1')
    a(f's_cmp_lt_u32 s{S_GG}, 10')
    a(f's_cbranch_scc1 {Lg}')
    for t in range(NA): g.wload(t)
    if hasattr(g, 'tail_consts'): g.tail_consts()
    a('s_waitcnt vmcnt(0)')
    a('s_branch L_aggw')
```

```python
import sys, argparse, json
from asmcore import Asm, check

KNAME = 'gather_scatter__graph_attention_gat__graph_kernel'
NB = 250
WS_TABLE = 0
WS_UTAB = 0x400000
WS_STAB = 0x410000
WS_WFLG = 0x440000
WS_WSW = 0x480000
WS_TS = 0x500000
WS_SIZE = 0x600000
RINGW = 12288
R = 3
NPRE = 8
NA = 2
IMG = 4*RINGW
CNT = IMG + 16384
AP = 8*RINGW
XCH = AP
SDST = AP + 40960
GCNT = SDST + 1024
UT = SDST + 2048
MISC = GCNT + 64
LIST = AP + 49152
LDS_SIZE = LIST + 5248
assert LIST % 8192 == 0 and SDST % 1024 == 0 and GCNT % 64 == 0 and LDS_SIZE <= 163840
M_NONCE = MISC
M_SLOW = MISC + 8
M_SCNT = MISC + 12
M_SYNC = MISC + 16
S_X, S_W, S_WS, S_SRC, S_DST, S_DBG, S_OUT = 4, 8, 12, 16, 20, 32, 36
S_WB = 3
S_TOT = 24
S_FIRST = 24
S_RET = 26
S_SYO, S_SYX = 28, 29
S_WAVE, S_SET, S_W3, S_HF = 40, 41, 42, 43
S_T = 44
S_SLICE, S_NPK = 48, 49
S_XSO = 52
S_RING, S_SLOT, S_J, S_DELTA = 56, 57, 58, 59
S_N = 60
S_G, S_LEFT, S_JC, S_AOFF = 60, 61, 62, 63
S_T0, S_T1, S_T2 = 65, 66, 67
S_EX, S_EX2 = 68, 70
S_KA = 72
S_TS = 90
S_C0, S_C1, S_C2, S_C3 = 92, 93, 94, 95
S_POLL, S_M = 96, 97
S_U0, S_U1, S_U2, S_U3 = 98, 99, 100, 101
V_TID, V_LANE = 0, 1
V_TR = 2
V_AW, V_LB, V_LST = 6, 7, 8
V_SWE, V_SWO = 9, 10
V_TAB = 11
V_IDX = 12
V_AF = 16
V_MF = 20
V_A, V_B, V_C, V_D, V_E, V_F, V_G = 24, 25, 26, 27, 28, 29, 30
V_ONE = 24
V_TSR = 31
V_ACC = 32
V_DEN = 48
V_PK = 52
V_TW, V_WE = 100, 23
V_UN = 104
V_W = 112
V_BF = 240

POLL_MAX = 200000
EMPTY = 0xfffff000


class Gen:
    def __init__(self, opt):
        self.o = opt
        self.a = Asm()
        self.tsn = {}
        self.deferred = []

    def ts(self, name):
        if not self.o.get('ts'): return
        tsf = self.o.get('tsf')
        if tsf and name != 'start' and name not in tsf.split(','): return
        a = self.a
        if name not in self.tsn: self.tsn[name] = len(self.tsn)
        idx = self.tsn[name]
        assert idx < 28
        a(f's_memrealtime s[{S_TS}:{S_TS+1}]')
        a('s_waitcnt lgkmcnt(0)')
        a(f'v_writelane_b32 v{V_TSR}, s{S_TS}, {idx}')

    def srd(self, r, base, size, shift=0):
        a = self.a
        if shift:
            a(f's_sub_u32 s{r}, s{base}, {shift}')
            a(f's_subb_u32 s{r+1}, s{base+1}, 0')
            a(f's_and_b32 s{r+1}, s{r+1}, 0xffff')
        else:
            a(f's_mov_b32 s{r}, s{base}')
            a(f's_and_b32 s{r+1}, s{base+1}, 0xffff')
        a(f's_mov_b32 s{r+2}, {size}')
        a(f's_mov_b32 s{r+3}, 0x20000')

    def tagcheck(self, base, acc, first, t0, t1):
        a = self.a
        if first:
            a(f'v_xor_b32 v{acc}, s{S_T}, v{base}')
            a(f'v_xor_b32 v{t0}, s{S_T+1}, v{base+1}')
            a(f'v_xor_b32 v{t1}, s{S_T+2}, v{base+2}')
            a(f'v_or3_b32 v{acc}, v{acc}, v{t0}, v{t1}')
            a(f'v_xor_b32 v{t0}, s{S_T+3}, v{base+3}')
            a(f'v_or_b32 v{acc}, v{acc}, v{t0}')
        else:
            a(f'v_xor_b32 v{t0}, s{S_T}, v{base}')
            a(f'v_xor_b32 v{t1}, s{S_T+1}, v{base+1}')
            a(f'v_or3_b32 v{acc}, v{acc}, v{t0}, v{t1}')
            a(f'v_xor_b32 v{t0}, s{S_T+2}, v{base+2}')
            a(f'v_xor_b32 v{t1}, s{S_T+3}, v{base+3}')
            a(f'v_or3_b32 v{acc}, v{acc}, v{t0}, v{t1}')

    def poll_check(self, acc, reload_fn, name):
        a = self.a
        rt = a.label(name + '_retry'); ok = a.label(name + '_ok')
        a(f'v_and_b32 v{acc}, 0xfff, v{acc}')
        a(f'v_cmp_ne_u32 vcc, 0, v{acc}')
        a(f's_cbranch_vccnz {rt}')
        a(f'{ok}:')
        def blk():
            a(f'{rt}:')
            a(f's_add_u32 s{S_POLL}, s{S_POLL}, 1')
            a(f's_cmp_gt_u32 s{S_POLL}, {POLL_MAX}')
            a(f's_cbranch_scc1 {ok}')
            a('s_sleep 2')
            reload_fn()
            a(f'v_and_b32 v{acc}, 0xfff, v{acc}')
            a(f'v_cmp_ne_u32 vcc, 0, v{acc}')
            a(f's_cbranch_vccnz {rt}')
            a(f's_branch {ok}')
        self.deferred.append(blk)

    def signal(self, k, own=True):
        a = self.a
        a(f'v_mov_b32 v{V_E}, s{S_SYO if own else S_SYX}')
        a(f'v_mov_b32 v{V_F}, 1')
        a('s_waitcnt lgkmcnt(0)')
        a('s_mov_b64 exec, 1')
        a(f'ds_add_u32 v{V_E}, v{V_F} offset:{4*k}')
        a('s_mov_b64 exec, -1')

    def waitfor(self, k, own=True, n=4, have=False):
        a = self.a
        if not have: a(f'v_mov_b32 v{V_E}, s{S_SYO if own else S_SYX}')
        lp = a.label('sync'); dn = a.label('syncd')
        a(f'{lp}:')
        a(f'ds_read_b32 v{V_F}, v{V_E} offset:{4*k}')
        a('s_waitcnt lgkmcnt(0)')
        a(f'v_cmp_gt_u32 vcc, {n}, v{V_F}')
        a(f's_cbranch_vccz {dn}')
        a(f's_add_u32 s{S_POLL}, s{S_POLL}, 1')
        a(f's_cmp_lt_u32 s{S_POLL}, {POLL_MAX*8}')
        a(f's_cbranch_scc1 {lp}')
        a(f'{dn}:')

    def setsync(self, k):
        self.signal(k); self.waitfor(k, have=True)

    def fill(self, base, nbytes, vq, vaddr):
        a = self.a
        n = nbytes // 16
        a(f'v_lshlrev_b32 v{vaddr}, 4, v{V_TID}')
        a(f'v_add_u32 v{vaddr}, {base}, v{vaddr}')
        r = 0
        while n > 0:
            if n >= 512:
                a(f'ds_write_b128 v{vaddr}, v[{vq}:{vq+3}] offset:{r*8192}')
            else:
                a(f'v_cmpx_gt_u32 vcc, {n}, v{V_TID}')
                a(f'ds_write_b128 v{vaddr}, v[{vq}:{vq+3}] offset:{r*8192}')
                a('s_mov_b64 exec, -1')
            n -= 512; r += 1

    def prologue(self):
        a = self.a; o = self.o
        a(f's_cmp_ge_u32 s2, {NB}')
        a('s_cbranch_scc1 L_end')
        a(f's_load_dwordx16 s[{S_KA}:{S_KA+15}], s[0:1], 0')
        a(f's_load_dwordx2 s[{S_KA+16}:{S_KA+17}], s[0:1], 64')
        if o.get('cpf', 1):
            a(f's_getpc_b64 s[{S_U0}:{S_U0+1}]')
            a('L_pc:')
            a('v_lshlrev_b32 v254, 6, v0')
            a('v_min_u32 v254, L_hot_end-L_pc, v254')
            a(f'global_load_dword v255, v254, s[{S_U0}:{S_U0+1}]')
            if o.get('cpfw') == 1: a('s_waitcnt vmcnt(0)')
        a('s_memrealtime s[50:51]')
        a(f'v_lshrrev_b32 v{V_A}, 6, v0')
        a(f'v_and_b32 v{V_LANE}, 63, v0')
        if o.get('ts'): a(f'v_mov_b32 v{V_TSR}, 0')
        a(f'v_readfirstlane_b32 s{S_WAVE}, v{V_A}')
        for i in range(4): a(f'v_mov_b32 v{104+i}, {EMPTY}')
        a(f'v_lshlrev_b32 v103, 4, v{V_TID}')
        a(f'v_add_u32 v103, {IMG}, v103')
        a('ds_write_b128 v103, v[104:107]')
        a('ds_write_b128 v103, v[104:107] offset:8192')
        for i in range(4): a(f'v_mov_b32 v{108+i}, 0')
        a(f'v_cmpx_gt_u32 vcc, 64, v{V_TID}')
        a('ds_write_b128 v103, v[108:111] offset:16384')
        a('s_mov_b64 exec, -1')
        a(f's_lshr_b32 s{S_SET}, s{S_WAVE}, 2')
        a(f's_and_b32 s{S_W3}, s{S_WAVE}, 3')
        a(f's_mov_b32 s{S_POLL}, 0')
        a(f'v_and_b32 v{V_C}, 15, v{V_LANE}')
        a(f'v_lshrrev_b32 v{V_E}, 4, v{V_LANE}')
        a(f'v_lshlrev_b32 v{V_E}, 4, v{V_E}')
        a(f'v_lshl_add_u32 v{V_F}, v{V_C}, 9, v{V_E}')
        a(f'v_and_b32 v{V_C}, 1, v{V_LANE}')
        a(f'v_cmp_eq_u32 vcc, 1, v{V_C}')
        a(f'v_lshlrev_b32 v{V_A}, 3, v{V_TID}')
        a(f'v_lshlrev_b32 v{V_B}, 2, v{V_TID}')
        a('s_waitcnt lgkmcnt(0)')
        if o.get('cpfw') == 2: a('s_waitcnt vmcnt(0)')
        self.ts('start')

    def tlb_touch(self):
        a = self.a; o = self.o
        k = S_KA
        sk = a.label('notouch')
        a(f's_cmp_lg_u32 s{S_WAVE}, {o.get("tw", 7)}')
        a(f's_cbranch_scc1 {sk}')
        if o['touch'] == 1:
            a(f's_lshr_b32 s{S_T0}, s2, 3')
            a(f's_cmp_lg_u32 s{S_T0}, 30')
            a(f's_cbranch_scc1 {sk}')
        pages = [(0, 0), (0, 1), (0, 2), (2, 0), (4, 0), (6, 0), (8, 0), (10, 0), (12, 0), (12, 1), (12, 2), (14, 0), (16, 0), (16, 1), (16, 2)]
        a(f'v_mov_b32 v250, s{k}')
        a(f'v_mov_b32 v251, s{k+1}')
        for l, (p, n) in enumerate(pages):
            if l == 0: continue
            if n:
                a(f's_add_u32 s{S_T0}, s{k+p}, {n*0x200000}')
                a(f's_addc_u32 s{S_T1}, s{k+p+1}, 0')
                a(f'v_writelane_b32 v250, s{S_T0}, {l}')
                a(f'v_writelane_b32 v251, s{S_T1}, {l}')
            else:
                a(f'v_writelane_b32 v250, s{k+p}, {l}')
                a(f'v_writelane_b32 v251, s{k+p+1}, {l}')
        a(f's_mov_b64 exec, {(1 << len(pages)) - 1}')
        a('global_load_dword v252, v[250:251], off')
        a('s_mov_b64 exec, -1')
        a(f'{sk}:')

    def issue_loads(self):
        a = self.a
        if self.o.get('touch'): self.tlb_touch()
        s1 = a.label('iss1'); dn = a.label('issdone')
        k = S_KA
        a(f's_cmp_eq_u32 s{S_SET}, 1')
        a(f's_cbranch_scc1 {s1}')
        self.srd(S_DST, k+4, 640000)
        self.srd(S_SRC, k+2, 640000)
        a(f's_mul_i32 s{S_T0}, s2, 2560')
        a(f'buffer_load_dwordx2 v[32:33], v{V_A}, s[{S_DST}:{S_DST+3}], s{S_T0} offen')
        a(f'buffer_load_dwordx2 v[34:35], v{V_A}, s[{S_SRC}:{S_SRC+3}], s{S_T0} offen')
        a(f's_cmp_lt_u32 s{S_WAVE}, 2')
        a('s_cselect_b64 exec, -1, 0')
        a(f'buffer_load_dword v36, v{V_B}, s[{S_DST}:{S_DST+3}], s{S_T0} offen offset:2048')
        a(f'buffer_load_dword v37, v{V_B}, s[{S_SRC}:{S_SRC+3}], s{S_T0} offen offset:2048')
        self.srd(S_DBG, k+14, 256)
        a(f's_or_b32 s{S_T0}, s2, s{S_WAVE}')
        a('s_bitset1_b32 s50, 31')
        a('s_bitset1_b32 s51, 31')
        a('v_mov_b32 v38, s50')
        a('v_mov_b32 v39, s51')
        a(f's_cmp_eq_u32 s{S_T0}, 0')
        a('s_cselect_b32 exec_lo, 1, 0')
        a('s_mov_b32 exec_hi, 0')
        a(f'buffer_store_dwordx2 v[38:39], off, s[{S_DBG}:{S_DBG+3}], 0 sc1')
        a('s_mov_b64 exec, -1')
        a(f's_branch {dn}')
        a(f'{s1}:')
        a(f's_sub_u32 s{S_U0}, s{S_WAVE}, 4')
        self.srd(S_W, k+6, 524288)
        t3 = a.label('not3')
        a(f's_sub_u32 s{S_U1}, s2, 64')
        a(f's_cmp_ge_u32 s{S_U1}, 128')
        a(f's_cbranch_scc1 {t3}')
        a(f's_lshr_b32 s{S_T0}, s{S_U1}, 6')
        a(f's_lshl_b32 s{S_T0}, s{S_T0}, 16')
        a(f's_and_b32 s{S_T1}, s{S_U1}, 15')
        a(f's_lshl_b32 s{S_T1}, s{S_T1}, 12')
        a(f's_add_u32 s{S_T0}, s{S_T0}, s{S_T1}')
        a(f's_bfe_u32 s{S_T1}, s{S_U1}, 0x20004')
        a(f's_lshl_b32 s{S_T1}, s{S_T1}, 7')
        a(f's_add_u32 s{S_T0}, s{S_T0}, s{S_T1}')
        a(f's_lshl_b32 s{S_T1}, s{S_U0}, 5')
        a(f's_add_u32 s{S_T0}, s{S_T0}, s{S_T1}')
        a(f'v_and_b32 v{V_C}, 15, v{V_LANE}')
        a(f'v_lshlrev_b32 v{V_C}, 1, v{V_C}')
        a(f'v_lshl_add_u32 v{V_C}, v{V_E}, 6, v{V_C}')
        for i in range(8):
            a(f's_add_u32 s{S_T1}, s{S_T0}, {(i & 3)*131072}')
            a(f'buffer_load_ushort v{(96 if i % 2 == 0 else 92) + (i >> 1)}, v{V_C}, s[{S_W}:{S_W+3}], s{S_T1} offen offset:{(i >> 2)*512}')
        a(f's_branch {dn}')
        a(f'{t3}:')
        a(f's_cmp_lg_u32 s{S_U0}, 3')
        a(f's_cbranch_scc1 {dn}')
        a('s_cmp_ge_u32 s2, 64')
        a(f's_cbranch_scc1 {dn}')
        a(f's_lshl_b32 s{S_T0}, s2, 13')
        for t in range(8):
            a(f'buffer_load_dwordx4 v[{32+4*t}:{35+4*t}], v{V_F}, s[{S_W}:{S_W+3}], s{S_T0} offen offset:{64*t}')
        a(f'v_mov_b32 v{V_C}, s{S_KA+8}')
        a(f'v_mov_b32 v{V_D}, s{S_KA+10}')
        a(f'v_cndmask_b32 v{V_C}, v{V_C}, v{V_D}, vcc')
        a(f'v_mov_b32 v{V_D}, s{S_KA+9}')
        a(f'v_mov_b32 v{V_G}, s{S_KA+11}')
        a(f'v_cndmask_b32 v{V_D}, v{V_D}, v{V_G}, vcc')
        a(f's_lshr_b32 s{S_T1}, s2, 4')
        a(f's_lshl_b32 s{S_T1}, s{S_T1}, 9')
        a(f'v_add_u32 v{V_E}, s{S_T1}, v{V_E}')
        a(f'v_add_co_u32 v{V_C}, vcc, v{V_C}, v{V_E}')
        a('s_nop 1')
        a(f'v_addc_co_u32 v{V_D}, vcc, 0, v{V_D}, vcc')
        for t in range(8):
            a(f'global_load_dwordx4 v[{64+4*t}:{67+4*t}], v[{V_C}:{V_C+1}], off offset:{64*t}')
        a(f'{dn}:')

    def late_consts(self):
        a = self.a; o = self.o
        k = S_KA
        self.srd(S_WS, k+16, WS_SIZE)
        self.srd(S_X, k+0, 5120000+4096, shift=4096)
        self.srd(S_W, k+6, 524288)
        self.srd(S_DST, k+4, 640000)
        self.srd(S_SRC, k+2, 640000)
        self.srd(S_OUT, k+12, 5120000)
        a(f'v_and_b32 v{V_A}, 15, v{V_LANE}')
        a(f'v_lshrrev_b32 v{V_B}, 4, v{V_LANE}')
        a(f's_lshr_b32 s{S_HF}, s{S_W3}, 1')
        a(f's_mul_i32 s{S_RING}, s{S_WAVE}, {RINGW}')
        a(f's_and_b32 s{S_T0}, s{S_W3}, 1')
        a(f's_lshl_b32 s{S_T1}, s{S_SET}, 1')
        a(f's_add_u32 s{S_SLICE}, s{S_T0}, s{S_T1}')
        a(f'v_lshrrev_b32 v{V_C}, 3, v{V_A}')
        a(f'v_and_b32 v{V_D}, 1, v{V_B}')
        a(f'v_lshl_or_b32 v{V_C}, v{V_D}, 1, v{V_C}')
        a(f'v_lshrrev_b32 v{V_D}, 2, v{V_A}')
        a(f'v_lshlrev_b32 v{V_D}, 7, v{V_D}')
        a(f'v_lshl_add_u32 v{V_D}, v{V_B}, 10, v{V_D}')
        a(f'v_bfe_u32 v{V_E}, v{V_A}, 1, 1')
        a(f'v_lshl_add_u32 v{V_D}, v{V_E}, 4, v{V_D}')
        a(f'v_and_b32 v{V_E}, 1, v{V_A}')
        a(f'v_lshl_add_u32 v{V_D}, v{V_E}, 3, v{V_D}')
        a(f'v_add_u32 v{V_D}, s{S_RING}, v{V_D}')
        for j in range(4):
            a(f'v_xor_b32 v{V_E}, {j}, v{V_C}')
            a(f'v_lshl_add_u32 v{V_TR+j}, v{V_E}, 5, v{V_D}')
        a(f'v_lshlrev_b32 v{V_WE}, 4, v{V_LANE}')
        a(f'v_add_u32 v{V_AW}, {AP}, v{V_WE}')
        a(f'v_mov_b32 v{V_LB}, {LIST}')
        a(f'v_lshrrev_b32 v{V_C}, 3, v{V_LANE}')
        a(f'v_lshl_add_u32 v{V_LST}, v{V_C}, 4, v{V_LB}')
        a(f'v_and_b32 v{V_D}, 2, v{V_C}')
        a(f'v_and_b32 v{V_E}, 7, v{V_LANE}')
        a(f'v_xor_b32 v{V_E}, v{V_E}, v{V_D}')
        a(f'v_lshlrev_b32 v{V_SWE}, 4, v{V_E}')
        a(f'v_xor_b32 v{V_SWO}, 64, v{V_SWE}')
        a(f's_mov_b32 s{S_M}, 0xfffffe00')
        a(f's_lshl_b32 s{S_T0}, s{S_SLICE}, 7')
        for c in range(4):
            a(f's_add_u32 s{S_XSO+c}, s{S_T0}, {4096 - c*1024}')
        a(f's_mov_b32 s{S_C3}, {(-(R-1)*4096) & 0xffffffff}')
        a(f's_lshl_b32 s{S_WB}, s{S_WAVE}, 16')
        a(f's_add_u32 s{S_WB}, s{S_WB}, {WS_WSW}')
        a(f's_lshl_b32 s{S_T0}, s{S_SET}, 5')
        a(f's_add_u32 s{S_SYO}, s{S_T0}, {M_SYNC}')
        a(f's_xor_b32 s{S_T0}, s{S_T0}, 32')
        a(f's_add_u32 s{S_SYX}, s{S_T0}, {M_SYNC}')
        self.lds_reset()

    def lds_reset(self):
        a = self.a
        for i in range(4): a(f'v_mov_b32 v{104+i}, 0')
        self.fill(AP, 40960, 104, 103)
        a(f'v_lshlrev_b32 v103, 4, v{V_TID}')
        a(f'v_add_u32 v103, {GCNT}, v103')
        a(f'v_cmpx_gt_u32 vcc, 4, v{V_TID}')
        a(f'ds_write_b128 v103, v[104:107]')
        a('s_mov_b64 exec, -1')
        a(f'v_lshlrev_b32 v103, 3, v{V_TID}')
        a(f'v_add_u32 v103, {M_SLOW}, v103')
        a(f'v_cmpx_gt_u32 vcc, 10, v{V_TID}')
        a(f'ds_write_b64 v103, v[104:105]')
        a('s_mov_b64 exec, -1')
        for i in range(4): a(f'v_mov_b32 v{104+i}, 0x40000000')
        self.fill(LIST, 5248, 104, 103)

    def unit_consts(self, slot, glo, ghi, rb, mask):
        a = self.a
        U = V_UN + 4*slot
        a(f'v_mov_b32 v{V_C}, s{ghi}')
        a(f'v_mov_b32 v{V_D}, s{glo}')
        a(f'v_cndmask_b32 v{V_C}, v{V_C}, v{V_D}, s[{S_EX2}:{S_EX2+1}]')
        a(f'v_and_b32 v{U}, s{mask}, v{V_LANE}')
        a(f'v_add_u32 v{U}, s{rb}, v{U}')
        a(f'v_lshlrev_b32 v{U+1}, 2, v{V_C}')
        a(f'v_add_u32 v{U+1}, {GCNT}, v{U+1}')
        a(f'v_lshl_add_u32 v{V_E}, v{V_C}, 9, v{V_LB}')
        a(f'v_lshl_add_u32 v{U+2}, v{U}, 2, v{V_E}')
        a(f'v_lshlrev_b32 v{V_E}, 12, v{V_C}')
        a(f'v_lshrrev_b32 v{V_D}, 5, v{U}')
        a(f'v_lshl_add_u32 v{V_E}, v{V_D}, 10, v{V_E}')
        a(f'v_and_b32 v{V_D}, 3, v{U}')
        a(f'v_lshl_add_u32 v{V_E}, v{V_D}, 8, v{V_E}')
        a(f'v_bfe_u32 v{V_D}, v{U}, 2, 3')
        a(f'v_lshl_add_u32 v{V_E}, v{V_D}, 1, v{V_E}')
        a(f'v_add_u32 v{U+3}, {AP}, v{V_E}')

    def unit_setup(self):
        a = self.a
        a(f'v_cmp_gt_u32 vcc, 32, v{V_LANE}')
        a(f's_mov_b64 s[{S_EX2}:{S_EX2+1}], vcc')
        a(f's_mov_b32 s{S_U2}, 0')
        a(f's_mov_b32 s{S_U3}, 63')
        self.unit_consts(0, S_WAVE, S_WAVE, S_U2, S_U3)
        a(f's_add_u32 s{S_T0}, s{S_WAVE}, 8')
        a(f's_lshl_b32 s{S_T1}, s{S_WAVE}, 1')
        a(f's_sub_u32 s{S_T1}, s{S_T1}, 4')
        a(f's_add_u32 s{S_T2}, s{S_T1}, 1')
        a(f's_cmp_lt_u32 s{S_WAVE}, 2')
        a(f's_cselect_b32 s{S_C0}, s{S_T0}, s{S_T1}')
        a(f's_cselect_b32 s{S_C1}, s{S_T0}, s{S_T2}')
        a(f's_cselect_b32 s{S_U2}, 0, 64')
        a(f's_cselect_b32 s{S_U3}, 63, 31')
        a(f's_cmp_eq_u32 s{S_WAVE}, 7')
        a(f's_cselect_b32 s{S_C0}, 0, s{S_C0}')
        a(f's_cselect_b32 s{S_C1}, 0, s{S_C1}')
        a(f's_cselect_b32 s{S_U2}, 0x200, s{S_U2}')
        self.unit_consts(1, S_C0, S_C1, S_U2, S_U3)

    def read_tags(self):
        a = self.a
        a(f'v_mov_b32 v{V_A}, {M_NONCE}')
        a(f'ds_read_b64 v[{V_C}:{V_C+1}], v{V_A}')
        a('s_waitcnt lgkmcnt(0)')
        a(f'v_readfirstlane_b32 s{S_T0}, v{V_C}')
        a(f'v_readfirstlane_b32 s{S_T1}, v{V_C+1}')
        a('s_nop 1')
        a(f's_and_b32 s{S_T}, s{S_T0}, 0xfff')
        a(f's_bfe_u32 s{S_T+1}, s{S_T0}, 0xc000c')
        a(f's_bfe_u32 s{S_T+2}, s{S_T0}, 0x70018')
        a(f's_lshl_b32 s{S_T0}, s{S_T1}, 7')
        a(f's_or_b32 s{S_T+2}, s{S_T+2}, s{S_T0}')
        a(f's_bfe_u32 s{S_T+3}, s{S_T1}, 0xc0005')
        for k, (mul, add) in enumerate(((5, 0x123), (9, 0x456), (13, 0x789))):
            a(f's_mul_i32 s{S_T0}, s{S_T}, {mul}')
            a(f's_add_u32 s{S_T+1+k}, s{S_T+1+k}, s{S_T0}')
            a(f's_add_u32 s{S_T+1+k}, s{S_T+1+k}, {add}')
            a(f's_and_b32 s{S_T+1+k}, s{S_T+1+k}, 0xfff')

    def xrows(self):
        a = self.a
        sk = a.label('nox')
        a(f's_cmp_eq_u32 s{S_WAVE}, 7')
        a(f's_cbranch_scc1 {sk}')
        self.srd(S_X, S_KA+0, 5120000+4096, shift=4096)
        a(f's_mul_i32 s{S_T0}, s2, 40')
        a(f's_and_b32 s{S_T1}, s{S_WAVE}, 3')
        a(f's_lshl_b32 s{S_T1}, s{S_T1}, 4')
        a(f's_add_u32 s{S_T0}, s{S_T0}, s{S_T1}')
        a(f's_lshl_b32 s{S_T0}, s{S_T0}, 9')
        a(f's_add_u32 s{S_T0}, s{S_T0}, 4096')
        a(f'v_and_b32 v{V_A}, 15, v{V_LANE}')
        a(f'v_lshlrev_b32 v{V_A}, 9, v{V_A}')
        a(f'v_lshrrev_b32 v{V_B}, 4, v{V_LANE}')
        a(f'v_lshl_add_u32 v{V_A}, v{V_B}, 4, v{V_A}')
        for t in range(8):
            a(f'buffer_load_dwordx4 v[{40+4*t}:{43+4*t}], v{V_A}, s[{S_X}:{S_X+3}], s{S_T0} offen offset:{64*t}')
        a(f'{sk}:')

    def t1_set0(self):
        a = self.a; o = self.o
        a('s_waitcnt vmcnt(1)')
        sk = a.label('w0only')
        a(f's_cmp_eq_u32 s{S_WAVE}, 0')
        a(f's_cbranch_scc1 {sk}')
        a('s_waitcnt vmcnt(0)')
        a(f'{sk}:')
        self.ts('ld1')
        a(f's_mov_b32 s{S_C0}, -40')
        a(f's_mov_b32 s{S_C1}, {CNT}')
        a(f's_mov_b32 s{S_C2}, {IMG}')
        a(f'v_mov_b32 v{V_G}, 1')
        def rnd(vd, vs, t):
            a(f'v_mul_u32_u24 v{t}, 0xcccd, v{vd}')
            a(f'v_lshrrev_b32 v{t}, 21, v{t}')
            a(f'v_mad_i32_i24 v{t+1}, v{t}, s{S_C0}, v{vd}')
            a(f'v_lshlrev_b32 v{t+2}, 18, v{vs}')
            a(f'v_lshl_or_b32 v{t+1}, v{t+1}, 12, v{t+2}')
            a(f'v_lshl_add_u32 v{t+3}, v{t}, 2, s{S_C1}')
            a(f'v_lshl_add_u32 v{t+2}, v{t}, 6, s{S_C2}')
            a(f'ds_add_rtn_u32 v{t+3}, v{t+3}, v{V_G}')
        def wr(t):
            a(f'v_cmpx_gt_u32 vcc, 16, v{t+3}')
            a(f'v_lshl_add_u32 v{t+2}, v{t+3}, 2, v{t+2}')
            a(f'ds_write_b32 v{t+2}, v{t+1}')
            a('s_mov_b64 exec, -1')
        rnd(32, 34, 40); rnd(33, 35, 44)
        a(f's_cmp_lt_u32 s{S_WAVE}, 2')
        a(f's_cselect_b64 s[{S_EX2}:{S_EX2+1}], -1, 0')
        a(f's_mov_b64 exec, s[{S_EX2}:{S_EX2+1}]')
        rnd(36, 37, 48)
        a('s_mov_b64 exec, -1')
        a('s_waitcnt lgkmcnt(0)')
        wr(40); wr(44)
        a(f's_mov_b64 exec, s[{S_EX2}:{S_EX2+1}]')
        wr(48)
        self.ts('t1done')
        sk = a.label('nop1'); rt = a.label('nretry'); ok = a.label('nok')
        a(f's_cmp_lg_u32 s{S_WAVE}, 0')
        a(f's_cbranch_scc1 {sk}')
        def chk():
            a('s_waitcnt vmcnt(0)')
            a(f'v_readfirstlane_b32 s{S_T0}, v38')
            a(f'v_readfirstlane_b32 s{S_T1}, v39')
            a('s_nop 1')
            a(f's_and_b32 s{S_T0}, s{S_T0}, s{S_T1}')
            a(f's_bitcmp1_b32 s{S_T0}, 31')
        chk()
        a(f's_cbranch_scc0 {rt}')
        a(f'{ok}:')
        def blk():
            a(f'{rt}:')
            a(f's_add_u32 s{S_POLL}, s{S_POLL}, 1')
            a(f's_cmp_gt_u32 s{S_POLL}, {POLL_MAX}')
            a(f's_cbranch_scc1 {ok}')
            a(f'buffer_load_dwordx2 v[38:39], off, s[{S_DBG}:{S_DBG+3}], 0 sc1')
            chk()
            a(f's_cbranch_scc0 {rt}')
            a(f's_branch {ok}')
        self.deferred.append(blk)
        self.ts('nonce')
        if o.get('ts'): a(f'v_writelane_b32 v{V_TSR}, s{S_POLL}, 30')
        a(f'v_mov_b32 v{V_A}, {M_NONCE}')
        a(f'ds_write_b64 v{V_A}, v[38:39]')
        a(f'{sk}:')
        a('s_waitcnt lgkmcnt(0)')
        a('s_barrier')
        self.ts('B1')
        self.read_tags()
        self.unit_setup()
        a('s_barrier')

    def t1_set1(self):
        a = self.a; o = self.o
        sk = a.label('nou2')
        a(f's_cmp_lg_u32 s{S_U0}, 3')
        a(f's_cbranch_scc1 {sk}')
        a('s_cmp_ge_u32 s2, 64')
        a(f's_cbranch_scc1 {sk}')
        a('s_waitcnt vmcnt(0)')
        self.ts('ld1')
        for t in range(8):
            c = '0' if t == 0 else 'v[96:99]'
            a(f'v_mfma_f32_16x16x32_bf16 v[96:99], v[{32+4*t}:{35+4*t}], v[{64+4*t}:{67+4*t}], {c}')
        a('s_nop 7')
        for r in range(96, 100): a(f'v_mul_f32 v{r}, 0x3fb8aa3b, v{r}')
        for r in range(96, 100): a(f'v_add_u32 v{r}, 0x800, v{r}')
        a(f'{sk}:')
        sk = a.label('not3b')
        a(f's_sub_u32 s{S_U1}, s2, 64')
        a(f's_cmp_ge_u32 s{S_U1}, 128')
        a(f's_cbranch_scc1 {sk}')
        a(f's_lshl_b32 s{S_T0}, s{S_U1}, 12')
        a(f's_lshl_b32 s{S_T1}, s{S_U0}, 10')
        a(f's_add_u32 s{S_T0}, s{S_T0}, s{S_T1}')
        a(f's_add_u32 s{S_T0}, s{S_T0}, {WS_WSW}')
        a('s_waitcnt vmcnt(0)')
        for r in range(4): a(f'v_lshl_or_b32 v{96+r}, v{92+r}, 16, v{96+r}')
        a(f'buffer_store_dwordx4 v[96:99], v{V_WE}, s[{S_WS}:{S_WS+3}], s{S_T0} offen sc1')
        a('s_waitcnt vmcnt(0)')
        a(f'{sk}:')
        self.ts('t1done')
        a('s_waitcnt lgkmcnt(0)')
        a('s_barrier')
        self.ts('B1')
        self.read_tags()
        a(f's_mov_b32 s{S_C0}, 0xfffff000')
        sk = a.label('nou3')
        a(f's_cmp_lg_u32 s{S_U0}, 3')
        a(f's_cbranch_scc1 {sk}')
        a('s_cmp_ge_u32 s2, 64')
        a(f's_cbranch_scc1 {sk}')
        for k in range(4): a(f'v_and_b32 v{96+k}, s{S_C0}, v{96+k}')
        for k in range(4): a(f'v_or_b32 v{96+k}, s{S_T+k}, v{96+k}')
        a(f'v_and_b32 v{V_A}, 15, v{V_LANE}')
        a(f'v_lshrrev_b32 v{V_B}, 4, v{V_LANE}')
        a(f'v_lshl_add_u32 v{V_B}, v{V_A}, 2, v{V_B}')
        a(f'v_lshlrev_b32 v{V_B}, 4, v{V_B}')
        a(f's_lshl_b32 s{S_T0}, s2, 7')
        a(f's_add_u32 s{S_T0}, s{S_T0}, {WS_UTAB}')
        a(f'v_cmpx_gt_u32 vcc, 2, v{V_A}')
        a(f'buffer_store_dwordx4 v[96:99], v{V_B}, s[{S_WS}:{S_WS+3}], s{S_T0} offen sc1')
        a('s_mov_b64 exec, -1')
        self.ts('ust')
        a(f'{sk}:')
        a(f'v_subrev_u32 v{V_F}, 256, v{V_TID}')
        a(f'v_lshlrev_b32 v{V_A}, 4, v{V_F}')
        a(f'v_add_u32 v{V_A}, {IMG}, v{V_A}')
        a(f'v_lshrrev_b32 v{V_B}, 2, v{V_F}')
        a(f'v_lshlrev_b32 v{V_C}, 2, v{V_B}')
        a(f'v_add_u32 v{V_C}, {CNT}, v{V_C}')
        for i in range(4):
            a(f'ds_read_b128 v[{76+4*i}:{79+4*i}], v{V_A} offset:{4096*i}')
            a(f'ds_read_b32 v{92+i}, v{V_C} offset:{256*i}')
        a(f'v_mul_u32_u24 v{V_B}, 16000, v{V_B}')
        a(f'v_and_b32 v{V_D}, 3, v{V_F}')
        a(f'v_lshl_add_u32 v{V_B}, v{V_D}, 4, v{V_B}')
        a(f'v_cmp_eq_u32 s[{S_EX2}:{S_EX2+1}], 3, v{V_D}')
        a(f'v_mov_b32 v{V_E}, 0xffffe000')
        a(f's_lshl_b32 s{S_C1}, s2, 6')
        a('s_waitcnt lgkmcnt(0)')
        for i in range(4):
            a(f'v_cmp_lt_u32 vcc, 16, v{92+i}')
            a(f's_and_b64 vcc, vcc, s[{S_EX2}:{S_EX2+1}]')
            for k in range(3): a(f'v_or_b32 v{76+4*i+k}, s{S_T+k}, v{76+4*i+k}')
            a(f'v_cndmask_b32 v{79+4*i}, v{79+4*i}, v{V_E}, vcc')
            a(f'v_or_b32 v{79+4*i}, s{S_T+3}, v{79+4*i}')
            if i == 3: a(f'v_cmpx_gt_u32 vcc, 232, v{V_F}')
            a(f'buffer_store_dwordx4 v[{76+4*i}:{79+4*i}], v{V_B}, s[{S_WS}:{S_WS+3}], s{S_C1} offen sc1')
            if i == 3: a('s_mov_b64 exec, -1')
            else: a(f's_add_u32 s{S_C1}, s{S_C1}, 1024000')
        self.ts('p3')
        self.unit_setup()
        a('s_waitcnt vmcnt(0)')
        self.ts('tack')
        a('s_barrier')

    def middle(self):
        a = self.a; o = self.o
        E = 72
        a(f'v_and_b32 v{V_A}, 255, v{V_TID}')
        a(f'v_lshrrev_b32 v{V_B}, 8, v{V_TID}')
        a(f'v_lshlrev_b32 v{V_E}, 6, v{V_A}')
        a(f'v_lshl_add_u32 v{V_E}, v{V_B}, 4, v{V_E}')
        a(f's_mul_i32 s{S_C2}, s2, 16000')
        a(f'v_cmp_gt_u32 vcc, 250, v{V_A}')
        a(f's_mov_b64 s[{S_EX2}:{S_EX2+1}], vcc')
        for i in range(8): a(f'v_mov_b32 v{E+i}, {EMPTY}')
        a(f'v_lshlrev_b32 v{V_F}, 4, v{V_TID}')
        a(f's_mov_b32 s{S_C0}, {WS_UTAB}')
        for _ in range(o.get('edelay', 0)): a('s_sleep 2')
        self.ts('eld')
        def eload():
            a(f's_mov_b64 exec, s[{S_EX2}:{S_EX2+1}]')
            a(f'buffer_load_dwordx4 v[{E}:{E+3}], v{V_E}, s[{S_WS}:{S_WS+3}], s{S_C2} offen sc1')
            a(f'buffer_load_dwordx4 v[{E+4}:{E+7}], v{V_E}, s[{S_WS}:{S_WS+3}], s{S_C2} offen offset:32 sc1')
        def uload():
            a(f'buffer_load_dwordx4 v[84:87], v{V_F}, s[{S_WS}:{S_WS+3}], s{S_C0} offen sc1')
        eload(); a('s_mov_b64 exec, -1')
        uload()
        a('s_barrier')
        sk = a.label('nox1')
        a(f's_cmp_eq_u32 s{S_SET}, 0')
        a(f's_cbranch_scc1 {sk}')
        self.xrows()
        a(f'{sk}:')
        if o.get('sweep', 1): self.sweep(0, 11)
        else: a(f'buffer_load_dword v255, off, s[{S_WS}:{S_WS+3}], 0 sc1')
        w46 = a.label('w46'); w46e = a.label('w46e')
        a(f's_sub_u32 s{S_U0}, s{S_WAVE}, 4')
        a(f's_cmp_le_u32 s{S_U0}, 2')
        a(f's_cbranch_scc1 {w46}')
        a('s_waitcnt vmcnt(1)')
        a(f'{w46e}:')
        def blk():
            a(f'{w46}:')
            a('s_waitcnt vmcnt(9)')
            a(f's_branch {w46e}')
        self.deferred.append(blk)
        self.tagcheck(84, V_A, True, V_B, V_C)
        def ure():
            uload(); a('s_waitcnt vmcnt(0)'); self.tagcheck(84, V_A, True, V_B, V_C)
        self.poll_check(V_A, ure, 'u')
        self.ts('uval')
        a(f's_mov_b32 s{S_C0}, 0xfffff000')
        for i in range(4): a(f'v_and_b32 v{84+i}, s{S_C0}, v{84+i}')
        a(f'v_bfe_u32 v{V_A}, v{V_TID}, 2, 1')
        a(f'v_lshrrev_b32 v{V_B}, 7, v{V_TID}')
        a('v_cvt_pk_bf16_f32 v84, v84, v85')
        a('v_cvt_pk_bf16_f32 v85, v86, v87')
        a(f'v_lshl_add_u32 v{V_A}, v{V_A}, 2, v{V_B}')
        a(f'v_mul_u32_u24 v{V_A}, 528, v{V_A}')
        a(f'v_bfe_u32 v{V_B}, v{V_TID}, 3, 4')
        a(f'v_lshl_add_u32 v{V_A}, v{V_B}, 5, v{V_A}')
        a(f'v_and_b32 v{V_B}, 3, v{V_TID}')
        a(f'v_lshl_add_u32 v{V_A}, v{V_B}, 3, v{V_A}')
        a(f'v_add_u32 v{V_A}, {UT}, v{V_A}')
        a(f'ds_write_b64 v{V_A}, v[84:85]')
        a('s_waitcnt lgkmcnt(0)')
        a('s_barrier')
        self.ts('B2')
        a(f's_mov_b64 exec, s[{S_EX2}:{S_EX2+1}]')
        def echeck():
            self.tagcheck(E, V_A, True, V_B, V_C); self.tagcheck(E+4, V_A, False, V_B, V_C)
        echeck()
        def ere():
            eload(); a('s_waitcnt vmcnt(0)'); echeck()
        self.poll_check(V_A, ere, 'e')
        self.ts('eval')
        a(f's_mov_b32 s{S_C0}, 0xfffc0000')
        a(f's_mov_b32 s{S_C1}, {GCNT}')
        a(f's_movk_i32 s{S_U1}, 0x1e00')
        a(f'v_mov_b32 v{V_G}, 1')
        def sort4(k0):
            for k in range(k0, k0+4):
                a(f'v_cmpx_gt_u32 vcc, s{S_C0}, v{E+k}')
                a(f'v_lshrrev_b32 v{V_A}, 12, v{E+k}')
                a(f'v_and_or_b32 v{V_A}, v{V_A}, 60, s{S_C1}')
                a(f'ds_add_rtn_u32 v{80+(k&3)}, v{V_A}, v{V_G}')
            a(f's_mov_b64 exec, s[{S_EX2}:{S_EX2+1}]')
            a('s_waitcnt lgkmcnt(0)')
            for k in range(k0, k0+4):
                a(f'v_cmpx_gt_u32 vcc, s{S_C0}, v{E+k}')
                a(f'v_lshrrev_b32 v{V_A}, 5, v{E+k}')
                a(f'v_and_or_b32 v{V_A}, v{V_A}, s{S_U1}, v{V_LB}')
                a(f'v_lshl_add_u32 v{V_A}, v{80+(k&3)}, 2, v{V_A}')
                a(f'v_lshrrev_b32 v{V_B}, 9, v{E+k}')
                a(f'ds_write_b32 v{V_A}, v{V_B}')
            a(f's_mov_b64 exec, s[{S_EX2}:{S_EX2+1}]')
        sort4(0)
        rare = a.label('rare'); back = a.label('rareb')
        a(f'v_cmp_gt_u32 vcc, s{S_C0}, v{E+4}')
        a(f's_cbranch_vccnz {rare}')
        a(f'{back}:')
        def blk():
            a(f'{rare}:')
            sort4(4)
            a(f'v_lshrrev_b32 v{V_A}, 12, v{E+7}')
            a(f'v_cmpx_eq_u32 vcc, 0xffffe, v{V_A}')
            a(f'v_mov_b32 v{V_A}, {M_SLOW}')
            a(f'ds_write_b32 v{V_A}, v{V_G}')
            a(f's_mov_b64 exec, s[{S_EX2}:{S_EX2+1}]')
            a(f's_branch {back}')
        self.deferred.append(blk)
        a('s_mov_b64 exec, -1')
        a('s_waitcnt lgkmcnt(0)')
        a('s_barrier')
        self.ts('B3')
        sk = a.label('nos')
        a(f's_sub_u32 s{S_U0}, s{S_WAVE}, 4')
        a(f's_cmp_gt_u32 s{S_U0}, 2')
        a(f's_cbranch_scc1 {sk}')
        a(f's_mov_b32 s{S_C0}, 0xfffff000')
        a(f'v_and_b32 v{V_A}, 7, v{V_LANE}')
        a(f'v_mul_u32_u24 v{V_A}, 528, v{V_A}')
        a(f'v_lshrrev_b32 v{V_B}, 4, v{V_LANE}')
        a(f'v_lshl_add_u32 v{V_A}, v{V_B}, 4, v{V_A}')
        a(f'v_add_u32 v{V_A}, {UT}, v{V_A}')
        UF = 208
        for t in range(8):
            a(f'ds_read_b128 v[{UF+4*t}:{UF+4*t+3}], v{V_A} offset:{64*t}')
        a(f'v_and_b32 v{V_A}, 15, v{V_LANE}')
        a(f's_lshl_b32 s{S_T0}, s{S_U0}, 4')
        a(f'v_add_u32 v{V_A}, s{S_T0}, v{V_A}')
        a(f'v_cmp_gt_u32 s[{S_EX}:{S_EX+1}], 40, v{V_A}')
        a(f'v_lshlrev_b32 v{V_C}, 4, v{V_A}')
        a(f's_mul_i32 s{S_T1}, s2, 640')
        a(f's_add_u32 s{S_T1}, s{S_T1}, {WS_STAB}')
        a(f'v_add_u32 v{V_D}, {SDST}, v{V_C}')
        a('s_waitcnt vmcnt(1) lgkmcnt(0)')
        self.ts('sfr')
        for t in range(8):
            c = '0' if t == 0 else 'v[88:91]'
            a(f'v_mfma_f32_16x16x32_bf16 v[88:91], v[{UF+4*t}:{UF+4*t+3}], v[{40+4*t}:{43+4*t}], {c}')
        a(f'v_cmp_eq_u32 vcc, 0, v{V_B}')
        a(f's_and_b64 s[{S_T0+1}:{S_T0+2}], vcc, s[{S_EX}:{S_EX+1}]')
        a(f'v_cmp_eq_u32 vcc, 1, v{V_B}')
        a(f's_and_b64 vcc, vcc, s[{S_EX}:{S_EX+1}]')
        a('s_nop 3')
        for k in range(4): a(f'v_add_u32 v{92+k}, 0x800, v{88+k}')
        for k in range(4): a(f'v_and_b32 v{92+k}, s{S_C0}, v{92+k}')
        for k in range(4): a(f'v_or_b32 v{92+k}, s{S_T+k}, v{92+k}')
        a('s_mov_b64 exec, vcc')
        a(f'ds_write_b128 v{V_D}, v[88:91]')
        a(f's_mov_b64 exec, s[{S_T0+1}:{S_T0+2}]')
        a(f's_mul_i32 s{S_T1}, s2, 640')
        a(f's_add_u32 s{S_T1}, s{S_T1}, {WS_STAB}')
        a(f'buffer_store_dwordx4 v[92:95], v{V_C}, s[{S_WS}:{S_WS+3}], s{S_T1} offen sc1')
        a('s_mov_b64 exec, -1')
        self.ts('sst')
        a(f'{sk}:')
        self.steptab_read()
        a('s_waitcnt lgkmcnt(0)')
        self.steptab()
        self.xprologue()
        self.ts('xp')
        a('s_waitcnt lgkmcnt(0)')
        a('s_barrier')
        self.ts('B3u')
        for t in range(NA): self.wload(t)
        for u in range(2):
            U = V_UN + 4*u
            a(f'ds_read_b32 v{34+u}, v{U+1}')
            a(f'ds_read_b32 v{32+u}, v{U+2}')
        a(f's_mov_b32 s{S_C0}, {WS_STAB}')
        a(f's_movk_i32 s{S_U1}, 0x3f0')
        a(f'v_mov_b32 v{V_F}, {SDST}')
        a('s_waitcnt lgkmcnt(0)')
        self.unit_loads(0); self.unit_loads(1)
        self.ts('sld')
        a('s_waitcnt vmcnt(0) lgkmcnt(0)')
        def scheck():
            a(f'v_mov_b32 v{V_F}, 0')
            for u in range(2):
                a(f'v_cmpx_gt_u32 vcc, v{34+u}, v{V_UN+4*u}')
                self.tagcheck(40+4*u, V_F, False, V_B, V_C)
                a('s_mov_b64 exec, -1')
        scheck()
        def sre():
            a(f's_mov_b32 s{S_C0}, {WS_STAB}')
            for u in range(2):
                a(f'v_cmpx_gt_u32 vcc, v{34+u}, v{V_UN+4*u}')
                a(f'buffer_load_dwordx4 v[{40+4*u}:{43+4*u}], v{36+u}, s[{S_WS}:{S_WS+3}], s{S_C0} offen sc1')
                a('s_mov_b64 exec, -1')
            a('s_waitcnt vmcnt(0)')
            scheck()
        self.poll_check(V_F, sre, 's')
        self.ts('sval')
        a(f's_mov_b32 s{S_C0}, 0xfffff000')
        for u in range(2): self.unit_weights(u)
        self.rare_c_units()
        self.tail_consts()
        a('s_waitcnt lgkmcnt(0)')
        a('s_barrier')
        self.ts('B4')

    def unit_loads(self, u):
        a = self.a
        U = V_UN + 4*u
        a(f'v_cmpx_gt_u32 vcc, v{34+u}, v{U}')
        a(f'v_lshrrev_b32 v{V_A}, 5, v{32+u}')
        a(f'v_and_b32 v{36+u}, 0x3fff0, v{V_A}')
        a(f'v_lshlrev_b32 v{V_A}, 1, v{32+u}')
        a(f'v_and_or_b32 v{38+u}, v{V_A}, s{S_U1}, v{V_F}')
        a(f'buffer_load_dwordx4 v[{40+4*u}:{43+4*u}], v{36+u}, s[{S_WS}:{S_WS+3}], s{S_C0} offen sc1')
        a(f'ds_read_b128 v[{48+4*u}:{51+4*u}], v{38+u}')
        a('s_mov_b64 exec, -1')

    def unit_weights(self, u):
        a = self.a
        U = V_UN + 4*u; sv = 40+4*u; dv = 48+4*u; le = 32+u
        a(f'v_cmpx_gt_u32 vcc, v{34+u}, v{U}')
        for h in range(4): a(f'v_and_b32 v{sv+h}, s{S_C0}, v{sv+h}')
        for h in (0, 2): a(f'v_pk_add_f32 v[{sv+h}:{sv+h+1}], v[{sv+h}:{sv+h+1}], v[{dv+h}:{dv+h+1}]')
        for h in range(4): a(f'v_mul_f32 v{dv+h}, 0x3e4ccccd, v{sv+h}')
        for h in range(4): a(f'v_max_f32 v{sv+h}, v{sv+h}, v{dv+h}')
        for h in range(4): a(f'v_exp_f32 v{sv+h}, v{sv+h}')
        a(f'v_bfe_u32 v{V_A}, v{le}, 3, 2')
        a(f'v_lshl_add_u32 v{V_A}, v{V_A}, 6, v{U+3}')
        a(f'v_cvt_pk_bf16_f32 v{dv}, v{sv}, v{sv+1}')
        a(f'v_cvt_pk_bf16_f32 v{dv+1}, v{sv+2}, v{sv+3}')
        a(f'ds_write_b16 v{V_A}, v{dv}')
        a(f'ds_write_b16_d16_hi v{V_A}, v{dv} offset:16')
        a(f'ds_write_b16 v{V_A}, v{dv+1} offset:32')
        a(f'ds_write_b16_d16_hi v{V_A}, v{dv+1} offset:48')
        a('s_mov_b64 exec, -1')

    def rare_c_units(self):
        a = self.a
        rare = a.label('rareC'); back = a.label('rareCb')
        a(f's_cmp_lg_u32 s{S_AOFF}, 0')
        a(f's_cbranch_scc1 {rare}')
        a(f'{back}:')
        def blk():
            a(f'{rare}:')
            a(f's_cmp_gt_u32 s{S_WAVE}, 4')
            a(f's_cbranch_scc1 {back}')
            a(f'v_cmp_gt_u32 vcc, 32, v{V_LANE}')
            a(f's_mov_b64 s[{S_EX2}:{S_EX2+1}], vcc')
            a(f's_lshl_b32 s{S_U0}, s{S_WAVE}, 1')
            a(f's_add_u32 s{S_U1}, s{S_U0}, 1')
            a(f's_mov_b32 s{S_U2}, 96'); a(f's_mov_b32 s{S_U3}, 31')
            self.unit_consts(0, S_U0, S_U1, S_U2, S_U3)
            a(f'ds_read_b32 v34, v{V_UN+1}')
            a(f'ds_read_b32 v32, v{V_UN+2}')
            a(f's_mov_b32 s{S_C0}, {WS_STAB}')
            a(f's_movk_i32 s{S_U1}, 0x3f0')
            a(f'v_mov_b32 v{V_F}, {SDST}')
            a('s_waitcnt lgkmcnt(0)')
            self.unit_loads(0)
            a('s_waitcnt vmcnt(0) lgkmcnt(0)')
            def chk():
                a(f'v_mov_b32 v{V_F}, 0')
                a(f'v_cmpx_gt_u32 vcc, v34, v{V_UN}')
                self.tagcheck(40, V_F, False, V_B, V_C)
                a('s_mov_b64 exec, -1')
                a(f'v_and_b32 v{V_F}, 0xfff, v{V_F}')
                a(f'v_cmp_ne_u32 vcc, 0, v{V_F}')
            lp = a.label('cpoll'); dn = a.label('cdone')
            a(f'{lp}:')
            chk()
            a(f's_cbranch_vccz {dn}')
            a(f's_add_u32 s{S_POLL}, s{S_POLL}, 1')
            a(f's_cmp_gt_u32 s{S_POLL}, {POLL_MAX}')
            a(f's_cbranch_scc1 {dn}')
            a(f'v_cmpx_gt_u32 vcc, v34, v{V_UN}')
            a(f'buffer_load_dwordx4 v[40:43], v36, s[{S_WS}:{S_WS+3}], s{S_C0} offen sc1')
            a('s_mov_b64 exec, -1')
            a('s_waitcnt vmcnt(0)')
            a(f's_branch {lp}')
            a(f'{dn}:')
            a(f's_mov_b32 s{S_C0}, 0xfffff000')
            self.unit_weights(0)
            a(f's_branch {back}')
        self.deferred.append(blk)

    def steptab_read(self):
        a = self.a
        a(f'v_lshlrev_b32 v{V_A}, 2, v{V_LANE}')
        a(f'v_add_u32 v{V_A}, {GCNT}, v{V_A}')
        a(f'v_mov_b32 v{V_B}, {M_SLOW}')
        a(f'ds_read_b32 v84, v{V_A}')
        a(f'ds_read_b32 v85, v{V_B}')

    def steptab(self):
        a = self.a
        a('v_cmp_lt_u32 vcc, 0x80, v84')
        a(f's_and_b32 s{S_T0}, vcc_lo, 0x3ff')
        a(f'v_readfirstlane_b32 s{S_T1}, v85')
        a('v_cmp_lt_u32 vcc, 0x60, v84')
        a(f's_and_b32 s{S_AOFF}, vcc_lo, 0x3ff')
        a(f's_or_b32 s{S_T0}, s{S_T0}, s{S_T1}')
        a(f's_cmp_lg_u32 s{S_T0}, 0')
        a('s_cbranch_scc1 L_slow')
        a(f'v_add_u32 v84, 31, v84')
        a(f'v_lshrrev_b32 v84, 5, v84')
        a(f's_mul_i32 s{S_T2}, s{S_HF}, 5')
        a(f's_mov_b32 s{S_T1}, s{S_T2}')
        N = (S_U0, S_U1, S_U2, S_U3, S_C0)
        for g in range(5):
            a(f'v_readlane_b32 s{N[g]}, v84, s{S_T1}')
            if g < 4: a(f's_add_u32 s{S_T1}, s{S_T1}, 1')
        a(f's_lshl_b32 s{S_T2}, s{S_T2}, 9')
        a(f'v_mov_b32 v{V_TAB}, 5120')
        a(f's_mov_b32 s{S_T0}, 0')
        for g in range(5):
            a(f'v_subrev_u32 v{V_A}, s{S_T0}, v{V_LANE}')
            a(f'v_lshlrev_b32 v{V_A}, 7, v{V_A}')
            a(f'v_cmp_le_u32 vcc, s{S_T0}, v{V_LANE}')
            a(f'v_add_u32 v{V_A}, s{S_T2}, v{V_A}')
            a(f's_add_u32 s{S_T0}, s{S_T0}, s{N[g]}')
            a(f's_add_u32 s{S_T2}, s{S_T2}, 512')
            a(f'v_cndmask_b32 v{V_TAB}, v{V_TAB}, v{V_A}, vcc')
        a(f'v_mov_b32 v{V_A}, 5120')
        a(f'v_cmp_le_u32 vcc, s{S_T0}, v{V_LANE}')
        a(f's_mov_b32 s{S_TOT}, s{S_T0}')
        a(f's_lshl_b32 s{S_NPK}, s{N[4]}, 4')
        for g in (3, 2, 1, 0):
            a(f's_or_b32 s{S_NPK}, s{S_NPK}, s{N[g]}')
            if g: a(f's_lshl_b32 s{S_NPK}, s{S_NPK}, 4')
        a(f'v_cndmask_b32 v{V_TAB}, v{V_TAB}, v{V_A}, vcc')

    def idx_read(self):
        a = self.a
        a(f'v_readlane_b32 s{S_T0}, v{V_TAB}, s{S_J}')
        a(f's_add_u32 s{S_J}, s{S_J}, 1')
        a('s_nop 0')
        a(f'v_add_u32 v{V_G}, s{S_T0}, v{V_LST}')
        a(f'ds_read_b128 v[{V_IDX}:{V_IDX+3}], v{V_G}')

    def xprologue(self):
        a = self.a
        T = 92
        a('s_nop 0')
        for j in range(R):
            a(f'v_readlane_b32 s{S_T0}, v{V_TAB}, {j}')
            a('s_nop 1')
            a(f'v_add_u32 v{V_G}, s{S_T0}, v{V_LST}')
            a(f'ds_read_b128 v[{T+4*j}:{T+4*j+3}], v{V_G}')
        a(f's_mov_b32 s{S_J}, {R}')
        a(f's_mov_b32 s{S_SLOT}, 0')
        a('s_waitcnt lgkmcnt(0)')
        for j in range(R):
            a(f's_add_u32 m0, s{S_RING}, {j*4096}')
            for c in range(4):
                sw = V_SWE if c % 2 == 0 else V_SWO
                a(f'v_and_or_b32 v{T+4*j+c}, v{T+4*j+c}, s{S_M}, v{sw}')
            for c in range(4):
                a(f'buffer_load_dwordx4 v{T+4*j+c}, s[{S_X}:{S_X+3}], s{S_XSO+c} offen offset:{c*1024} lds')
        self.idx_read()

    def sweep(self, base, shift, dst=255, tmp=254):
        a = self.a
        a(f's_lshr_b32 s{S_T0}, s2, 3')
        a(f's_lshl_b32 s{S_T0}, s{S_T0}, 3')
        a(f's_add_u32 s{S_T0}, s{S_T0}, s{S_WAVE}')
        a(f's_lshl_b32 s{S_T0}, s{S_T0}, {shift}')
        a(f's_add_u32 s{S_T0}, s{S_T0}, {WS_WSW + base}')
        a(f'v_lshlrev_b32 v{tmp}, 7, v{V_LANE}')
        a(f'v_cmpx_gt_u32 vcc, {(1 << shift) >> 7}, v{V_LANE}')
        a(f'buffer_load_dword v{dst}, v{tmp}, s[{S_WS}:{S_WS+3}], s{S_T0} offen sc1')
        a('s_mov_b64 exec, -1')

    def wflag_load(self, dst):
        a = self.a
        a(f's_lshl_b32 s{S_T1}, s{S_WAVE}, 10')
        a(f's_add_u32 s{S_T1}, s{S_T1}, {WS_WFLG}')
        a(f'buffer_load_dwordx4 v[{dst}:{dst+3}], v{V_WE}, s[{S_WS}:{S_WS+3}], s{S_T1} offen sc1')

    def wload(self, t):
        a = self.a
        dst = V_W + 16*(t % NPRE)
        a(f's_add_u32 s{S_T1}, s{S_WB}, {t*4096}')
        for j in range(4):
            a(f'buffer_load_dwordx4 v[{dst+4*j}:{dst+4*j+3}], v{V_WE}, s[{S_WS}:{S_WS+3}], s{S_T1} offen offset:{j*1024} {self.o.get("wfl", "sc1")}')

    def group_end_math(self):
        a = self.a
        for h in range(4): a(f'v_fmaak_f32 v{V_DEN+h}, 4.0, v{V_DEN+h}, 0x3189705f')
        for h in range(4): a(f'v_rcp_f32 v{V_DEN+h}, v{V_DEN+h}')
        a('s_nop 0')
        for j in range(4):
            for h in (0, 2):
                r = V_ACC + 4*j + h
                a(f'v_pk_mul_f32 v[{r}:{r+1}], v[{r}:{r+1}], v[{V_DEN+h}:{V_DEN+h+1}]')
        if self.o.get('cvtidx', 1):
            a(f's_set_gpr_idx_on s{S_T0}, gpr_idx(DST)')
            a('s_nop 0')
            for j in range(4):
                for h in (0, 2):
                    r = V_ACC + 4*j + h
                    a(f'v_cvt_pk_bf16_f32 v{V_PK + 2*j + h//2}, v{r}, v{r+1}')
            a('s_set_gpr_idx_off')
        else:
            for j in range(4):
                for h in (0, 2):
                    r = V_ACC + 4*j + h
                    a(f'v_cvt_pk_bf16_f32 v{92 + 2*j + h//2}, v{r}, v{r+1}')
            a(f's_set_gpr_idx_on s{S_T0}, gpr_idx(DST)')
            a('s_nop 0')
            for k in range(8): a(f'v_mov_b32 v{V_PK+k}, v{92+k}')
            a('s_set_gpr_idx_off')
        for i in range(0, 20, 2): a(f'v_mov_b64 v[{V_ACC+i}:{V_ACC+i+1}], 0')

    def aggregate(self):
        a = self.a; o = self.o
        for i in range(0, 20, 2): a(f'v_mov_b64 v[{V_ACC+i}:{V_ACC+i+1}], 0')
        for i in range(4): a(f'v_mov_b32 v{V_ONE+i}, 0x3f803f80')
        if o.get('aprio'):
            sk = a.label('aprio')
            a(f's_cmp_eq_u32 s{S_SET}, 0')
            a(f's_cbranch_scc1 {sk}')
            a(f's_setprio {o["aprio"]}')
            a(f'{sk}:')
            if o.get('lprio'):
                sk = a.label('lprio')
                a(f's_cmp_eq_u32 s{S_SET}, 1')
                a(f's_cbranch_scc1 {sk}')
                a(f's_setprio {o["lprio"]}')
                a(f'{sk}:')
        a(f's_movk_i32 s{S_C2}, 0x1000')
        a(f's_mov_b32 s{S_G}, 0')
        a(f's_mov_b32 s{S_JC}, 0')
        def addr():
            a(f'v_readlane_b32 s{S_T1}, v{V_TAB}, s{S_JC}')
            a(f's_add_u32 s{S_JC}, s{S_JC}, 1')
            a(f's_lshl_b32 s{S_T1}, s{S_T1}, 3')
            a(f'v_add_u32 v{V_TW}, s{S_T1}, v{V_AW}')
        def reads():
            a(f'ds_read_b128 v[{V_AF}:{V_AF+3}], v{V_TW}')
            for j in range(4):
                a(f'ds_read_b64_tr_b16 v[{V_BF+4*j}:{V_BF+4*j+1}], v{V_TR+j}')
                a(f'ds_read_b64_tr_b16 v[{V_BF+4*j+2}:{V_BF+4*j+3}], v{V_TR+j} offset:512')
        def rowwait():
            a(f's_waitcnt vmcnt({4*(R-1)})')
        a(f's_and_b32 s{S_LEFT}, s{S_NPK}, 15')
        a(f's_lshr_b32 s{S_NPK}, s{S_NPK}, 4')
        addr()
        rowwait()
        reads()
        Lt = a.label('agg_top'); Le = a.label('agg_ge'); Ld = a.label('agg_done'); Ltail = a.label('agg_tail'); Lc = a.label('agg_ctl')
        a(f's_cmp_eq_u32 s{S_LEFT}, 0')
        a(f's_cbranch_scc1 {Le}')
        sw = lambda c: V_SWE if c % 2 == 0 else V_SWO
        mf = lambda d, b: a(f'v_mfma_f32_16x16x32_bf16 v[{d}:{d+3}], v[{V_AF}:{V_AF+3}], v[{b}:{b+3}], v[{d}:{d+3}]')
        dma = lambda c: a(f'buffer_load_dwordx4 v{V_IDX+c}, s[{S_X}:{S_X+3}], s{S_XSO+c} offen offset:{c*1024} lds')
        def advance():
            a(f's_add_u32 s{S_SLOT}, s{S_SLOT}, 4096')
            a(f's_cmp_eq_u32 s{S_SLOT}, {R*4096}')
            a(f's_cselect_b32 s{S_SLOT}, 0, s{S_SLOT}')
            a(f's_cselect_b32 s{S_DELTA}, s{S_C3}, s{S_C2}')
            addr()
            for j in range(4): a(f'v_add_u32 v{V_TR+j}, s{S_DELTA}, v{V_TR+j}')
        a(f'{Lt}:')
        a(f's_cmp_gt_u32 s{S_J}, s{S_TOT}')
        a(f's_cbranch_scc1 {Ltail}')
        a('s_waitcnt lgkmcnt(0)')
        mf(V_DEN, V_ONE)
        for c in range(4): a(f'v_and_or_b32 v{V_IDX+c}, v{V_IDX+c}, s{S_M}, v{sw(c)}')
        a(f's_add_u32 m0, s{S_RING}, s{S_SLOT}')
        mf(V_ACC, V_BF)
        dma(0)
        mf(V_ACC+4, V_BF+4)
        dma(1)
        mf(V_ACC+8, V_BF+8)
        dma(2)
        mf(V_ACC+12, V_BF+12)
        dma(3)
        a(f'v_readlane_b32 s{S_T0}, v{V_TAB}, s{S_J}')
        advance()
        a(f's_add_u32 s{S_J}, s{S_J}, 1')
        a(f'v_add_u32 v{V_G}, s{S_T0}, v{V_LST}')
        rowwait()
        reads()
        a(f'ds_read_b128 v[{V_IDX}:{V_IDX+3}], v{V_G}')
        a(f'{Lc}:')
        a(f's_sub_u32 s{S_LEFT}, s{S_LEFT}, 1')
        a(f's_cmp_lg_u32 s{S_LEFT}, 0')
        a(f's_cbranch_scc1 {Lt}')
        a(f'{Le}:')
        a(f's_lshl_b32 s{S_T0}, s{S_G}, 3')
        a(f's_add_u32 s{S_G}, s{S_G}, 1')
        self.group_end_math()
        a(f's_cmp_eq_u32 s{S_G}, 5')
        a(f's_cbranch_scc1 {Ld}')
        a(f's_and_b32 s{S_LEFT}, s{S_NPK}, 15')
        a(f's_lshr_b32 s{S_NPK}, s{S_NPK}, 4')
        a(f's_cmp_lg_u32 s{S_LEFT}, 0')
        a(f's_cbranch_scc1 {Lt}')
        a(f's_branch {Le}')
        a(f'{Ltail}:')
        a('s_waitcnt lgkmcnt(0)')
        mf(V_DEN, V_ONE)
        for j in range(4): mf(V_ACC+4*j, V_BF+4*j)
        advance()
        a('s_waitcnt vmcnt(0)')
        reads()
        a(f's_branch {Lc}')
        a(f'{Ld}:')

    def tail_consts(self):
        a = self.a
        a(f'v_and_b32 v{V_C}, 15, v{V_LANE}')
        a(f'v_lshrrev_b32 v92, 4, v{V_LANE}')
        a(f'v_bfe_u32 v{V_D}, v{V_C}, 1, 2')
        a(f'v_lshrrev_b32 v{V_E}, 3, v{V_C}')
        a(f'v_lshl_add_u32 v93, v{V_E}, 2, v{V_D}')
        a(f'v_and_b32 v{V_G}, 1, v{V_C}')
        a(f'v_lshlrev_b32 v{V_G}, 3, v{V_G}')
        a(f's_mul_i32 s{S_T0}, s{S_SET}, {4*RINGW}')
        a(f's_and_b32 s{S_T1}, s{S_SLICE}, 1')
        a(f's_lshl_b32 s{S_T2}, s{S_T1}, 13')
        a(f's_add_u32 s{S_T2}, s{S_T2}, s{S_T0}')
        a(f's_lshl_b32 s{S_T1}, s{S_T1}, 12')
        a(f's_add_u32 s{S_T1}, s{S_T1}, s{S_T0}')
        a(f'v_lshl_add_u32 v94, v{V_D}, 8, v{V_G}')
        a(f'v_lshl_add_u32 v94, v{V_E}, 10, v94')
        a(f'v_add_u32 v94, s{S_T2}, v94')
        a(f'v_lshl_add_u32 v95, v{V_D}, 7, v{V_G}')
        a(f'v_lshl_add_u32 v95, v{V_E}, 9, v95')
        a(f'v_add_u32 v95, s{S_T1}, v95')
        a(f'v_lshrrev_b32 v{V_B}, 4, v{V_LANE}')
        for par in range(2):
            a(f'v_add_u32 v{V_TW}, {4*par}, v{V_B}')
            a(f'v_xor_b32 v{V_D}, v{V_C}, v{V_TW}')
            a(f'v_lshlrev_b32 v{V_D}, 4, v{V_D}')
            a(f'v_lshl_add_u32 v{V_D}, v{V_B}, 8, v{V_D}')
            a(f'v_add_u32 v{104+par}, s{S_T0}, v{V_D}')
            a(f'v_and_b32 v{V_D}, 7, v{V_C}')
            a(f'v_xor_b32 v{V_D}, v{V_D}, v{V_TW}')
            a(f'v_lshlrev_b32 v{V_D}, 4, v{V_D}')
            a(f'v_lshl_add_u32 v{V_D}, v{V_B}, 7, v{V_D}')
            a(f'v_add_u32 v{106+par}, s{S_T0}, v{V_D}')

    def agg_write(self):
        a = self.a
        a('L_aggw:')
        if self.o.get('lprio') and self.o.get('gp1', -1) < 0:
            sk = a.label('gp0')
            a(f's_cmp_eq_u32 s{S_SET}, 0')
            a(f's_cbranch_scc1 {sk}')
            a('s_setprio 0')
            a(f'{sk}:')
        a('s_waitcnt vmcnt(0) lgkmcnt(0)')
        self.ts('aggdone')
        self.signal(1)
        self.wload(NA); self.wload(NA+1)
        self.waitfor(1, have=True)
        self.ts('B5')
        end = a.label('aggw_end'); h1 = a.label('aggw_h1')
        a(f's_cmp_eq_u32 s{S_HF}, 1')
        a(f's_cbranch_scc1 {h1}')
        for hf in range(2):
            if hf == 1: a(f'{h1}:')
            for gg in range(5):
                node0 = 20*hf + 4*gg
                mt, mb = node0 >> 4, node0 & 15
                TS = 1024 if mt < 2 else 512
                ad = V_AF + (gg & 1)
                a(f'v_add_u32 v{ad}, {mb}, v92')
                a(f'v_xor_b32 v{ad}, v{ad}, v93')
                a(f'v_lshl_add_u32 v{ad}, v{ad}, 4, v{94 if mt < 2 else 95}')
                for j in range(4):
                    pk = V_PK + 8*gg + 2*j
                    a(f'ds_write_b64 v{ad}, v[{pk}:{pk+1}] offset:{mt*16384 + 2*j*TS}')
            if hf == 0: a(f's_branch {end}')
        a(f'{end}:')
        self.wload(NA+2)
        self.setsync(2)
        self.ts('B6')

    def gemm(self):
        a = self.a
        n = NPRE
        AB = [80, 92]
        def aggread(t):
            buf = AB[t & 1]; par = t & 1
            for mt in range(2):
                a(f'ds_read_b128 v[{buf+4*mt}:{buf+4*mt+3}], v{104+par} offset:{mt*16384 + t*1024}')
            a(f'ds_read_b128 v[{buf+8}:{buf+11}], v{106+par} offset:{32768 + t*512}')
        if self.o.get('gp1', -1) >= 0:
            sk = a.label('gpa'); sk2 = a.label('gpb')
            a(f's_cmp_eq_u32 s{S_SET}, 0')
            a(f's_cbranch_scc1 {sk}')
            a(f's_setprio {self.o["gp1"]}')
            a(f's_branch {sk2}')
            a(f'{sk}:')
            a(f's_setprio {self.o["gp0"]}')
            a(f'{sk2}:')
        if self.o.get('gprio'):
            sk = a.label('gprio')
            a(f's_cmp_eq_u32 s{S_SET}, 0')
            a(f's_cbranch_scc1 {sk}')
            a(f's_setprio {self.o["gprio"]}')
            a(f'{sk}:')
        def aggread_list(t):
            buf = AB[t & 1]; par = t & 1
            return [f'ds_read_b128 v[{buf+4*mt}:{buf+4*mt+3}], v{104+par} offset:{mt*16384 + t*1024}' for mt in range(2)] + \
                   [f'ds_read_b128 v[{buf+8}:{buf+11}], v{106+par} offset:{32768 + t*512}']
        def wload_list(t):
            dst = V_W + 16*(t % n)
            return [f's_add_u32 s{S_T1}, s{S_WB}, {t*4096}'] + \
                   [f'buffer_load_dwordx4 v[{dst+4*j}:{dst+4*j+3}], v{V_WE}, s[{S_WS}:{S_WS+3}], s{S_T1} offen offset:{j*1024} {self.o.get("wfl", "sc1")}' for j in range(4)]
        zc = self.o.get('zcol', 0)
        if zc:
            for r in (AB[0]+8, AB[1]+8):
                for k in range(4): a(f'v_mov_b32 v{r+k}, 0')
            a(f's_mov_b32 s{S_EX2}, 0x00ff00ff')
            a(f's_mov_b32 s{S_EX2+1}, 0x00ff00ff')
        def masked(lst):
            if not zc: return lst
            return lst[:2] + [f's_mov_b64 exec, s[{S_EX2}:{S_EX2+1}]\n' + lst[2] + '\ns_mov_b64 exec, -1']
        for x in masked(aggread_list(0)): a(x)
        for t in range(16):
            waits = []
            if t >= NA and not self.o.get('nowb'): waits.append(f'vmcnt({4*(min(15, NA+2+t) - t)})')
            waits.append('lgkmcnt(0)')
            a('s_waitcnt ' + ' '.join(waits))
            fill = []
            if t + 1 < 16: fill += masked(aggread_list(t+1))
            if NA + 3 + t < 16 and not self.o.get('nowb'): fill += wload_list(NA + 3 + t)
            w = V_W + 16*(t % n); b = AB[t & 1]
            k = 0
            for mt in range(3):
                for j in range(4):
                    acc = V_ACC + 16*mt + 4*j
                    c = '0' if t == 0 else f'v[{acc}:{acc+3}]'
                    a(f'v_mfma_f32_16x16x32_bf16 v[{acc}:{acc+3}], v[{w+4*j}:{w+4*j+3}], v[{b+4*mt}:{b+4*mt+3}], {c}')
                    if k < len(fill): a(fill[k]); k += 1
            if t in (3, 7, 11): self.ts(f'g{t}')
        self.ts('gemm1')

    def finish(self):
        a = self.a
        P = V_W
        a(f's_mul_i32 s{S_T0}, s{S_W3}, {RINGW}')
        a(f's_add_u32 s{S_T0}, s{S_T0}, {4*RINGW}')
        a(f'v_add_u32 v{V_D}, s{S_T0}, v{V_WE}')
        s0 = a.label('fin0')
        a(f's_cmp_eq_u32 s{S_SET}, 0')
        a(f's_cbranch_scc1 {s0}')
        a('s_setprio 0')
        self.setsync(3)
        for i in range(12):
            a(f'ds_write_b128 v{V_D}, v[{V_ACC+4*i}:{V_ACC+4*i+3}] offset:{1024*i}')
        self.signal(4)
        a('s_branch L_fin')
        a(f'{s0}:')
        a(f'v_and_b32 v{V_A}, 15, v{V_LANE}')
        a(f'v_lshrrev_b32 v{V_B}, 4, v{V_LANE}')
        a(f'v_and_b32 v{V_C}, 1, v{V_B}')
        a(f'v_lshrrev_b32 v{V_G}, 1, v{V_B}')
        a(f'v_lshlrev_b32 v{V_C}, 5, v{V_C}')
        a(f'v_lshl_add_u32 v{V_C}, v{V_G}, 4, v{V_C}')
        a(f'v_lshl_add_u32 v{V_C}, v{V_A}, 9, v{V_C}')
        a(f's_mul_i32 s{S_T0}, s2, {40*512}')
        a(f's_lshl_b32 s{S_T1}, s{S_W3}, 7')
        a(f's_add_u32 s{S_T0}, s{S_T0}, s{S_T1}')
        a(f'v_cmp_gt_u32 s[{S_EX2}:{S_EX2+1}], 8, v{V_A}')
        self.waitfor(4, own=False)
        for i in range(12):
            a(f'ds_read_b128 v[{P+4*i}:{P+4*i+3}], v{V_D} offset:{1024*i}')
        for mt in range(3):
            a(f's_waitcnt lgkmcnt({8-4*mt})')
            for j in range(4):
                acc = V_ACC + 16*mt + 4*j; p = P + 16*mt + 4*j
                for h in (0, 2):
                    a(f'v_pk_add_f32 v[{acc+h}:{acc+h+1}], v[{acc+h}:{acc+h+1}], v[{p+h}:{p+h+1}]')
            for jp in range(2):
                R0 = P + 16*mt + 4*jp
                for jj in range(2):
                    acc = V_ACC + 16*mt + 4*(2*jp+jj)
                    a(f'v_cvt_pk_bf16_f32 v{R0+2*jj}, v{acc}, v{acc+1}')
                    a(f'v_cvt_pk_bf16_f32 v{R0+2*jj+1}, v{acc+2}, v{acc+3}')
            a(f's_add_u32 s{S_T1}, s{S_T0}, {mt*16*512}')
            a('s_nop 0')
            for jp in range(2):
                R0 = P + 16*mt + 4*jp
                a(f'v_permlane16_swap_b32 v{R0}, v{R0+2}')
                a(f'v_permlane16_swap_b32 v{R0+1}, v{R0+3}')
            if mt == 2: a(f's_mov_b64 exec, s[{S_EX2}:{S_EX2+1}]')
            for jp in range(2):
                R0 = P + 16*mt + 4*jp
                a(f'buffer_store_dwordx4 v[{R0}:{R0+3}], v{V_C}, s[{S_OUT}:{S_OUT+3}], s{S_T1} offen offset:{64*jp} {self.o.get("ofl", "")}')
        a('L_fin:')
        a('s_mov_b64 exec, -1')
        self.ts('end')
        if self.o.get('ts') == 1:
            a(f's_lshl_b32 s{S_T0}, s2, 3')
            a(f's_add_u32 s{S_T0}, s{S_T0}, s{S_WAVE}')
            a(f's_lshl_b32 s{S_T0}, s{S_T0}, 7')
            a(f's_add_u32 s{S_T0}, s{S_T0}, {WS_TS}')
            a(f'v_writelane_b32 v{V_TSR}, s{S_POLL}, 31')
            a(f'v_lshlrev_b32 v{V_A}, 2, v{V_LANE}')
            a(f'v_cmpx_gt_u32 vcc, 32, v{V_LANE}')
            a(f'buffer_store_dword v{V_TSR}, v{V_A}, s[{S_WS}:{S_WS+3}], s{S_T0} offen')
            a('s_mov_b64 exec, -1')

    def slow_path(self):
        from slowpath import emit_slow
        emit_slow(self)

    def build(self):
        a = self.a; o = self.o
        a(f'; @launch grid=({NB},1,1) block=(512,1,1) lds={LDS_SIZE}')
        a('.amdgcn_target "amdgcn-amd-amdhsa--gfx950"')
        a('.text')
        a(f'.globl {KNAME}')
        a('.p2align 8')
        a(f'.type {KNAME},@function')
        a(f'{KNAME}:')
        self.prologue()
        self.issue_loads()
        self.ts('issue')
        self.srd(S_DBG, S_KA+14, 256)
        a('s_barrier')
        self.ts('B0')
        self.late_consts()
        sk = a.label('nop0')
        a(f's_cmp_lg_u32 s{S_WAVE}, 0')
        a(f's_cbranch_scc1 {sk}')
        a(f'buffer_load_dwordx2 v[38:39], off, s[{S_DBG}:{S_DBG+3}], 0 sc1')
        a(f'{sk}:')
        a(f's_cmp_eq_u32 s{S_SET}, 1')
        a('s_cbranch_scc1 L_set1')
        self.t1_set0()
        a('s_branch L_mid')
        a('L_set1:')
        self.t1_set1()
        a('L_mid:')
        self.middle()
        self.aggregate()
        self.agg_write()
        self.gemm()
        self.finish()
        a('s_branch L_end')
        for fn in list(self.deferred): fn()
        a('L_hot_end:')
        n0 = len(self.deferred)
        self.slow_path()
        for fn in self.deferred[n0:]: fn()
        a('L_end:')
        if not o.get('noendwait'): a('s_waitcnt vmcnt(0)')
        a('s_endpgm')
        a('.section .rodata,"a"')
        a('.p2align 6')
        a(f'.amdhsa_kernel {KNAME}')
        a('  .amdhsa_next_free_vgpr 256')
        a('  .amdhsa_next_free_sgpr 102')
        a('  .amdhsa_accum_offset 256')
        a('  .amdhsa_group_segment_fixed_size 0')
        a('  .amdhsa_kernarg_size 72')
        a('  .amdhsa_user_sgpr_count 2')
        a('  .amdhsa_user_sgpr_kernarg_segment_ptr 1')
        a('  .amdhsa_system_sgpr_workgroup_id_x 1')
        a('  .amdhsa_float_denorm_mode_32 3')
        a('  .amdhsa_float_denorm_mode_16_64 3')
        a('.end_amdhsa_kernel')
        return a


def generate(path, **opt):
    global NA
    NA = opt.get('na', 2)
    g = Gen(opt)
    a = g.build()
    probs = check(a.lines)
    open(path, 'w').write(a.text())
    json.dump(g.tsn, open(path + '.ts.json', 'w'))
    return probs

if __name__ == '__main__':
    ap = argparse.ArgumentParser()
    ap.add_argument('out')
    for name, dflt in (('ts', 0), ('cpf', 1), ('sweep', 1), ('edelay', 0), ('prio', 0), ('cvtidx', 1), ('sweep2', 1), ('gprio', 0), ('na', 2), ('nowb', 0), ('aprio', 0), ('touch', 0), ('tw', 7), ('lprio', 0), ('gp1', -1), ('gp0', 0), ('cpfw', 0), ('slowdbg', 0), ('zcol', 0), ('noendwait', 0)):
        ap.add_argument('--' + name, type=int, default=dflt)
    ap.add_argument('--tsf', default='')
    ap.add_argument('--wfl', default='sc1')
    ap.add_argument('--ofl', default='')
    args = ap.parse_args()
    o = vars(args); out = o.pop('out')
    if o['wfl'] == 'plain': o['wfl'] = ''
    o['ofl'] = o['ofl'].replace('_', ' ')
    p = generate(out, **o)
    print('hazards:', len(p))
```

```python
import sys, argparse, json
from asmcore import Asm, check

KNAME = 'gather_scatter__graph_attention_gat__graph_kernel'
NB = 250
WS_TABLE = 0
WS_UTAB = 0x400000
WS_STAB = 0x410000
WS_WFLG = 0x440000
WS_WSW = 0x480000
WS_TS = 0x500000
WS_SIZE = 0x600000
RINGW = 12288
R = 3
NPRE = 8
NA = 2
IMG = 4*RINGW
CNT = IMG + 16384
AP = 8*RINGW
XCH = AP
SDST = AP + 40960
GCNT = SDST + 1024
UT = SDST + 2048
MISC = GCNT + 64
LIST = AP + 49152
LDS_SIZE = LIST + 5248
assert LIST % 8192 == 0 and SDST % 1024 == 0 and GCNT % 64 == 0 and LDS_SIZE <= 163840
M_NONCE = MISC
M_SLOW = MISC + 8
M_SCNT = MISC + 12
M_SYNC = MISC + 16
S_X, S_W, S_WS, S_SRC, S_DST, S_DBG, S_OUT = 4, 8, 12, 16, 20, 32, 36
S_WB = 3
S_TOT = 24
S_FIRST = 24
S_RET = 26
S_SYO, S_SYX = 28, 29
S_WAVE, S_SET, S_W3, S_HF = 40, 41, 42, 43
S_T = 44
S_SLICE, S_NPK = 48, 49
S_XSO = 52
S_RING, S_SLOT, S_J, S_DELTA = 56, 57, 58, 59
S_N = 60
S_G, S_LEFT, S_JC, S_AOFF = 60, 61, 62, 63
S_T0, S_T1, S_T2 = 65, 66, 67
S_EX, S_EX2 = 68, 70
S_KA = 72
S_TS = 90
S_C0, S_C1, S_C2, S_C3 = 92, 93, 94, 95
S_POLL, S_M = 96, 97
S_U0, S_U1, S_U2, S_U3 = 98, 99, 100, 101
V_TID, V_LANE = 0, 1
V_TR = 2
V_AW, V_LB, V_LST = 6, 7, 8
V_SWE, V_SWO = 9, 10
V_TAB = 11
V_IDX = 12
V_AF = 16
V_MF = 20
V_A, V_B, V_C, V_D, V_E, V_F, V_G = 24, 25, 26, 27, 28, 29, 30
V_ONE = 24
V_TSR = 31
V_ACC = 32
V_DEN = 48
V_PK = 52
V_TW, V_WE = 100, 23
V_UN = 104
V_W = 112
V_BF = 240

POLL_MAX = 200000
EMPTY = 0xfffff000


class Gen:
    def __init__(self, opt):
        self.o = opt
        self.a = Asm()
        self.tsn = {}
        self.deferred = []

    def ts(self, name):
        if not self.o.get('ts'): return
        tsf = self.o.get('tsf')
        if tsf and name != 'start' and name not in tsf.split(','): return
        a = self.a
        if name not in self.tsn: self.tsn[name] = len(self.tsn)
        idx = self.tsn[name]
        assert idx < 28
        a(f's_memrealtime s[{S_TS}:{S_TS+1}]')
        a('s_waitcnt lgkmcnt(0)')
        a(f'v_writelane_b32 v{V_TSR}, s{S_TS}, {idx}')

    def srd(self, r, base, size, shift=0):
        a = self.a
        if shift:
            a(f's_sub_u32 s{r}, s{base}, {shift}')
            a(f's_subb_u32 s{r+1}, s{base+1}, 0')
            a(f's_and_b32 s{r+1}, s{r+1}, 0xffff')
        else:
            a(f's_mov_b32 s{r}, s{base}')
            a(f's_and_b32 s{r+1}, s{base+1}, 0xffff')
        a(f's_mov_b32 s{r+2}, {size}')
        a(f's_mov_b32 s{r+3}, 0x20000')

    def tagcheck(self, base, acc, first, t0, t1):
        a = self.a
        if first:
            a(f'v_xor_b32 v{acc}, s{S_T}, v{base}')
            a(f'v_xor_b32 v{t0}, s{S_T+1}, v{base+1}')
            a(f'v_xor_b32 v{t1}, s{S_T+2}, v{base+2}')
            a(f'v_or3_b32 v{acc}, v{acc}, v{t0}, v{t1}')
            a(f'v_xor_b32 v{t0}, s{S_T+3}, v{base+3}')
            a(f'v_or_b32 v{acc}, v{acc}, v{t0}')
        else:
            a(f'v_xor_b32 v{t0}, s{S_T}, v{base}')
            a(f'v_xor_b32 v{t1}, s{S_T+1}, v{base+1}')
            a(f'v_or3_b32 v{acc}, v{acc}, v{t0}, v{t1}')
            a(f'v_xor_b32 v{t0}, s{S_T+2}, v{base+2}')
            a(f'v_xor_b32 v{t1}, s{S_T+3}, v{base+3}')
            a(f'v_or3_b32 v{acc}, v{acc}, v{t0}, v{t1}')

    def poll_check(self, acc, reload_fn, name):
        a = self.a
        rt = a.label(name + '_retry'); ok = a.label(name + '_ok')
        a(f'v_and_b32 v{acc}, 0xfff, v{acc}')
        a(f'v_cmp_ne_u32 vcc, 0, v{acc}')
        a(f's_cbranch_vccnz {rt}')
        a(f'{ok}:')
        def blk():
            a(f'{rt}:')
            a(f's_add_u32 s{S_POLL}, s{S_POLL}, 1')
            a(f's_cmp_gt_u32 s{S_POLL}, {POLL_MAX}')
            a(f's_cbranch_scc1 {ok}')
            a('s_sleep 2')
            reload_fn()
            a(f'v_and_b32 v{acc}, 0xfff, v{acc}')
            a(f'v_cmp_ne_u32 vcc, 0, v{acc}')
            a(f's_cbranch_vccnz {rt}')
            a(f's_branch {ok}')
        self.deferred.append(blk)

    def signal(self, k, own=True):
        a = self.a
        a(f'v_mov_b32 v{V_E}, s{S_SYO if own else S_SYX}')
        a(f'v_mov_b32 v{V_F}, 1')
        a('s_waitcnt lgkmcnt(0)')
        a('s_mov_b64 exec, 1')
        a(f'ds_add_u32 v{V_E}, v{V_F} offset:{4*k}')
        a('s_mov_b64 exec, -1')

    def waitfor(self, k, own=True, n=4, have=False):
        a = self.a
        if not have: a(f'v_mov_b32 v{V_E}, s{S_SYO if own else S_SYX}')
        lp = a.label('sync'); dn = a.label('syncd')
        a(f'{lp}:')
        a(f'ds_read_b32 v{V_F}, v{V_E} offset:{4*k}')
        a('s_waitcnt lgkmcnt(0)')
        a(f'v_cmp_gt_u32 vcc, {n}, v{V_F}')
        a(f's_cbranch_vccz {dn}')
        a(f's_add_u32 s{S_POLL}, s{S_POLL}, 1')
        a(f's_cmp_lt_u32 s{S_POLL}, {POLL_MAX*8}')
        a(f's_cbranch_scc1 {lp}')
        a(f'{dn}:')

    def setsync(self, k):
        self.signal(k); self.waitfor(k, have=True)

    def fill(self, base, nbytes, vq, vaddr):
        a = self.a
        n = nbytes // 16
        a(f'v_lshlrev_b32 v{vaddr}, 4, v{V_TID}')
        a(f'v_add_u32 v{vaddr}, {base}, v{vaddr}')
        r = 0
        while n > 0:
            if n >= 512:
                a(f'ds_write_b128 v{vaddr}, v[{vq}:{vq+3}] offset:{r*8192}')
            else:
                a(f'v_cmpx_gt_u32 vcc, {n}, v{V_TID}')
                a(f'ds_write_b128 v{vaddr}, v[{vq}:{vq+3}] offset:{r*8192}')
                a('s_mov_b64 exec, -1')
            n -= 512; r += 1

    def prologue(self):
        a = self.a; o = self.o
        a(f's_cmp_ge_u32 s2, {NB}')
        a('s_cbranch_scc1 L_end')
        a(f's_load_dwordx16 s[{S_KA}:{S_KA+15}], s[0:1], 0')
        a(f's_load_dwordx2 s[{S_KA+16}:{S_KA+17}], s[0:1], 64')
        if o.get('cpf', 1):
            a(f's_getpc_b64 s[{S_U0}:{S_U0+1}]')
            a('L_pc:')
            a('v_lshlrev_b32 v254, 6, v0')
            a('v_min_u32 v254, L_hot_end-L_pc, v254')
            a(f'global_load_dword v255, v254, s[{S_U0}:{S_U0+1}]')
            if o.get('cpfw') == 1: a('s_waitcnt vmcnt(0)')
        a('s_memrealtime s[50:51]')
        a(f'v_lshrrev_b32 v{V_A}, 6, v0')
        a(f'v_and_b32 v{V_LANE}, 63, v0')
        if o.get('ts'): a(f'v_mov_b32 v{V_TSR}, 0')
        a(f'v_readfirstlane_b32 s{S_WAVE}, v{V_A}')
        for i in range(4): a(f'v_mov_b32 v{104+i}, {EMPTY}')
        a(f'v_lshlrev_b32 v103, 4, v{V_TID}')
        a(f'v_add_u32 v103, {IMG}, v103')
        a('ds_write_b128 v103, v[104:107]')
        a('ds_write_b128 v103, v[104:107] offset:8192')
        for i in range(4): a(f'v_mov_b32 v{108+i}, 0')
        a(f'v_cmpx_gt_u32 vcc, 64, v{V_TID}')
        a('ds_write_b128 v103, v[108:111] offset:16384')
        a('s_mov_b64 exec, -1')
        a(f's_lshr_b32 s{S_SET}, s{S_WAVE}, 2')
        a(f's_and_b32 s{S_W3}, s{S_WAVE}, 3')
        a(f's_mov_b32 s{S_POLL}, 0')
        a(f'v_and_b32 v{V_C}, 15, v{V_LANE}')
        a(f'v_lshrrev_b32 v{V_E}, 4, v{V_LANE}')
        a(f'v_lshlrev_b32 v{V_E}, 4, v{V_E}')
        a(f'v_lshl_add_u32 v{V_F}, v{V_C}, 9, v{V_E}')
        a(f'v_and_b32 v{V_C}, 1, v{V_LANE}')
        a(f'v_cmp_eq_u32 vcc, 1, v{V_C}')
        a(f'v_lshlrev_b32 v{V_A}, 3, v{V_TID}')
        a(f'v_lshlrev_b32 v{V_B}, 2, v{V_TID}')
        a('s_waitcnt lgkmcnt(0)')
        if o.get('cpfw') == 2: a('s_waitcnt vmcnt(0)')
        self.ts('start')

    def tlb_touch(self):
        a = self.a; o = self.o
        k = S_KA
        sk = a.label('notouch')
        a(f's_cmp_lg_u32 s{S_WAVE}, {o.get("tw", 7)}')
        a(f's_cbranch_scc1 {sk}')
        if o['touch'] == 1:
            a(f's_lshr_b32 s{S_T0}, s2, 3')
            a(f's_cmp_lg_u32 s{S_T0}, 30')
            a(f's_cbranch_scc1 {sk}')
        pages = [(0, 0), (0, 1), (0, 2), (2, 0), (4, 0), (6, 0), (8, 0), (10, 0), (12, 0), (12, 1), (12, 2), (14, 0), (16, 0), (16, 1), (16, 2)]
        a(f'v_mov_b32 v250, s{k}')
        a(f'v_mov_b32 v251, s{k+1}')
        for l, (p, n) in enumerate(pages):
            if l == 0: continue
            if n:
                a(f's_add_u32 s{S_T0}, s{k+p}, {n*0x200000}')
                a(f's_addc_u32 s{S_T1}, s{k+p+1}, 0')
                a(f'v_writelane_b32 v250, s{S_T0}, {l}')
                a(f'v_writelane_b32 v251, s{S_T1}, {l}')
            else:
                a(f'v_writelane_b32 v250, s{k+p}, {l}')
                a(f'v_writelane_b32 v251, s{k+p+1}, {l}')
        a(f's_mov_b64 exec, {(1 << len(pages)) - 1}')
        a('global_load_dword v252, v[250:251], off')
        a('s_mov_b64 exec, -1')
        a(f'{sk}:')

    def issue_loads(self):
        a = self.a
        if self.o.get('touch'): self.tlb_touch()
        s1 = a.label('iss1'); dn = a.label('issdone')
        k = S_KA
        a(f's_cmp_eq_u32 s{S_SET}, 1')
        a(f's_cbranch_scc1 {s1}')
        self.srd(S_DST, k+4, 640000)
        self.srd(S_SRC, k+2, 640000)
        a(f's_mul_i32 s{S_T0}, s2, 2560')
        a(f'buffer_load_dwordx2 v[32:33], v{V_A}, s[{S_DST}:{S_DST+3}], s{S_T0} offen')
        a(f'buffer_load_dwordx2 v[34:35], v{V_A}, s[{S_SRC}:{S_SRC+3}], s{S_T0} offen')
        a(f's_cmp_lt_u32 s{S_WAVE}, 2')
        a('s_cselect_b64 exec, -1, 0')
        a(f'buffer_load_dword v36, v{V_B}, s[{S_DST}:{S_DST+3}], s{S_T0} offen offset:2048')
        a(f'buffer_load_dword v37, v{V_B}, s[{S_SRC}:{S_SRC+3}], s{S_T0} offen offset:2048')
        self.srd(S_DBG, k+14, 256)
        a(f's_or_b32 s{S_T0}, s2, s{S_WAVE}')
        a('s_bitset1_b32 s50, 31')
        a('s_bitset1_b32 s51, 31')
        a('v_mov_b32 v38, s50')
        a('v_mov_b32 v39, s51')
        a(f's_cmp_eq_u32 s{S_T0}, 0')
        a('s_cselect_b32 exec_lo, 1, 0')
        a('s_mov_b32 exec_hi, 0')
        a(f'buffer_store_dwordx2 v[38:39], off, s[{S_DBG}:{S_DBG+3}], 0 sc1')
        a('s_mov_b64 exec, -1')
        a(f's_branch {dn}')
        a(f'{s1}:')
        a(f's_sub_u32 s{S_U0}, s{S_WAVE}, 4')
        self.srd(S_W, k+6, 524288)
        t3 = a.label('not3')
        a(f's_sub_u32 s{S_U1}, s2, 64')
        a(f's_cmp_ge_u32 s{S_U1}, 128')
        a(f's_cbranch_scc1 {t3}')
        a(f's_lshr_b32 s{S_T0}, s{S_U1}, 6')
        a(f's_lshl_b32 s{S_T0}, s{S_T0}, 16')
        a(f's_and_b32 s{S_T1}, s{S_U1}, 15')
        a(f's_lshl_b32 s{S_T1}, s{S_T1}, 12')
        a(f's_add_u32 s{S_T0}, s{S_T0}, s{S_T1}')
        a(f's_bfe_u32 s{S_T1}, s{S_U1}, 0x20004')
        a(f's_lshl_b32 s{S_T1}, s{S_T1}, 7')
        a(f's_add_u32 s{S_T0}, s{S_T0}, s{S_T1}')
        a(f's_lshl_b32 s{S_T1}, s{S_U0}, 5')
        a(f's_add_u32 s{S_T0}, s{S_T0}, s{S_T1}')
        a(f'v_and_b32 v{V_C}, 15, v{V_LANE}')
        a(f'v_lshlrev_b32 v{V_C}, 1, v{V_C}')
        a(f'v_lshl_add_u32 v{V_C}, v{V_E}, 6, v{V_C}')
        for i in range(8):
            a(f's_add_u32 s{S_T1}, s{S_T0}, {(i & 3)*131072}')
            a(f'buffer_load_ushort v{(96 if i % 2 == 0 else 92) + (i >> 1)}, v{V_C}, s[{S_W}:{S_W+3}], s{S_T1} offen offset:{(i >> 2)*512}')
        a(f's_branch {dn}')
        a(f'{t3}:')
        a(f's_cmp_lg_u32 s{S_U0}, 3')
        a(f's_cbranch_scc1 {dn}')
        a('s_cmp_ge_u32 s2, 64')
        a(f's_cbranch_scc1 {dn}')
        a(f's_lshl_b32 s{S_T0}, s2, 13')
        for t in range(8):
            a(f'buffer_load_dwordx4 v[{32+4*t}:{35+4*t}], v{V_F}, s[{S_W}:{S_W+3}], s{S_T0} offen offset:{64*t}')
        a(f'v_mov_b32 v{V_C}, s{S_KA+8}')
        a(f'v_mov_b32 v{V_D}, s{S_KA+10}')
        a(f'v_cndmask_b32 v{V_C}, v{V_C}, v{V_D}, vcc')
        a(f'v_mov_b32 v{V_D}, s{S_KA+9}')
        a(f'v_mov_b32 v{V_G}, s{S_KA+11}')
        a(f'v_cndmask_b32 v{V_D}, v{V_D}, v{V_G}, vcc')
        a(f's_lshr_b32 s{S_T1}, s2, 4')
        a(f's_lshl_b32 s{S_T1}, s{S_T1}, 9')
        a(f'v_add_u32 v{V_E}, s{S_T1}, v{V_E}')
        a(f'v_add_co_u32 v{V_C}, vcc, v{V_C}, v{V_E}')
        a('s_nop 1')
        a(f'v_addc_co_u32 v{V_D}, vcc, 0, v{V_D}, vcc')
        for t in range(8):
            a(f'global_load_dwordx4 v[{64+4*t}:{67+4*t}], v[{V_C}:{V_C+1}], off offset:{64*t}')
        a(f'{dn}:')

    def late_consts(self):
        a = self.a; o = self.o
        k = S_KA
        self.srd(S_WS, k+16, WS_SIZE)
        self.srd(S_X, k+0, 5120000+4096, shift=4096)
        self.srd(S_W, k+6, 524288)
        self.srd(S_DST, k+4, 640000)
        self.srd(S_SRC, k+2, 640000)
        self.srd(S_OUT, k+12, 5120000)
        a(f'v_and_b32 v{V_A}, 15, v{V_LANE}')
        a(f'v_lshrrev_b32 v{V_B}, 4, v{V_LANE}')
        a(f's_lshr_b32 s{S_HF}, s{S_W3}, 1')
        a(f's_mul_i32 s{S_RING}, s{S_WAVE}, {RINGW}')
        a(f's_and_b32 s{S_T0}, s{S_W3}, 1')
        a(f's_lshl_b32 s{S_T1}, s{S_SET}, 1')
        a(f's_add_u32 s{S_SLICE}, s{S_T0}, s{S_T1}')
        a(f'v_lshrrev_b32 v{V_C}, 3, v{V_A}')
        a(f'v_and_b32 v{V_D}, 1, v{V_B}')
        a(f'v_lshl_or_b32 v{V_C}, v{V_D}, 1, v{V_C}')
        a(f'v_lshrrev_b32 v{V_D}, 2, v{V_A}')
        a(f'v_lshlrev_b32 v{V_D}, 7, v{V_D}')
        a(f'v_lshl_add_u32 v{V_D}, v{V_B}, 10, v{V_D}')
        a(f'v_bfe_u32 v{V_E}, v{V_A}, 1, 1')
        a(f'v_lshl_add_u32 v{V_D}, v{V_E}, 4, v{V_D}')
        a(f'v_and_b32 v{V_E}, 1, v{V_A}')
        a(f'v_lshl_add_u32 v{V_D}, v{V_E}, 3, v{V_D}')
        a(f'v_add_u32 v{V_D}, s{S_RING}, v{V_D}')
        for j in range(4):
            a(f'v_xor_b32 v{V_E}, {j}, v{V_C}')
            a(f'v_lshl_add_u32 v{V_TR+j}, v{V_E}, 5, v{V_D}')
        a(f'v_lshlrev_b32 v{V_WE}, 4, v{V_LANE}')
        a(f'v_add_u32 v{V_AW}, {AP}, v{V_WE}')
        a(f'v_mov_b32 v{V_LB}, {LIST}')
        a(f'v_lshrrev_b32 v{V_C}, 3, v{V_LANE}')
        a(f'v_lshl_add_u32 v{V_LST}, v{V_C}, 4, v{V_LB}')
        a(f'v_and_b32 v{V_D}, 2, v{V_C}')
        a(f'v_and_b32 v{V_E}, 7, v{V_LANE}')
        a(f'v_xor_b32 v{V_E}, v{V_E}, v{V_D}')
        a(f'v_lshlrev_b32 v{V_SWE}, 4, v{V_E}')
        a(f'v_xor_b32 v{V_SWO}, 64, v{V_SWE}')
        a(f's_mov_b32 s{S_M}, 0xfffffe00')
        a(f's_lshl_b32 s{S_T0}, s{S_SLICE}, 7')
        for c in range(4):
            a(f's_add_u32 s{S_XSO+c}, s{S_T0}, {4096 - c*1024}')
        a(f's_mov_b32 s{S_C3}, {(-(R-1)*4096) & 0xffffffff}')
        a(f's_lshl_b32 s{S_WB}, s{S_WAVE}, 16')
        a(f's_add_u32 s{S_WB}, s{S_WB}, {WS_WSW}')
        a(f's_lshl_b32 s{S_T0}, s{S_SET}, 5')
        a(f's_add_u32 s{S_SYO}, s{S_T0}, {M_SYNC}')
        a(f's_xor_b32 s{S_T0}, s{S_T0}, 32')
        a(f's_add_u32 s{S_SYX}, s{S_T0}, {M_SYNC}')
        self.lds_reset()

    def lds_reset(self):
        a = self.a
        for i in range(4): a(f'v_mov_b32 v{104+i}, 0')
        self.fill(AP, 40960, 104, 103)
        a(f'v_lshlrev_b32 v103, 4, v{V_TID}')
        a(f'v_add_u32 v103, {GCNT}, v103')
        a(f'v_cmpx_gt_u32 vcc, 4, v{V_TID}')
        a(f'ds_write_b128 v103, v[104:107]')
        a('s_mov_b64 exec, -1')
        a(f'v_lshlrev_b32 v103, 3, v{V_TID}')
        a(f'v_add_u32 v103, {M_SLOW}, v103')
        a(f'v_cmpx_gt_u32 vcc, 10, v{V_TID}')
        a(f'ds_write_b64 v103, v[104:105]')
        a('s_mov_b64 exec, -1')
        for i in range(4): a(f'v_mov_b32 v{104+i}, 0x40000000')
        self.fill(LIST, 5248, 104, 103)

    def unit_consts(self, slot, glo, ghi, rb, mask):
        a = self.a
        U = V_UN + 4*slot
        a(f'v_mov_b32 v{V_C}, s{ghi}')
        a(f'v_mov_b32 v{V_D}, s{glo}')
        a(f'v_cndmask_b32 v{V_C}, v{V_C}, v{V_D}, s[{S_EX2}:{S_EX2+1}]')
        a(f'v_and_b32 v{U}, s{mask}, v{V_LANE}')
        a(f'v_add_u32 v{U}, s{rb}, v{U}')
        a(f'v_lshlrev_b32 v{U+1}, 2, v{V_C}')
        a(f'v_add_u32 v{U+1}, {GCNT}, v{U+1}')
        a(f'v_lshl_add_u32 v{V_E}, v{V_C}, 9, v{V_LB}')
        a(f'v_lshl_add_u32 v{U+2}, v{U}, 2, v{V_E}')
        a(f'v_lshlrev_b32 v{V_E}, 12, v{V_C}')
        a(f'v_lshrrev_b32 v{V_D}, 5, v{U}')
        a(f'v_lshl_add_u32 v{V_E}, v{V_D}, 10, v{V_E}')
        a(f'v_and_b32 v{V_D}, 3, v{U}')
        a(f'v_lshl_add_u32 v{V_E}, v{V_D}, 8, v{V_E}')
        a(f'v_bfe_u32 v{V_D}, v{U}, 2, 3')
        a(f'v_lshl_add_u32 v{V_E}, v{V_D}, 1, v{V_E}')
        a(f'v_add_u32 v{U+3}, {AP}, v{V_E}')

    def unit_setup(self):
        a = self.a
        a(f'v_cmp_gt_u32 vcc, 32, v{V_LANE}')
        a(f's_mov_b64 s[{S_EX2}:{S_EX2+1}], vcc')
        a(f's_mov_b32 s{S_U2}, 0')
        a(f's_mov_b32 s{S_U3}, 63')
        self.unit_consts(0, S_WAVE, S_WAVE, S_U2, S_U3)
        a(f's_add_u32 s{S_T0}, s{S_WAVE}, 8')
        a(f's_lshl_b32 s{S_T1}, s{S_WAVE}, 1')
        a(f's_sub_u32 s{S_T1}, s{S_T1}, 4')
        a(f's_add_u32 s{S_T2}, s{S_T1}, 1')
        a(f's_cmp_lt_u32 s{S_WAVE}, 2')
        a(f's_cselect_b32 s{S_C0}, s{S_T0}, s{S_T1}')
        a(f's_cselect_b32 s{S_C1}, s{S_T0}, s{S_T2}')
        a(f's_cselect_b32 s{S_U2}, 0, 64')
        a(f's_cselect_b32 s{S_U3}, 63, 31')
        a(f's_cmp_eq_u32 s{S_WAVE}, 7')
        a(f's_cselect_b32 s{S_C0}, 0, s{S_C0}')
        a(f's_cselect_b32 s{S_C1}, 0, s{S_C1}')
        a(f's_cselect_b32 s{S_U2}, 0x200, s{S_U2}')
        self.unit_consts(1, S_C0, S_C1, S_U2, S_U3)

    def read_tags(self):
        a = self.a
        a(f'v_mov_b32 v{V_A}, {M_NONCE}')
        a(f'ds_read_b64 v[{V_C}:{V_C+1}], v{V_A}')
        a('s_waitcnt lgkmcnt(0)')
        a(f'v_readfirstlane_b32 s{S_T0}, v{V_C}')
        a(f'v_readfirstlane_b32 s{S_T1}, v{V_C+1}')
        a('s_nop 1')
        a(f's_and_b32 s{S_T}, s{S_T0}, 0xfff')
        a(f's_bfe_u32 s{S_T+1}, s{S_T0}, 0xc000c')
        a(f's_bfe_u32 s{S_T+2}, s{S_T0}, 0x70018')
        a(f's_lshl_b32 s{S_T0}, s{S_T1}, 7')
        a(f's_or_b32 s{S_T+2}, s{S_T+2}, s{S_T0}')
        a(f's_bfe_u32 s{S_T+3}, s{S_T1}, 0xc0005')
        for k, (mul, add) in enumerate(((5, 0x123), (9, 0x456), (13, 0x789))):
            a(f's_mul_i32 s{S_T0}, s{S_T}, {mul}')
            a(f's_add_u32 s{S_T+1+k}, s{S_T+1+k}, s{S_T0}')
            a(f's_add_u32 s{S_T+1+k}, s{S_T+1+k}, {add}')
            a(f's_and_b32 s{S_T+1+k}, s{S_T+1+k}, 0xfff')

    def xrows(self):
        a = self.a
        sk = a.label('nox')
        a(f's_cmp_eq_u32 s{S_WAVE}, 7')
        a(f's_cbranch_scc1 {sk}')
        self.srd(S_X, S_KA+0, 5120000+4096, shift=4096)
        a(f's_mul_i32 s{S_T0}, s2, 40')
        a(f's_and_b32 s{S_T1}, s{S_WAVE}, 3')
        a(f's_lshl_b32 s{S_T1}, s{S_T1}, 4')
        a(f's_add_u32 s{S_T0}, s{S_T0}, s{S_T1}')
        a(f's_lshl_b32 s{S_T0}, s{S_T0}, 9')
        a(f's_add_u32 s{S_T0}, s{S_T0}, 4096')
        a(f'v_and_b32 v{V_A}, 15, v{V_LANE}')
        a(f'v_lshlrev_b32 v{V_A}, 9, v{V_A}')
        a(f'v_lshrrev_b32 v{V_B}, 4, v{V_LANE}')
        a(f'v_lshl_add_u32 v{V_A}, v{V_B}, 4, v{V_A}')
        for t in range(8):
            a(f'buffer_load_dwordx4 v[{40+4*t}:{43+4*t}], v{V_A}, s[{S_X}:{S_X+3}], s{S_T0} offen offset:{64*t}')
        a(f'{sk}:')

    def t1_set0(self):
        a = self.a; o = self.o
        a('s_waitcnt vmcnt(1)')
        sk = a.label('w0only')
        a(f's_cmp_eq_u32 s{S_WAVE}, 0')
        a(f's_cbranch_scc1 {sk}')
        a('s_waitcnt vmcnt(0)')
        a(f'{sk}:')
        self.ts('ld1')
        a(f's_mov_b32 s{S_C0}, -40')
        a(f's_mov_b32 s{S_C1}, {CNT}')
        a(f's_mov_b32 s{S_C2}, {IMG}')
        a(f'v_mov_b32 v{V_G}, 1')
        def rnd(vd, vs, t):
            a(f'v_mul_u32_u24 v{t}, 0xcccd, v{vd}')
            a(f'v_lshrrev_b32 v{t}, 21, v{t}')
            a(f'v_mad_i32_i24 v{t+1}, v{t}, s{S_C0}, v{vd}')
            a(f'v_lshlrev_b32 v{t+2}, 18, v{vs}')
            a(f'v_lshl_or_b32 v{t+1}, v{t+1}, 12, v{t+2}')
            a(f'v_lshl_add_u32 v{t+3}, v{t}, 2, s{S_C1}')
            a(f'v_lshl_add_u32 v{t+2}, v{t}, 6, s{S_C2}')
            a(f'ds_add_rtn_u32 v{t+3}, v{t+3}, v{V_G}')
        def wr(t):
            a(f'v_cmpx_gt_u32 vcc, 16, v{t+3}')
            a(f'v_lshl_add_u32 v{t+2}, v{t+3}, 2, v{t+2}')
            a(f'ds_write_b32 v{t+2}, v{t+1}')
            a('s_mov_b64 exec, -1')
        rnd(32, 34, 40); rnd(33, 35, 44)
        a(f's_cmp_lt_u32 s{S_WAVE}, 2')
        a(f's_cselect_b64 s[{S_EX2}:{S_EX2+1}], -1, 0')
        a(f's_mov_b64 exec, s[{S_EX2}:{S_EX2+1}]')
        rnd(36, 37, 48)
        a('s_mov_b64 exec, -1')
        a('s_waitcnt lgkmcnt(0)')
        wr(40); wr(44)
        a(f's_mov_b64 exec, s[{S_EX2}:{S_EX2+1}]')
        wr(48)
        self.ts('t1done')
        sk = a.label('nop1'); rt = a.label('nretry'); ok = a.label('nok')
        a(f's_cmp_lg_u32 s{S_WAVE}, 0')
        a(f's_cbranch_scc1 {sk}')
        def chk():
            a('s_waitcnt vmcnt(0)')
            a(f'v_readfirstlane_b32 s{S_T0}, v38')
            a(f'v_readfirstlane_b32 s{S_T1}, v39')
            a('s_nop 1')
            a(f's_and_b32 s{S_T0}, s{S_T0}, s{S_T1}')
            a(f's_bitcmp1_b32 s{S_T0}, 31')
        chk()
        a(f's_cbranch_scc0 {rt}')
        a(f'{ok}:')
        def blk():
            a(f'{rt}:')
            a(f's_add_u32 s{S_POLL}, s{S_POLL}, 1')
            a(f's_cmp_gt_u32 s{S_POLL}, {POLL_MAX}')
            a(f's_cbranch_scc1 {ok}')
            a(f'buffer_load_dwordx2 v[38:39], off, s[{S_DBG}:{S_DBG+3}], 0 sc1')
            chk()
            a(f's_cbranch_scc0 {rt}')
            a(f's_branch {ok}')
        self.deferred.append(blk)
        self.ts('nonce')
        if o.get('ts'): a(f'v_writelane_b32 v{V_TSR}, s{S_POLL}, 30')
        a(f'v_mov_b32 v{V_A}, {M_NONCE}')
        a(f'ds_write_b64 v{V_A}, v[38:39]')
        a(f'{sk}:')
        a('s_waitcnt lgkmcnt(0)')
        a('s_barrier')
        self.ts('B1')
        self.read_tags()
        self.unit_setup()
        a('s_barrier')

    def t1_set1(self):
        a = self.a; o = self.o
        sk = a.label('nou2')
        a(f's_cmp_lg_u32 s{S_U0}, 3')
        a(f's_cbranch_scc1 {sk}')
        a('s_cmp_ge_u32 s2, 64')
        a(f's_cbranch_scc1 {sk}')
        a('s_waitcnt vmcnt(0)')
        self.ts('ld1')
        for t in range(8):
            c = '0' if t == 0 else 'v[96:99]'
            a(f'v_mfma_f32_16x16x32_bf16 v[96:99], v[{32+4*t}:{35+4*t}], v[{64+4*t}:{67+4*t}], {c}')
        a('s_nop 7')
        for r in range(96, 100): a(f'v_mul_f32 v{r}, 0x3fb8aa3b, v{r}')
        for r in range(96, 100): a(f'v_add_u32 v{r}, 0x800, v{r}')
        a(f'{sk}:')
        sk = a.label('not3b')
        a(f's_sub_u32 s{S_U1}, s2, 64')
        a(f's_cmp_ge_u32 s{S_U1}, 128')
        a(f's_cbranch_scc1 {sk}')
        a(f's_lshl_b32 s{S_T0}, s{S_U1}, 12')
        a(f's_lshl_b32 s{S_T1}, s{S_U0}, 10')
        a(f's_add_u32 s{S_T0}, s{S_T0}, s{S_T1}')
        a(f's_add_u32 s{S_T0}, s{S_T0}, {WS_WSW}')
        a('s_waitcnt vmcnt(0)')
        for r in range(4): a(f'v_lshl_or_b32 v{96+r}, v{92+r}, 16, v{96+r}')
        a(f'buffer_store_dwordx4 v[96:99], v{V_WE}, s[{S_WS}:{S_WS+3}], s{S_T0} offen sc1')
        a('s_waitcnt vmcnt(0)')
        a(f'{sk}:')
        self.ts('t1done')
        a('s_waitcnt lgkmcnt(0)')
        a('s_barrier')
        self.ts('B1')
        self.read_tags()
        a(f's_mov_b32 s{S_C0}, 0xfffff000')
        sk = a.label('nou3')
        a(f's_cmp_lg_u32 s{S_U0}, 3')
        a(f's_cbranch_scc1 {sk}')
        a('s_cmp_ge_u32 s2, 64')
        a(f's_cbranch_scc1 {sk}')
        for k in range(4): a(f'v_and_b32 v{96+k}, s{S_C0}, v{96+k}')
        for k in range(4): a(f'v_or_b32 v{96+k}, s{S_T+k}, v{96+k}')
        a(f'v_and_b32 v{V_A}, 15, v{V_LANE}')
        a(f'v_lshrrev_b32 v{V_B}, 4, v{V_LANE}')
        a(f'v_lshl_add_u32 v{V_B}, v{V_A}, 2, v{V_B}')
        a(f'v_lshlrev_b32 v{V_B}, 4, v{V_B}')
        a(f's_lshl_b32 s{S_T0}, s2, 7')
        a(f's_add_u32 s{S_T0}, s{S_T0}, {WS_UTAB}')
        a(f'v_cmpx_gt_u32 vcc, 2, v{V_A}')
        a(f'buffer_store_dwordx4 v[96:99], v{V_B}, s[{S_WS}:{S_WS+3}], s{S_T0} offen sc1')
        a('s_mov_b64 exec, -1')
        self.ts('ust')
        a(f'{sk}:')
        a(f'v_subrev_u32 v{V_F}, 256, v{V_TID}')
        a(f'v_lshlrev_b32 v{V_A}, 4, v{V_F}')
        a(f'v_add_u32 v{V_A}, {IMG}, v{V_A}')
        a(f'v_lshrrev_b32 v{V_B}, 2, v{V_F}')
        a(f'v_lshlrev_b32 v{V_C}, 2, v{V_B}')
        a(f'v_add_u32 v{V_C}, {CNT}, v{V_C}')
        for i in range(4):
            a(f'ds_read_b128 v[{76+4*i}:{79+4*i}], v{V_A} offset:{4096*i}')
            a(f'ds_read_b32 v{92+i}, v{V_C} offset:{256*i}')
        a(f'v_mul_u32_u24 v{V_B}, 16000, v{V_B}')
        a(f'v_and_b32 v{V_D}, 3, v{V_F}')
        a(f'v_lshl_add_u32 v{V_B}, v{V_D}, 4, v{V_B}')
        a(f'v_cmp_eq_u32 s[{S_EX2}:{S_EX2+1}], 3, v{V_D}')
        a(f'v_mov_b32 v{V_E}, 0xffffe000')
        a(f's_lshl_b32 s{S_C1}, s2, 6')
        a('s_waitcnt lgkmcnt(0)')
        for i in range(4):
            a(f'v_cmp_lt_u32 vcc, 16, v{92+i}')
            a(f's_and_b64 vcc, vcc, s[{S_EX2}:{S_EX2+1}]')
            for k in range(3): a(f'v_or_b32 v{76+4*i+k}, s{S_T+k}, v{76+4*i+k}')
            a(f'v_cndmask_b32 v{79+4*i}, v{79+4*i}, v{V_E}, vcc')
            a(f'v_or_b32 v{79+4*i}, s{S_T+3}, v{79+4*i}')
            if i == 3: a(f'v_cmpx_gt_u32 vcc, 232, v{V_F}')
            a(f'buffer_store_dwordx4 v[{76+4*i}:{79+4*i}], v{V_B}, s[{S_WS}:{S_WS+3}], s{S_C1} offen sc1')
            if i == 3: a('s_mov_b64 exec, -1')
            else: a(f's_add_u32 s{S_C1}, s{S_C1}, 1024000')
        self.ts('p3')
        self.unit_setup()
        a('s_waitcnt vmcnt(0)')
        self.ts('tack')
        a('s_barrier')

    def middle(self):
        a = self.a; o = self.o
        E = 72
        a(f'v_and_b32 v{V_A}, 255, v{V_TID}')
        a(f'v_lshrrev_b32 v{V_B}, 8, v{V_TID}')
        a(f'v_lshlrev_b32 v{V_E}, 6, v{V_A}')
        a(f'v_lshl_add_u32 v{V_E}, v{V_B}, 4, v{V_E}')
        a(f's_mul_i32 s{S_C2}, s2, 16000')
        a(f'v_cmp_gt_u32 vcc, 250, v{V_A}')
        a(f's_mov_b64 s[{S_EX2}:{S_EX2+1}], vcc')
        for i in range(8): a(f'v_mov_b32 v{E+i}, {EMPTY}')
        a(f'v_lshlrev_b32 v{V_F}, 4, v{V_TID}')
        a(f's_mov_b32 s{S_C0}, {WS_UTAB}')
        for _ in range(o.get('edelay', 0)): a('s_sleep 2')
        self.ts('eld')
        def eload():
            a(f's_mov_b64 exec, s[{S_EX2}:{S_EX2+1}]')
            a(f'buffer_load_dwordx4 v[{E}:{E+3}], v{V_E}, s[{S_WS}:{S_WS+3}], s{S_C2} offen sc1')
            a(f'buffer_load_dwordx4 v[{E+4}:{E+7}], v{V_E}, s[{S_WS}:{S_WS+3}], s{S_C2} offen offset:32 sc1')
        def uload():
            a(f'buffer_load_dwordx4 v[84:87], v{V_F}, s[{S_WS}:{S_WS+3}], s{S_C0} offen sc1')
        eload(); a('s_mov_b64 exec, -1')
        uload()
        a('s_barrier')
        sk = a.label('nox1')
        a(f's_cmp_eq_u32 s{S_SET}, 0')
        a(f's_cbranch_scc1 {sk}')
        self.xrows()
        a(f'{sk}:')
        if o.get('sweep', 1): self.sweep(0, 11)
        else: a(f'buffer_load_dword v255, off, s[{S_WS}:{S_WS+3}], 0 sc1')
        w46 = a.label('w46'); w46e = a.label('w46e')
        a(f's_sub_u32 s{S_U0}, s{S_WAVE}, 4')
        a(f's_cmp_le_u32 s{S_U0}, 2')
        a(f's_cbranch_scc1 {w46}')
        a('s_waitcnt vmcnt(1)')
        a(f'{w46e}:')
        def blk():
            a(f'{w46}:')
            a('s_waitcnt vmcnt(9)')
            a(f's_branch {w46e}')
        self.deferred.append(blk)
        self.tagcheck(84, V_A, True, V_B, V_C)
        def ure():
            uload(); a('s_waitcnt vmcnt(0)'); self.tagcheck(84, V_A, True, V_B, V_C)
        self.poll_check(V_A, ure, 'u')
        self.ts('uval')
        a(f's_mov_b32 s{S_C0}, 0xfffff000')
        for i in range(4): a(f'v_and_b32 v{84+i}, s{S_C0}, v{84+i}')
        a(f'v_bfe_u32 v{V_A}, v{V_TID}, 2, 1')
        a(f'v_lshrrev_b32 v{V_B}, 7, v{V_TID}')
        a('v_cvt_pk_bf16_f32 v84, v84, v85')
        a('v_cvt_pk_bf16_f32 v85, v86, v87')
        a(f'v_lshl_add_u32 v{V_A}, v{V_A}, 2, v{V_B}')
        a(f'v_mul_u32_u24 v{V_A}, 528, v{V_A}')
        a(f'v_bfe_u32 v{V_B}, v{V_TID}, 3, 4')
        a(f'v_lshl_add_u32 v{V_A}, v{V_B}, 5, v{V_A}')
        a(f'v_and_b32 v{V_B}, 3, v{V_TID}')
        a(f'v_lshl_add_u32 v{V_A}, v{V_B}, 3, v{V_A}')
        a(f'v_add_u32 v{V_A}, {UT}, v{V_A}')
        a(f'ds_write_b64 v{V_A}, v[84:85]')
        a('s_waitcnt lgkmcnt(0)')
        a('s_barrier')
        self.ts('B2')
        a(f's_mov_b64 exec, s[{S_EX2}:{S_EX2+1}]')
        def echeck():
            self.tagcheck(E, V_A, True, V_B, V_C); self.tagcheck(E+4, V_A, False, V_B, V_C)
        echeck()
        def ere():
            eload(); a('s_waitcnt vmcnt(0)'); echeck()
        self.poll_check(V_A, ere, 'e')
        self.ts('eval')
        a(f's_mov_b32 s{S_C0}, 0xfffc0000')
        a(f's_mov_b32 s{S_C1}, {GCNT}')
        a(f's_movk_i32 s{S_U1}, 0x1e00')
        a(f'v_mov_b32 v{V_G}, 1')
        def sort4(k0):
            for k in range(k0, k0+4):
                a(f'v_cmpx_gt_u32 vcc, s{S_C0}, v{E+k}')
                a(f'v_lshrrev_b32 v{V_A}, 12, v{E+k}')
                a(f'v_and_or_b32 v{V_A}, v{V_A}, 60, s{S_C1}')
                a(f'ds_add_rtn_u32 v{80+(k&3)}, v{V_A}, v{V_G}')
            a(f's_mov_b64 exec, s[{S_EX2}:{S_EX2+1}]')
            a('s_waitcnt lgkmcnt(0)')
            for k in range(k0, k0+4):
                a(f'v_cmpx_gt_u32 vcc, s{S_C0}, v{E+k}')
                a(f'v_lshrrev_b32 v{V_A}, 5, v{E+k}')
                a(f'v_and_or_b32 v{V_A}, v{V_A}, s{S_U1}, v{V_LB}')
                a(f'v_lshl_add_u32 v{V_A}, v{80+(k&3)}, 2, v{V_A}')
                a(f'v_lshrrev_b32 v{V_B}, 9, v{E+k}')
                a(f'ds_write_b32 v{V_A}, v{V_B}')
            a(f's_mov_b64 exec, s[{S_EX2}:{S_EX2+1}]')
        sort4(0)
        rare = a.label('rare'); back = a.label('rareb')
        a(f'v_cmp_gt_u32 vcc, s{S_C0}, v{E+4}')
        a(f's_cbranch_vccnz {rare}')
        a(f'{back}:')
        def blk():
            a(f'{rare}:')
            sort4(4)
            a(f'v_lshrrev_b32 v{V_A}, 12, v{E+7}')
            a(f'v_cmpx_eq_u32 vcc, 0xffffe, v{V_A}')
            a(f'v_mov_b32 v{V_A}, {M_SLOW}')
            a(f'ds_write_b32 v{V_A}, v{V_G}')
            a(f's_mov_b64 exec, s[{S_EX2}:{S_EX2+1}]')
            a(f's_branch {back}')
        self.deferred.append(blk)
        a('s_mov_b64 exec, -1')
        a('s_waitcnt lgkmcnt(0)')
        a('s_barrier')
        self.ts('B3')
        sk = a.label('nos')
        a(f's_sub_u32 s{S_U0}, s{S_WAVE}, 4')
        a(f's_cmp_gt_u32 s{S_U0}, 2')
        a(f's_cbranch_scc1 {sk}')
        a(f's_mov_b32 s{S_C0}, 0xfffff000')
        a(f'v_and_b32 v{V_A}, 7, v{V_LANE}')
        a(f'v_mul_u32_u24 v{V_A}, 528, v{V_A}')
        a(f'v_lshrrev_b32 v{V_B}, 4, v{V_LANE}')
        a(f'v_lshl_add_u32 v{V_A}, v{V_B}, 4, v{V_A}')
        a(f'v_add_u32 v{V_A}, {UT}, v{V_A}')
        UF = 208
        for t in range(8):
            a(f'ds_read_b128 v[{UF+4*t}:{UF+4*t+3}], v{V_A} offset:{64*t}')
        a(f'v_and_b32 v{V_A}, 15, v{V_LANE}')
        a(f's_lshl_b32 s{S_T0}, s{S_U0}, 4')
        a(f'v_add_u32 v{V_A}, s{S_T0}, v{V_A}')
        a(f'v_cmp_gt_u32 s[{S_EX}:{S_EX+1}], 40, v{V_A}')
        a(f'v_lshlrev_b32 v{V_C}, 4, v{V_A}')
        a(f's_mul_i32 s{S_T1}, s2, 640')
        a(f's_add_u32 s{S_T1}, s{S_T1}, {WS_STAB}')
        a(f'v_add_u32 v{V_D}, {SDST}, v{V_C}')
        a('s_waitcnt vmcnt(1) lgkmcnt(0)')
        self.ts('sfr')
        for t in range(8):
            c = '0' if t == 0 else 'v[88:91]'
            a(f'v_mfma_f32_16x16x32_bf16 v[88:91], v[{UF+4*t}:{UF+4*t+3}], v[{40+4*t}:{43+4*t}], {c}')
        a(f'v_cmp_eq_u32 vcc, 0, v{V_B}')
        a(f's_and_b64 s[{S_T0+1}:{S_T0+2}], vcc, s[{S_EX}:{S_EX+1}]')
        a(f'v_cmp_eq_u32 vcc, 1, v{V_B}')
        a(f's_and_b64 vcc, vcc, s[{S_EX}:{S_EX+1}]')
        a('s_nop 3')
        for k in range(4): a(f'v_add_u32 v{92+k}, 0x800, v{88+k}')
        for k in range(4): a(f'v_and_b32 v{92+k}, s{S_C0}, v{92+k}')
        for k in range(4): a(f'v_or_b32 v{92+k}, s{S_T+k}, v{92+k}')
        a('s_mov_b64 exec, vcc')
        a(f'ds_write_b128 v{V_D}, v[88:91]')
        a(f's_mov_b64 exec, s[{S_T0+1}:{S_T0+2}]')
        a(f's_mul_i32 s{S_T1}, s2, 640')
        a(f's_add_u32 s{S_T1}, s{S_T1}, {WS_STAB}')
        a(f'buffer_store_dwordx4 v[92:95], v{V_C}, s[{S_WS}:{S_WS+3}], s{S_T1} offen sc1')
        a('s_mov_b64 exec, -1')
        self.ts('sst')
        a(f'{sk}:')
        self.steptab_read()
        a('s_waitcnt lgkmcnt(0)')
        self.steptab()
        self.xprologue()
        self.ts('xp')
        a('s_waitcnt lgkmcnt(0)')
        a('s_barrier')
        self.ts('B3u')
        for t in range(NA): self.wload(t)
        for u in range(2):
            U = V_UN + 4*u
            a(f'ds_read_b32 v{34+u}, v{U+1}')
            a(f'ds_read_b32 v{32+u}, v{U+2}')
        a(f's_mov_b32 s{S_C0}, {WS_STAB}')
        a(f's_movk_i32 s{S_U1}, 0x3f0')
        a(f'v_mov_b32 v{V_F}, {SDST}')
        a('s_waitcnt lgkmcnt(0)')
        self.unit_loads(0); self.unit_loads(1)
        self.ts('sld')
        a('s_waitcnt vmcnt(0) lgkmcnt(0)')
        def scheck():
            a(f'v_mov_b32 v{V_F}, 0')
            for u in range(2):
                a(f'v_cmpx_gt_u32 vcc, v{34+u}, v{V_UN+4*u}')
                self.tagcheck(40+4*u, V_F, False, V_B, V_C)
                a('s_mov_b64 exec, -1')
        scheck()
        def sre():
            a(f's_mov_b32 s{S_C0}, {WS_STAB}')
            for u in range(2):
                a(f'v_cmpx_gt_u32 vcc, v{34+u}, v{V_UN+4*u}')
                a(f'buffer_load_dwordx4 v[{40+4*u}:{43+4*u}], v{36+u}, s[{S_WS}:{S_WS+3}], s{S_C0} offen sc1')
                a('s_mov_b64 exec, -1')
            a('s_waitcnt vmcnt(0)')
            scheck()
        self.poll_check(V_F, sre, 's')
        self.ts('sval')
        a(f's_mov_b32 s{S_C0}, 0xfffff000')
        for u in range(2): self.unit_weights(u)
        self.rare_c_units()
        self.tail_consts()
        a('s_waitcnt lgkmcnt(0)')
        a('s_barrier')
        self.ts('B4')

    def unit_loads(self, u):
        a = self.a
        U = V_UN + 4*u
        a(f'v_cmpx_gt_u32 vcc, v{34+u}, v{U}')
        a(f'v_lshrrev_b32 v{V_A}, 5, v{32+u}')
        a(f'v_and_b32 v{36+u}, 0x3fff0, v{V_A}')
        a(f'v_lshlrev_b32 v{V_A}, 1, v{32+u}')
        a(f'v_and_or_b32 v{38+u}, v{V_A}, s{S_U1}, v{V_F}')
        a(f'buffer_load_dwordx4 v[{40+4*u}:{43+4*u}], v{36+u}, s[{S_WS}:{S_WS+3}], s{S_C0} offen sc1')
        a(f'ds_read_b128 v[{48+4*u}:{51+4*u}], v{38+u}')
        a('s_mov_b64 exec, -1')

    def unit_weights(self, u):
        a = self.a
        U = V_UN + 4*u; sv = 40+4*u; dv = 48+4*u; le = 32+u
        a(f'v_cmpx_gt_u32 vcc, v{34+u}, v{U}')
        for h in range(4): a(f'v_and_b32 v{sv+h}, s{S_C0}, v{sv+h}')
        for h in (0, 2): a(f'v_pk_add_f32 v[{sv+h}:{sv+h+1}], v[{sv+h}:{sv+h+1}], v[{dv+h}:{dv+h+1}]')
        for h in range(4): a(f'v_mul_f32 v{dv+h}, 0x3e4ccccd, v{sv+h}')
        for h in range(4): a(f'v_max_f32 v{sv+h}, v{sv+h}, v{dv+h}')
        for h in range(4): a(f'v_exp_f32 v{sv+h}, v{sv+h}')
        a(f'v_bfe_u32 v{V_A}, v{le}, 3, 2')
        a(f'v_lshl_add_u32 v{V_A}, v{V_A}, 6, v{U+3}')
        a(f'v_cvt_pk_bf16_f32 v{dv}, v{sv}, v{sv+1}')
        a(f'v_cvt_pk_bf16_f32 v{dv+1}, v{sv+2}, v{sv+3}')
        a(f'ds_write_b16 v{V_A}, v{dv}')
        a(f'ds_write_b16_d16_hi v{V_A}, v{dv} offset:16')
        a(f'ds_write_b16 v{V_A}, v{dv+1} offset:32')
        a(f'ds_write_b16_d16_hi v{V_A}, v{dv+1} offset:48')
        a('s_mov_b64 exec, -1')

    def rare_c_units(self):
        a = self.a
        rare = a.label('rareC'); back = a.label('rareCb')
        a(f's_cmp_lg_u32 s{S_AOFF}, 0')
        a(f's_cbranch_scc1 {rare}')
        a(f'{back}:')
        def blk():
            a(f'{rare}:')
            a(f's_cmp_gt_u32 s{S_WAVE}, 4')
            a(f's_cbranch_scc1 {back}')
            a(f'v_cmp_gt_u32 vcc, 32, v{V_LANE}')
            a(f's_mov_b64 s[{S_EX2}:{S_EX2+1}], vcc')
            a(f's_lshl_b32 s{S_U0}, s{S_WAVE}, 1')
            a(f's_add_u32 s{S_U1}, s{S_U0}, 1')
            a(f's_mov_b32 s{S_U2}, 96'); a(f's_mov_b32 s{S_U3}, 31')
            self.unit_consts(0, S_U0, S_U1, S_U2, S_U3)
            a(f'ds_read_b32 v34, v{V_UN+1}')
            a(f'ds_read_b32 v32, v{V_UN+2}')
            a(f's_mov_b32 s{S_C0}, {WS_STAB}')
            a(f's_movk_i32 s{S_U1}, 0x3f0')
            a(f'v_mov_b32 v{V_F}, {SDST}')
            a('s_waitcnt lgkmcnt(0)')
            self.unit_loads(0)
            a('s_waitcnt vmcnt(0) lgkmcnt(0)')
            def chk():
                a(f'v_mov_b32 v{V_F}, 0')
                a(f'v_cmpx_gt_u32 vcc, v34, v{V_UN}')
                self.tagcheck(40, V_F, False, V_B, V_C)
                a('s_mov_b64 exec, -1')
                a(f'v_and_b32 v{V_F}, 0xfff, v{V_F}')
                a(f'v_cmp_ne_u32 vcc, 0, v{V_F}')
            lp = a.label('cpoll'); dn = a.label('cdone')
            a(f'{lp}:')
            chk()
            a(f's_cbranch_vccz {dn}')
            a(f's_add_u32 s{S_POLL}, s{S_POLL}, 1')
            a(f's_cmp_gt_u32 s{S_POLL}, {POLL_MAX}')
            a(f's_cbranch_scc1 {dn}')
            a(f'v_cmpx_gt_u32 vcc, v34, v{V_UN}')
            a(f'buffer_load_dwordx4 v[40:43], v36, s[{S_WS}:{S_WS+3}], s{S_C0} offen sc1')
            a('s_mov_b64 exec, -1')
            a('s_waitcnt vmcnt(0)')
            a(f's_branch {lp}')
            a(f'{dn}:')
            a(f's_mov_b32 s{S_C0}, 0xfffff000')
            self.unit_weights(0)
            a(f's_branch {back}')
        self.deferred.append(blk)

    def steptab_read(self):
        a = self.a
        a(f'v_lshlrev_b32 v{V_A}, 2, v{V_LANE}')
        a(f'v_add_u32 v{V_A}, {GCNT}, v{V_A}')
        a(f'v_mov_b32 v{V_B}, {M_SLOW}')
        a(f'ds_read_b32 v84, v{V_A}')
        a(f'ds_read_b32 v85, v{V_B}')

    def steptab(self):
        a = self.a
        a('v_cmp_lt_u32 vcc, 0x80, v84')
        a(f's_and_b32 s{S_T0}, vcc_lo, 0x3ff')
        a(f'v_readfirstlane_b32 s{S_T1}, v85')
        a('v_cmp_lt_u32 vcc, 0x60, v84')
        a(f's_and_b32 s{S_AOFF}, vcc_lo, 0x3ff')
        a(f's_or_b32 s{S_T0}, s{S_T0}, s{S_T1}')
        a(f's_cmp_lg_u32 s{S_T0}, 0')
        a('s_cbranch_scc1 L_slow')
        a(f'v_add_u32 v84, 31, v84')
        a(f'v_lshrrev_b32 v84, 5, v84')
        a(f's_mul_i32 s{S_T2}, s{S_HF}, 5')
        a(f's_mov_b32 s{S_T1}, s{S_T2}')
        N = (S_U0, S_U1, S_U2, S_U3, S_C0)
        for g in range(5):
            a(f'v_readlane_b32 s{N[g]}, v84, s{S_T1}')
            if g < 4: a(f's_add_u32 s{S_T1}, s{S_T1}, 1')
        a(f's_lshl_b32 s{S_T2}, s{S_T2}, 9')
        a(f'v_mov_b32 v{V_TAB}, 5120')
        a(f's_mov_b32 s{S_T0}, 0')
        for g in range(5):
            a(f'v_subrev_u32 v{V_A}, s{S_T0}, v{V_LANE}')
            a(f'v_lshlrev_b32 v{V_A}, 7, v{V_A}')
            a(f'v_cmp_le_u32 vcc, s{S_T0}, v{V_LANE}')
            a(f'v_add_u32 v{V_A}, s{S_T2}, v{V_A}')
            a(f's_add_u32 s{S_T0}, s{S_T0}, s{N[g]}')
            a(f's_add_u32 s{S_T2}, s{S_T2}, 512')
            a(f'v_cndmask_b32 v{V_TAB}, v{V_TAB}, v{V_A}, vcc')
        a(f'v_mov_b32 v{V_A}, 5120')
        a(f'v_cmp_le_u32 vcc, s{S_T0}, v{V_LANE}')
        a(f's_mov_b32 s{S_TOT}, s{S_T0}')
        a(f's_lshl_b32 s{S_NPK}, s{N[4]}, 4')
        for g in (3, 2, 1, 0):
            a(f's_or_b32 s{S_NPK}, s{S_NPK}, s{N[g]}')
            if g: a(f's_lshl_b32 s{S_NPK}, s{S_NPK}, 4')
        a(f'v_cndmask_b32 v{V_TAB}, v{V_TAB}, v{V_A}, vcc')

    def idx_read(self):
        a = self.a
        a(f'v_readlane_b32 s{S_T0}, v{V_TAB}, s{S_J}')
        a(f's_add_u32 s{S_J}, s{S_J}, 1')
        a('s_nop 0')
        a(f'v_add_u32 v{V_G}, s{S_T0}, v{V_LST}')
        a(f'ds_read_b128 v[{V_IDX}:{V_IDX+3}], v{V_G}')

    def xprologue(self):
        a = self.a
        T = 92
        a('s_nop 0')
        for j in range(R):
            a(f'v_readlane_b32 s{S_T0}, v{V_TAB}, {j}')
            a('s_nop 1')
            a(f'v_add_u32 v{V_G}, s{S_T0}, v{V_LST}')
            a(f'ds_read_b128 v[{T+4*j}:{T+4*j+3}], v{V_G}')
        a(f's_mov_b32 s{S_J}, {R}')
        a(f's_mov_b32 s{S_SLOT}, 0')
        a('s_waitcnt lgkmcnt(0)')
        for j in range(R):
            a(f's_add_u32 m0, s{S_RING}, {j*4096}')
            for c in range(4):
                sw = V_SWE if c % 2 == 0 else V_SWO
                a(f'v_and_or_b32 v{T+4*j+c}, v{T+4*j+c}, s{S_M}, v{sw}')
            for c in range(4):
                a(f'buffer_load_dwordx4 v{T+4*j+c}, s[{S_X}:{S_X+3}], s{S_XSO+c} offen offset:{c*1024} lds')
        self.idx_read()

    def sweep(self, base, shift, dst=255, tmp=254):
        a = self.a
        a(f's_lshr_b32 s{S_T0}, s2, 3')
        a(f's_lshl_b32 s{S_T0}, s{S_T0}, 3')
        a(f's_add_u32 s{S_T0}, s{S_T0}, s{S_WAVE}')
        a(f's_lshl_b32 s{S_T0}, s{S_T0}, {shift}')
        a(f's_add_u32 s{S_T0}, s{S_T0}, {WS_WSW + base}')
        a(f'v_lshlrev_b32 v{tmp}, 7, v{V_LANE}')
        a(f'v_cmpx_gt_u32 vcc, {(1 << shift) >> 7}, v{V_LANE}')
        a(f'buffer_load_dword v{dst}, v{tmp}, s[{S_WS}:{S_WS+3}], s{S_T0} offen sc1')
        a('s_mov_b64 exec, -1')

    def wflag_load(self, dst):
        a = self.a
        a(f's_lshl_b32 s{S_T1}, s{S_WAVE}, 10')
        a(f's_add_u32 s{S_T1}, s{S_T1}, {WS_WFLG}')
        a(f'buffer_load_dwordx4 v[{dst}:{dst+3}], v{V_WE}, s[{S_WS}:{S_WS+3}], s{S_T1} offen sc1')

    def wload(self, t):
        a = self.a
        dst = V_W + 16*(t % NPRE)
        a(f's_add_u32 s{S_T1}, s{S_WB}, {t*4096}')
        for j in range(4):
            a(f'buffer_load_dwordx4 v[{dst+4*j}:{dst+4*j+3}], v{V_WE}, s[{S_WS}:{S_WS+3}], s{S_T1} offen offset:{j*1024} {self.o.get("wfl", "sc1")}')

    def group_end_math(self):
        a = self.a
        for h in range(4): a(f'v_fmaak_f32 v{V_DEN+h}, 4.0, v{V_DEN+h}, 0x3189705f')
        for h in range(4): a(f'v_rcp_f32 v{V_DEN+h}, v{V_DEN+h}')
        a('s_nop 0')
        for j in range(4):
            for h in (0, 2):
                r = V_ACC + 4*j + h
                a(f'v_pk_mul_f32 v[{r}:{r+1}], v[{r}:{r+1}], v[{V_DEN+h}:{V_DEN+h+1}]')
        if self.o.get('cvtidx', 1):
            a(f's_set_gpr_idx_on s{S_T0}, gpr_idx(DST)')
            a('s_nop 0')
            for j in range(4):
                for h in (0, 2):
                    r = V_ACC + 4*j + h
                    a(f'v_cvt_pk_bf16_f32 v{V_PK + 2*j + h//2}, v{r}, v{r+1}')
            a('s_set_gpr_idx_off')
        else:
            for j in range(4):
                for h in (0, 2):
                    r = V_ACC + 4*j + h
                    a(f'v_cvt_pk_bf16_f32 v{92 + 2*j + h//2}, v{r}, v{r+1}')
            a(f's_set_gpr_idx_on s{S_T0}, gpr_idx(DST)')
            a('s_nop 0')
            for k in range(8): a(f'v_mov_b32 v{V_PK+k}, v{92+k}')
            a('s_set_gpr_idx_off')
        for i in range(0, 20, 2): a(f'v_mov_b64 v[{V_ACC+i}:{V_ACC+i+1}], 0')

    def aggregate(self):
        a = self.a; o = self.o
        for i in range(0, 20, 2): a(f'v_mov_b64 v[{V_ACC+i}:{V_ACC+i+1}], 0')
        for i in range(4): a(f'v_mov_b32 v{V_ONE+i}, 0x3f803f80')
        if o.get('aprio'):
            sk = a.label('aprio')
            a(f's_cmp_eq_u32 s{S_SET}, 0')
            a(f's_cbranch_scc1 {sk}')
            a(f's_setprio {o["aprio"]}')
            a(f'{sk}:')
            if o.get('lprio'):
                sk = a.label('lprio')
                a(f's_cmp_eq_u32 s{S_SET}, 1')
                a(f's_cbranch_scc1 {sk}')
                a(f's_setprio {o["lprio"]}')
                a(f'{sk}:')
        a(f's_movk_i32 s{S_C2}, 0x1000')
        a(f's_mov_b32 s{S_G}, 0')
        a(f's_mov_b32 s{S_JC}, 0')
        def addr():
            a(f'v_readlane_b32 s{S_T1}, v{V_TAB}, s{S_JC}')
            a(f's_add_u32 s{S_JC}, s{S_JC}, 1')
            a(f's_lshl_b32 s{S_T1}, s{S_T1}, 3')
            a(f'v_add_u32 v{V_TW}, s{S_T1}, v{V_AW}')
        def reads():
            a(f'ds_read_b128 v[{V_AF}:{V_AF+3}], v{V_TW}')
            for j in range(4):
                a(f'ds_read_b64_tr_b16 v[{V_BF+4*j}:{V_BF+4*j+1}], v{V_TR+j}')
                a(f'ds_read_b64_tr_b16 v[{V_BF+4*j+2}:{V_BF+4*j+3}], v{V_TR+j} offset:512')
        def rowwait():
            a(f's_waitcnt vmcnt({4*(R-1)})')
        a(f's_and_b32 s{S_LEFT}, s{S_NPK}, 15')
        a(f's_lshr_b32 s{S_NPK}, s{S_NPK}, 4')
        addr()
        rowwait()
        reads()
        Lt = a.label('agg_top'); Le = a.label('agg_ge'); Ld = a.label('agg_done'); Ltail = a.label('agg_tail'); Lc = a.label('agg_ctl')
        a(f's_cmp_eq_u32 s{S_LEFT}, 0')
        a(f's_cbranch_scc1 {Le}')
        sw = lambda c: V_SWE if c % 2 == 0 else V_SWO
        mf = lambda d, b: a(f'v_mfma_f32_16x16x32_bf16 v[{d}:{d+3}], v[{V_AF}:{V_AF+3}], v[{b}:{b+3}], v[{d}:{d+3}]')
        dma = lambda c: a(f'buffer_load_dwordx4 v{V_IDX+c}, s[{S_X}:{S_X+3}], s{S_XSO+c} offen offset:{c*1024} lds')
        def advance():
            a(f's_add_u32 s{S_SLOT}, s{S_SLOT}, 4096')
            a(f's_cmp_eq_u32 s{S_SLOT}, {R*4096}')
            a(f's_cselect_b32 s{S_SLOT}, 0, s{S_SLOT}')
            a(f's_cselect_b32 s{S_DELTA}, s{S_C3}, s{S_C2}')
            addr()
            for j in range(4): a(f'v_add_u32 v{V_TR+j}, s{S_DELTA}, v{V_TR+j}')
        a(f'{Lt}:')
        a(f's_cmp_gt_u32 s{S_J}, s{S_TOT}')
        a(f's_cbranch_scc1 {Ltail}')
        a('s_waitcnt lgkmcnt(0)')
        mf(V_DEN, V_ONE)
        for c in range(4): a(f'v_and_or_b32 v{V_IDX+c}, v{V_IDX+c}, s{S_M}, v{sw(c)}')
        a(f's_add_u32 m0, s{S_RING}, s{S_SLOT}')
        mf(V_ACC, V_BF)
        dma(0)
        mf(V_ACC+4, V_BF+4)
        dma(1)
        mf(V_ACC+8, V_BF+8)
        dma(2)
        mf(V_ACC+12, V_BF+12)
        dma(3)
        a(f'v_readlane_b32 s{S_T0}, v{V_TAB}, s{S_J}')
        advance()
        a(f's_add_u32 s{S_J}, s{S_J}, 1')
        a(f'v_add_u32 v{V_G}, s{S_T0}, v{V_LST}')
        rowwait()
        reads()
        a(f'ds_read_b128 v[{V_IDX}:{V_IDX+3}], v{V_G}')
        a(f'{Lc}:')
        a(f's_sub_u32 s{S_LEFT}, s{S_LEFT}, 1')
        a(f's_cmp_lg_u32 s{S_LEFT}, 0')
        a(f's_cbranch_scc1 {Lt}')
        a(f'{Le}:')
        a(f's_lshl_b32 s{S_T0}, s{S_G}, 3')
        a(f's_add_u32 s{S_G}, s{S_G}, 1')
        self.group_end_math()
        a(f's_cmp_eq_u32 s{S_G}, 5')
        a(f's_cbranch_scc1 {Ld}')
        a(f's_and_b32 s{S_LEFT}, s{S_NPK}, 15')
        a(f's_lshr_b32 s{S_NPK}, s{S_NPK}, 4')
        a(f's_cmp_lg_u32 s{S_LEFT}, 0')
        a(f's_cbranch_scc1 {Lt}')
        a(f's_branch {Le}')
        a(f'{Ltail}:')
        a('s_waitcnt lgkmcnt(0)')
        mf(V_DEN, V_ONE)
        for j in range(4): mf(V_ACC+4*j, V_BF+4*j)
        advance()
        a('s_waitcnt vmcnt(0)')
        reads()
        a(f's_branch {Lc}')
        a(f'{Ld}:')

    def tail_consts(self):
        a = self.a
        a(f'v_and_b32 v{V_C}, 15, v{V_LANE}')
        a(f'v_lshrrev_b32 v92, 4, v{V_LANE}')
        a(f'v_bfe_u32 v{V_D}, v{V_C}, 1, 2')
        a(f'v_lshrrev_b32 v{V_E}, 3, v{V_C}')
        a(f'v_lshl_add_u32 v93, v{V_E}, 2, v{V_D}')
        a(f'v_and_b32 v{V_G}, 1, v{V_C}')
        a(f'v_lshlrev_b32 v{V_G}, 3, v{V_G}')
        a(f's_mul_i32 s{S_T0}, s{S_SET}, {4*RINGW}')
        a(f's_and_b32 s{S_T1}, s{S_SLICE}, 1')
        a(f's_lshl_b32 s{S_T2}, s{S_T1}, 13')
        a(f's_add_u32 s{S_T2}, s{S_T2}, s{S_T0}')
        a(f's_lshl_b32 s{S_T1}, s{S_T1}, 12')
        a(f's_add_u32 s{S_T1}, s{S_T1}, s{S_T0}')
        a(f'v_lshl_add_u32 v94, v{V_D}, 8, v{V_G}')
        a(f'v_lshl_add_u32 v94, v{V_E}, 10, v94')
        a(f'v_add_u32 v94, s{S_T2}, v94')
        a(f'v_lshl_add_u32 v95, v{V_D}, 7, v{V_G}')
        a(f'v_lshl_add_u32 v95, v{V_E}, 9, v95')
        a(f'v_add_u32 v95, s{S_T1}, v95')
        a(f'v_lshrrev_b32 v{V_B}, 4, v{V_LANE}')
        for par in range(2):
            a(f'v_add_u32 v{V_TW}, {4*par}, v{V_B}')
            a(f'v_xor_b32 v{V_D}, v{V_C}, v{V_TW}')
            a(f'v_lshlrev_b32 v{V_D}, 4, v{V_D}')
            a(f'v_lshl_add_u32 v{V_D}, v{V_B}, 8, v{V_D}')
            a(f'v_add_u32 v{104+par}, s{S_T0}, v{V_D}')
            a(f'v_and_b32 v{V_D}, 7, v{V_C}')
            a(f'v_xor_b32 v{V_D}, v{V_D}, v{V_TW}')
            a(f'v_lshlrev_b32 v{V_D}, 4, v{V_D}')
            a(f'v_lshl_add_u32 v{V_D}, v{V_B}, 7, v{V_D}')
            a(f'v_add_u32 v{106+par}, s{S_T0}, v{V_D}')

    def agg_write(self):
        a = self.a
        a('L_aggw:')
        if self.o.get('lprio') and self.o.get('gp1', -1) < 0:
            sk = a.label('gp0')
            a(f's_cmp_eq_u32 s{S_SET}, 0')
            a(f's_cbranch_scc1 {sk}')
            a('s_setprio 0')
            a(f'{sk}:')
        a('s_waitcnt vmcnt(0) lgkmcnt(0)')
        self.ts('aggdone')
        self.signal(1)
        self.wload(NA); self.wload(NA+1)
        self.waitfor(1, have=True)
        self.ts('B5')
        end = a.label('aggw_end'); h1 = a.label('aggw_h1')
        a(f's_cmp_eq_u32 s{S_HF}, 1')
        a(f's_cbranch_scc1 {h1}')
        for hf in range(2):
            if hf == 1: a(f'{h1}:')
            for gg in range(5):
                node0 = 20*hf + 4*gg
                mt, mb = node0 >> 4, node0 & 15
                TS = 1024 if mt < 2 else 512
                ad = V_AF + (gg & 1)
                a(f'v_add_u32 v{ad}, {mb}, v92')
                a(f'v_xor_b32 v{ad}, v{ad}, v93')
                a(f'v_lshl_add_u32 v{ad}, v{ad}, 4, v{94 if mt < 2 else 95}')
                for j in range(4):
                    pk = V_PK + 8*gg + 2*j
                    a(f'ds_write_b64 v{ad}, v[{pk}:{pk+1}] offset:{mt*16384 + 2*j*TS}')
            if hf == 0: a(f's_branch {end}')
        a(f'{end}:')
        self.wload(NA+2)
        self.setsync(2)
        self.ts('B6')

    def gemm(self):
        a = self.a
        n = NPRE
        AB = [80, 92]
        def aggread(t):
            buf = AB[t & 1]; par = t & 1
            for mt in range(2):
                a(f'ds_read_b128 v[{buf+4*mt}:{buf+4*mt+3}], v{104+par} offset:{mt*16384 + t*1024}')
            a(f'ds_read_b128 v[{buf+8}:{buf+11}], v{106+par} offset:{32768 + t*512}')
        if self.o.get('gp1', -1) >= 0:
            sk = a.label('gpa'); sk2 = a.label('gpb')
            a(f's_cmp_eq_u32 s{S_SET}, 0')
            a(f's_cbranch_scc1 {sk}')
            a(f's_setprio {self.o["gp1"]}')
            a(f's_branch {sk2}')
            a(f'{sk}:')
            a(f's_setprio {self.o["gp0"]}')
            a(f'{sk2}:')
        if self.o.get('gprio'):
            sk = a.label('gprio')
            a(f's_cmp_eq_u32 s{S_SET}, 0')
            a(f's_cbranch_scc1 {sk}')
            a(f's_setprio {self.o["gprio"]}')
            a(f'{sk}:')
        def aggread_list(t):
            buf = AB[t & 1]; par = t & 1
            return [f'ds_read_b128 v[{buf+4*mt}:{buf+4*mt+3}], v{104+par} offset:{mt*16384 + t*1024}' for mt in range(2)] + \
                   [f'ds_read_b128 v[{buf+8}:{buf+11}], v{106+par} offset:{32768 + t*512}']
        def wload_list(t):
            dst = V_W + 16*(t % n)
            return [f's_add_u32 s{S_T1}, s{S_WB}, {t*4096}'] + \
                   [f'buffer_load_dwordx4 v[{dst+4*j}:{dst+4*j+3}], v{V_WE}, s[{S_WS}:{S_WS+3}], s{S_T1} offen offset:{j*1024} {self.o.get("wfl", "sc1")}' for j in range(4)]
        zc = self.o.get('zcol', 0)
        if zc:
            for r in (AB[0]+8, AB[1]+8):
                for k in range(4): a(f'v_mov_b32 v{r+k}, 0')
            a(f's_mov_b32 s{S_EX2}, 0x00ff00ff')
            a(f's_mov_b32 s{S_EX2+1}, 0x00ff00ff')
        def masked(lst):
            if not zc: return lst
            return lst[:2] + [f's_mov_b64 exec, s[{S_EX2}:{S_EX2+1}]\n' + lst[2] + '\ns_mov_b64 exec, -1']
        for x in masked(aggread_list(0)): a(x)
        for t in range(16):
            waits = []
            if t >= NA and not self.o.get('nowb'): waits.append(f'vmcnt({4*(min(15, NA+2+t) - t)})')
            waits.append('lgkmcnt(0)')
            a('s_waitcnt ' + ' '.join(waits))
            fill = []
            if t + 1 < 16: fill += masked(aggread_list(t+1))
            if NA + 3 + t < 16 and not self.o.get('nowb'): fill += wload_list(NA + 3 + t)
            w = V_W + 16*(t % n); b = AB[t & 1]
            k = 0
            for mt in range(3):
                for j in range(4):
                    acc = V_ACC + 16*mt + 4*j
                    c = '0' if t == 0 else f'v[{acc}:{acc+3}]'
                    a(f'v_mfma_f32_16x16x32_bf16 v[{acc}:{acc+3}], v[{w+4*j}:{w+4*j+3}], v[{b+4*mt}:{b+4*mt+3}], {c}')
                    if k < len(fill): a(fill[k]); k += 1
            if t in (3, 7, 11): self.ts(f'g{t}')
        self.ts('gemm1')

    def finish(self):
        a = self.a
        P = V_W
        a(f's_mul_i32 s{S_T0}, s{S_W3}, {RINGW}')
        a(f's_add_u32 s{S_T0}, s{S_T0}, {4*RINGW}')
        a(f'v_add_u32 v{V_D}, s{S_T0}, v{V_WE}')
        s0 = a.label('fin0')
        a(f's_cmp_eq_u32 s{S_SET}, 0')
        a(f's_cbranch_scc1 {s0}')
        a('s_setprio 0')
        self.setsync(3)
        for i in range(12):
            a(f'ds_write_b128 v{V_D}, v[{V_ACC+4*i}:{V_ACC+4*i+3}] offset:{1024*i}')
        self.signal(4)
        a('s_branch L_fin')
        a(f'{s0}:')
        a(f'v_and_b32 v{V_A}, 15, v{V_LANE}')
        a(f'v_lshrrev_b32 v{V_B}, 4, v{V_LANE}')
        a(f'v_and_b32 v{V_C}, 1, v{V_B}')
        a(f'v_lshrrev_b32 v{V_G}, 1, v{V_B}')
        a(f'v_lshlrev_b32 v{V_C}, 5, v{V_C}')
        a(f'v_lshl_add_u32 v{V_C}, v{V_G}, 4, v{V_C}')
        a(f'v_lshl_add_u32 v{V_C}, v{V_A}, 9, v{V_C}')
        a(f's_mul_i32 s{S_T0}, s2, {40*512}')
        a(f's_lshl_b32 s{S_T1}, s{S_W3}, 7')
        a(f's_add_u32 s{S_T0}, s{S_T0}, s{S_T1}')
        a(f'v_cmp_gt_u32 s[{S_EX2}:{S_EX2+1}], 8, v{V_A}')
        self.waitfor(4, own=False)
        for i in range(12):
            a(f'ds_read_b128 v[{P+4*i}:{P+4*i+3}], v{V_D} offset:{1024*i}')
        fl = self.o.get('fline', 0)
        if fl:
            a(f'v_and_b32 v{V_G}, 0x3f, v{V_C}')
            a(f'v_mul_u32_u24 v{V_B}, 144, v{V_A}')
            a(f'v_add_u32 v{V_B}, v{V_B}, v{V_G}')
            a(f's_mul_i32 s{S_T1}, s{S_W3}, {RINGW}')
            a(f's_add_u32 s{S_T1}, s{S_T1}, {4*RINGW}')
            a(f'v_add_u32 v{V_B}, s{S_T1}, v{V_B}')
            a(f'v_lshrrev_b32 v{V_G}, 3, v{V_LANE}')
            a(f'v_and_b32 v{V_E}, 7, v{V_LANE}')
            a(f'v_mul_u32_u24 v{V_F}, 144, v{V_G}')
            a(f'v_lshl_add_u32 v{V_F}, v{V_E}, 4, v{V_F}')
            a(f'v_add_u32 v{V_F}, s{S_T1}, v{V_F}')
            a(f'v_lshlrev_b32 v{V_G}, 9, v{V_G}')
            a(f'v_lshl_add_u32 v{V_G}, v{V_E}, 4, v{V_G}')
        for mt in range(3):
            a(f's_waitcnt lgkmcnt({8-4*mt})') if not fl or mt == 0 else None
            if fl and mt == 0: a('s_waitcnt lgkmcnt(0)')
            for j in range(4):
                acc = V_ACC + 16*mt + 4*j; p = P + 16*mt + 4*j
                for h in (0, 2):
                    a(f'v_pk_add_f32 v[{acc+h}:{acc+h+1}], v[{acc+h}:{acc+h+1}], v[{p+h}:{p+h+1}]')
            for jp in range(2):
                R0 = P + 16*mt + 4*jp
                for jj in range(2):
                    acc = V_ACC + 16*mt + 4*(2*jp+jj)
                    a(f'v_cvt_pk_bf16_f32 v{R0+2*jj}, v{acc}, v{acc+1}')
                    a(f'v_cvt_pk_bf16_f32 v{R0+2*jj+1}, v{acc+2}, v{acc+3}')
            a(f's_add_u32 s{S_T1}, s{S_T0}, {mt*16*512}')
            a('s_nop 0')
            for jp in range(2):
                R0 = P + 16*mt + 4*jp
                a(f'v_permlane16_swap_b32 v{R0}, v{R0+2}')
                a(f'v_permlane16_swap_b32 v{R0+1}, v{R0+3}')
            if fl:
                for jp in range(2):
                    R0 = P + 16*mt + 4*jp
                    a(f'ds_write_b128 v{V_B}, v[{R0}:{R0+3}] offset:{mt*16*144 + 64*jp}')
                continue
            if mt == 2: a(f's_mov_b64 exec, s[{S_EX2}:{S_EX2+1}]')
            for jp in range(2):
                R0 = P + 16*mt + 4*jp
                a(f'buffer_store_dwordx4 v[{R0}:{R0+3}], v{V_C}, s[{S_OUT}:{S_OUT+3}], s{S_T1} offen offset:{64*jp} {self.o.get("ofl", "")}')
        if fl:
            a('s_waitcnt lgkmcnt(0)')
            for i in range(5):
                a(f'ds_read_b128 v[{V_ACC+4*i}:{V_ACC+4*i+3}], v{V_F} offset:{i*8*144}')
            for i in range(5):
                a(f's_add_u32 s{S_T1}, s{S_T0}, {i*8*512}')
                a(f's_waitcnt lgkmcnt({4-i})')
                a(f'buffer_store_dwordx4 v[{V_ACC+4*i}:{V_ACC+4*i+3}], v{V_G}, s[{S_OUT}:{S_OUT+3}], s{S_T1} offen {self.o.get("ofl", "")}')
        a('L_fin:')
        a('s_mov_b64 exec, -1')
        self.ts('end')
        if self.o.get('ts') == 1:
            a(f's_lshl_b32 s{S_T0}, s2, 3')
            a(f's_add_u32 s{S_T0}, s{S_T0}, s{S_WAVE}')
            a(f's_lshl_b32 s{S_T0}, s{S_T0}, 7')
            a(f's_add_u32 s{S_T0}, s{S_T0}, {WS_TS}')
            a(f'v_writelane_b32 v{V_TSR}, s{S_POLL}, 31')
            a(f'v_lshlrev_b32 v{V_A}, 2, v{V_LANE}')
            a(f'v_cmpx_gt_u32 vcc, 32, v{V_LANE}')
            a(f'buffer_store_dword v{V_TSR}, v{V_A}, s[{S_WS}:{S_WS+3}], s{S_T0} offen')
            a('s_mov_b64 exec, -1')

    def slow_path(self):
        from slowpath import emit_slow
        emit_slow(self)

    def build(self):
        a = self.a; o = self.o
        a(f'; @launch grid=({NB},1,1) block=(512,1,1) lds={LDS_SIZE}')
        a('.amdgcn_target "amdgcn-amd-amdhsa--gfx950"')
        a('.text')
        a(f'.globl {KNAME}')
        a('.p2align 8')
        a(f'.type {KNAME},@function')
        a(f'{KNAME}:')
        self.prologue()
        self.issue_loads()
        self.ts('issue')
        self.srd(S_DBG, S_KA+14, 256)
        a('s_barrier')
        self.ts('B0')
        self.late_consts()
        sk = a.label('nop0')
        a(f's_cmp_lg_u32 s{S_WAVE}, 0')
        a(f's_cbranch_scc1 {sk}')
        a(f'buffer_load_dwordx2 v[38:39], off, s[{S_DBG}:{S_DBG+3}], 0 sc1')
        a(f'{sk}:')
        a(f's_cmp_eq_u32 s{S_SET}, 1')
        a('s_cbranch_scc1 L_set1')
        self.t1_set0()
        a('s_branch L_mid')
        a('L_set1:')
        self.t1_set1()
        a('L_mid:')
        self.middle()
        self.aggregate()
        self.agg_write()
        self.gemm()
        self.finish()
        a('s_branch L_end')
        for fn in list(self.deferred): fn()
        a('L_hot_end:')
        n0 = len(self.deferred)
        self.slow_path()
        for fn in self.deferred[n0:]: fn()
        a('L_end:')
        if not o.get('noendwait'): a('s_waitcnt vmcnt(0)')
        a('s_endpgm')
        a('.section .rodata,"a"')
        a('.p2align 6')
        a(f'.amdhsa_kernel {KNAME}')
        a('  .amdhsa_next_free_vgpr 256')
        a('  .amdhsa_next_free_sgpr 102')
        a('  .amdhsa_accum_offset 256')
        a('  .amdhsa_group_segment_fixed_size 0')
        a('  .amdhsa_kernarg_size 72')
        a('  .amdhsa_user_sgpr_count 2')
        a('  .amdhsa_user_sgpr_kernarg_segment_ptr 1')
        a('  .amdhsa_system_sgpr_workgroup_id_x 1')
        a('  .amdhsa_float_denorm_mode_32 3')
        a('  .amdhsa_float_denorm_mode_16_64 3')
        a('.end_amdhsa_kernel')
        return a


def generate(path, **opt):
    global NA
    NA = opt.get('na', 2)
    g = Gen(opt)
    a = g.build()
    probs = check(a.lines)
    open(path, 'w').write(a.text())
    json.dump(g.tsn, open(path + '.ts.json', 'w'))
    return probs

if __name__ == '__main__':
    ap = argparse.ArgumentParser()
    ap.add_argument('out')
    for name, dflt in (('ts', 0), ('cpf', 1), ('sweep', 1), ('edelay', 0), ('prio', 0), ('cvtidx', 1), ('sweep2', 1), ('gprio', 0), ('na', 2), ('nowb', 0), ('aprio', 0), ('touch', 0), ('tw', 7), ('lprio', 0), ('gp1', -1), ('gp0', 0), ('cpfw', 0), ('slowdbg', 0), ('zcol', 0), ('noendwait', 0), ('fline', 0)):
        ap.add_argument('--' + name, type=int, default=dflt)
    ap.add_argument('--tsf', default='')
    ap.add_argument('--wfl', default='sc1')
    ap.add_argument('--ofl', default='')
    args = ap.parse_args()
    o = vars(args); out = o.pop('out')
    if o['wfl'] == 'plain': o['wfl'] = ''
    o['ofl'] = o['ofl'].replace('_', ' ')
    p = generate(out, **o)
    print('hazards:', len(p))
```

```python
import sys, argparse, json
from asmcore import Asm, check

KNAME = 'gather_scatter__graph_attention_gat__graph_kernel'
NB = 250
WS_TABLE = 0
WS_UTAB = 0x400000
WS_STAB = 0x410000
WS_WFLG = 0x440000
WS_WSW = 0x480000
WS_TS = 0x500000
WS_SIZE = 0x600000
RINGW = 12288
R = 3
NPRE = 8
NA = 2
NBB = 0
IMG = 4*RINGW
CNT = IMG + 16384
AP = 8*RINGW
XCH = AP
SDST = AP + 40960
GCNT = SDST + 1024
UT = SDST + 2048
MISC = GCNT + 64
LIST = AP + 49152
LDS_SIZE = LIST + 5248
assert LIST % 8192 == 0 and SDST % 1024 == 0 and GCNT % 64 == 0 and LDS_SIZE <= 163840
M_NONCE = MISC
M_SLOW = MISC + 8
M_SCNT = MISC + 12
M_SYNC = MISC + 16
S_X, S_W, S_WS, S_SRC, S_DST, S_DBG, S_OUT = 4, 8, 12, 16, 20, 32, 36
S_WB = 3
S_TOT = 24
S_FIRST = 24
S_RET = 26
S_SYO, S_SYX = 28, 29
S_WAVE, S_SET, S_W3, S_HF = 40, 41, 42, 43
S_T = 44
S_SLICE, S_NPK = 48, 49
S_XSO = 52
S_RING, S_SLOT, S_J, S_DELTA = 56, 57, 58, 59
S_N = 60
S_G, S_LEFT, S_JC, S_AOFF = 60, 61, 62, 63
S_T0, S_T1, S_T2 = 65, 66, 67
S_EX, S_EX2 = 68, 70
S_KA = 72
S_TS = 90
S_C0, S_C1, S_C2, S_C3 = 92, 93, 94, 95
S_POLL, S_M = 96, 97
S_U0, S_U1, S_U2, S_U3 = 98, 99, 100, 101
V_TID, V_LANE = 0, 1
V_TR = 2
V_AW, V_LB, V_LST = 6, 7, 8
V_SWE, V_SWO = 9, 10
V_TAB = 11
V_IDX = 12
V_AF = 16
V_MF = 20
V_A, V_B, V_C, V_D, V_E, V_F, V_G = 24, 25, 26, 27, 28, 29, 30
V_ONE = 24
V_TSR = 31
V_ACC = 32
V_DEN = 48
V_PK = 52
V_TW, V_WE = 100, 23
V_UN = 104
V_W = 112
V_BF = 240

POLL_MAX = 200000
EMPTY = 0xfffff000


class Gen:
    def __init__(self, opt):
        self.o = opt
        self.a = Asm()
        self.tsn = {}
        self.deferred = []

    def ts(self, name):
        if not self.o.get('ts'): return
        tsf = self.o.get('tsf')
        if tsf and name != 'start' and name not in tsf.split(','): return
        a = self.a
        if name not in self.tsn: self.tsn[name] = len(self.tsn)
        idx = self.tsn[name]
        assert idx < 28
        a(f's_memrealtime s[{S_TS}:{S_TS+1}]')
        a('s_waitcnt lgkmcnt(0)')
        a(f'v_writelane_b32 v{V_TSR}, s{S_TS}, {idx}')

    def srd(self, r, base, size, shift=0):
        a = self.a
        if shift:
            a(f's_sub_u32 s{r}, s{base}, {shift}')
            a(f's_subb_u32 s{r+1}, s{base+1}, 0')
            a(f's_and_b32 s{r+1}, s{r+1}, 0xffff')
        else:
            a(f's_mov_b32 s{r}, s{base}')
            a(f's_and_b32 s{r+1}, s{base+1}, 0xffff')
        a(f's_mov_b32 s{r+2}, {size}')
        a(f's_mov_b32 s{r+3}, 0x20000')

    def tagcheck(self, base, acc, first, t0, t1):
        a = self.a
        if first:
            a(f'v_xor_b32 v{acc}, s{S_T}, v{base}')
            a(f'v_xor_b32 v{t0}, s{S_T+1}, v{base+1}')
            a(f'v_xor_b32 v{t1}, s{S_T+2}, v{base+2}')
            a(f'v_or3_b32 v{acc}, v{acc}, v{t0}, v{t1}')
            a(f'v_xor_b32 v{t0}, s{S_T+3}, v{base+3}')
            a(f'v_or_b32 v{acc}, v{acc}, v{t0}')
        else:
            a(f'v_xor_b32 v{t0}, s{S_T}, v{base}')
            a(f'v_xor_b32 v{t1}, s{S_T+1}, v{base+1}')
            a(f'v_or3_b32 v{acc}, v{acc}, v{t0}, v{t1}')
            a(f'v_xor_b32 v{t0}, s{S_T+2}, v{base+2}')
            a(f'v_xor_b32 v{t1}, s{S_T+3}, v{base+3}')
            a(f'v_or3_b32 v{acc}, v{acc}, v{t0}, v{t1}')

    def poll_check(self, acc, reload_fn, name):
        a = self.a
        rt = a.label(name + '_retry'); ok = a.label(name + '_ok')
        a(f'v_and_b32 v{acc}, 0xfff, v{acc}')
        a(f'v_cmp_ne_u32 vcc, 0, v{acc}')
        a(f's_cbranch_vccnz {rt}')
        a(f'{ok}:')
        def blk():
            a(f'{rt}:')
            a(f's_add_u32 s{S_POLL}, s{S_POLL}, 1')
            a(f's_cmp_gt_u32 s{S_POLL}, {POLL_MAX}')
            a(f's_cbranch_scc1 {ok}')
            a('s_sleep 2')
            reload_fn()
            a(f'v_and_b32 v{acc}, 0xfff, v{acc}')
            a(f'v_cmp_ne_u32 vcc, 0, v{acc}')
            a(f's_cbranch_vccnz {rt}')
            a(f's_branch {ok}')
        self.deferred.append(blk)

    def signal(self, k, own=True):
        a = self.a
        a(f'v_mov_b32 v{V_E}, s{S_SYO if own else S_SYX}')
        a(f'v_mov_b32 v{V_F}, 1')
        a('s_waitcnt lgkmcnt(0)')
        a('s_mov_b64 exec, 1')
        a(f'ds_add_u32 v{V_E}, v{V_F} offset:{4*k}')
        a('s_mov_b64 exec, -1')

    def waitfor(self, k, own=True, n=4, have=False):
        a = self.a
        if not have: a(f'v_mov_b32 v{V_E}, s{S_SYO if own else S_SYX}')
        lp = a.label('sync'); dn = a.label('syncd')
        a(f'{lp}:')
        a(f'ds_read_b32 v{V_F}, v{V_E} offset:{4*k}')
        a('s_waitcnt lgkmcnt(0)')
        a(f'v_cmp_gt_u32 vcc, {n}, v{V_F}')
        a(f's_cbranch_vccz {dn}')
        a(f's_add_u32 s{S_POLL}, s{S_POLL}, 1')
        a(f's_cmp_lt_u32 s{S_POLL}, {POLL_MAX*8}')
        a(f's_cbranch_scc1 {lp}')
        a(f'{dn}:')

    def setsync(self, k):
        self.signal(k); self.waitfor(k, have=True)

    def fill(self, base, nbytes, vq, vaddr):
        a = self.a
        n = nbytes // 16
        a(f'v_lshlrev_b32 v{vaddr}, 4, v{V_TID}')
        a(f'v_add_u32 v{vaddr}, {base}, v{vaddr}')
        r = 0
        while n > 0:
            if n >= 512:
                a(f'ds_write_b128 v{vaddr}, v[{vq}:{vq+3}] offset:{r*8192}')
            else:
                a(f'v_cmpx_gt_u32 vcc, {n}, v{V_TID}')
                a(f'ds_write_b128 v{vaddr}, v[{vq}:{vq+3}] offset:{r*8192}')
                a('s_mov_b64 exec, -1')
            n -= 512; r += 1

    def prologue(self):
        a = self.a; o = self.o
        a(f's_cmp_ge_u32 s2, {NB}')
        a('s_cbranch_scc1 L_end')
        a(f's_load_dwordx16 s[{S_KA}:{S_KA+15}], s[0:1], 0')
        a(f's_load_dwordx2 s[{S_KA+16}:{S_KA+17}], s[0:1], 64')
        if o.get('cpf', 1):
            a(f's_getpc_b64 s[{S_U0}:{S_U0+1}]')
            a('L_pc:')
            a('v_lshlrev_b32 v254, 6, v0')
            a('v_min_u32 v254, L_hot_end-L_pc, v254')
            a(f'global_load_dword v255, v254, s[{S_U0}:{S_U0+1}]')
            if o.get('cpfw') == 1: a('s_waitcnt vmcnt(0)')
        a('s_memrealtime s[50:51]')
        a(f'v_lshrrev_b32 v{V_A}, 6, v0')
        a(f'v_and_b32 v{V_LANE}, 63, v0')
        if o.get('ts'): a(f'v_mov_b32 v{V_TSR}, 0')
        a(f'v_readfirstlane_b32 s{S_WAVE}, v{V_A}')
        for i in range(4): a(f'v_mov_b32 v{104+i}, {EMPTY}')
        a(f'v_lshlrev_b32 v103, 4, v{V_TID}')
        a(f'v_add_u32 v103, {IMG}, v103')
        a('ds_write_b128 v103, v[104:107]')
        a('ds_write_b128 v103, v[104:107] offset:8192')
        for i in range(4): a(f'v_mov_b32 v{108+i}, 0')
        a(f'v_cmpx_gt_u32 vcc, 64, v{V_TID}')
        a('ds_write_b128 v103, v[108:111] offset:16384')
        a('s_mov_b64 exec, -1')
        a(f's_lshr_b32 s{S_SET}, s{S_WAVE}, 2')
        a(f's_and_b32 s{S_W3}, s{S_WAVE}, 3')
        a(f's_mov_b32 s{S_POLL}, 0')
        a(f'v_and_b32 v{V_C}, 15, v{V_LANE}')
        a(f'v_lshrrev_b32 v{V_E}, 4, v{V_LANE}')
        a(f'v_lshlrev_b32 v{V_E}, 4, v{V_E}')
        a(f'v_lshl_add_u32 v{V_F}, v{V_C}, 9, v{V_E}')
        a(f'v_and_b32 v{V_C}, 1, v{V_LANE}')
        a(f'v_cmp_eq_u32 vcc, 1, v{V_C}')
        a(f'v_lshlrev_b32 v{V_A}, 3, v{V_TID}')
        a(f'v_lshlrev_b32 v{V_B}, 2, v{V_TID}')
        a('s_waitcnt lgkmcnt(0)')
        if o.get('cpfw') == 2: a('s_waitcnt vmcnt(0)')
        self.ts('start')

    def tlb_touch(self):
        a = self.a; o = self.o
        k = S_KA
        sk = a.label('notouch')
        a(f's_cmp_lg_u32 s{S_WAVE}, {o.get("tw", 7)}')
        a(f's_cbranch_scc1 {sk}')
        if o['touch'] == 1:
            a(f's_lshr_b32 s{S_T0}, s2, 3')
            a(f's_cmp_lg_u32 s{S_T0}, 30')
            a(f's_cbranch_scc1 {sk}')
        pages = [(0, 0), (0, 1), (0, 2), (2, 0), (4, 0), (6, 0), (8, 0), (10, 0), (12, 0), (12, 1), (12, 2), (14, 0), (16, 0), (16, 1), (16, 2)]
        a(f'v_mov_b32 v250, s{k}')
        a(f'v_mov_b32 v251, s{k+1}')
        for l, (p, n) in enumerate(pages):
            if l == 0: continue
            if n:
                a(f's_add_u32 s{S_T0}, s{k+p}, {n*0x200000}')
                a(f's_addc_u32 s{S_T1}, s{k+p+1}, 0')
                a(f'v_writelane_b32 v250, s{S_T0}, {l}')
                a(f'v_writelane_b32 v251, s{S_T1}, {l}')
            else:
                a(f'v_writelane_b32 v250, s{k+p}, {l}')
                a(f'v_writelane_b32 v251, s{k+p+1}, {l}')
        a(f's_mov_b64 exec, {(1 << len(pages)) - 1}')
        a('global_load_dword v252, v[250:251], off')
        a('s_mov_b64 exec, -1')
        a(f'{sk}:')

    def issue_loads(self):
        a = self.a
        if self.o.get('touch'): self.tlb_touch()
        s1 = a.label('iss1'); dn = a.label('issdone')
        k = S_KA
        a(f's_cmp_eq_u32 s{S_SET}, 1')
        a(f's_cbranch_scc1 {s1}')
        self.srd(S_DST, k+4, 640000)
        self.srd(S_SRC, k+2, 640000)
        a(f's_mul_i32 s{S_T0}, s2, 2560')
        a(f'buffer_load_dwordx2 v[32:33], v{V_A}, s[{S_DST}:{S_DST+3}], s{S_T0} offen')
        a(f'buffer_load_dwordx2 v[34:35], v{V_A}, s[{S_SRC}:{S_SRC+3}], s{S_T0} offen')
        a(f's_cmp_lt_u32 s{S_WAVE}, 2')
        a('s_cselect_b64 exec, -1, 0')
        a(f'buffer_load_dword v36, v{V_B}, s[{S_DST}:{S_DST+3}], s{S_T0} offen offset:2048')
        a(f'buffer_load_dword v37, v{V_B}, s[{S_SRC}:{S_SRC+3}], s{S_T0} offen offset:2048')
        self.srd(S_DBG, k+14, 256)
        a(f's_or_b32 s{S_T0}, s2, s{S_WAVE}')
        a('s_bitset1_b32 s50, 31')
        a('s_bitset1_b32 s51, 31')
        a('v_mov_b32 v38, s50')
        a('v_mov_b32 v39, s51')
        a(f's_cmp_eq_u32 s{S_T0}, 0')
        a('s_cselect_b32 exec_lo, 1, 0')
        a('s_mov_b32 exec_hi, 0')
        a(f'buffer_store_dwordx2 v[38:39], off, s[{S_DBG}:{S_DBG+3}], 0 sc1')
        a('s_mov_b64 exec, -1')
        a(f's_branch {dn}')
        a(f'{s1}:')
        a(f's_sub_u32 s{S_U0}, s{S_WAVE}, 4')
        self.srd(S_W, k+6, 524288)
        t3 = a.label('not3')
        a(f's_sub_u32 s{S_U1}, s2, 64')
        a(f's_cmp_ge_u32 s{S_U1}, 128')
        a(f's_cbranch_scc1 {t3}')
        a(f's_lshr_b32 s{S_T0}, s{S_U1}, 6')
        a(f's_lshl_b32 s{S_T0}, s{S_T0}, 16')
        a(f's_and_b32 s{S_T1}, s{S_U1}, 15')
        a(f's_lshl_b32 s{S_T1}, s{S_T1}, 12')
        a(f's_add_u32 s{S_T0}, s{S_T0}, s{S_T1}')
        a(f's_bfe_u32 s{S_T1}, s{S_U1}, 0x20004')
        a(f's_lshl_b32 s{S_T1}, s{S_T1}, 7')
        a(f's_add_u32 s{S_T0}, s{S_T0}, s{S_T1}')
        a(f's_lshl_b32 s{S_T1}, s{S_U0}, 5')
        a(f's_add_u32 s{S_T0}, s{S_T0}, s{S_T1}')
        a(f'v_and_b32 v{V_C}, 15, v{V_LANE}')
        a(f'v_lshlrev_b32 v{V_C}, 1, v{V_C}')
        a(f'v_lshl_add_u32 v{V_C}, v{V_E}, 6, v{V_C}')
        for i in range(8):
            a(f's_add_u32 s{S_T1}, s{S_T0}, {(i & 3)*131072}')
            a(f'buffer_load_ushort v{(96 if i % 2 == 0 else 92) + (i >> 1)}, v{V_C}, s[{S_W}:{S_W+3}], s{S_T1} offen offset:{(i >> 2)*512}')
        a(f's_branch {dn}')
        a(f'{t3}:')
        a(f's_cmp_lg_u32 s{S_U0}, 3')
        a(f's_cbranch_scc1 {dn}')
        a('s_cmp_ge_u32 s2, 64')
        a(f's_cbranch_scc1 {dn}')
        a(f's_lshl_b32 s{S_T0}, s2, 13')
        for t in range(8):
            a(f'buffer_load_dwordx4 v[{32+4*t}:{35+4*t}], v{V_F}, s[{S_W}:{S_W+3}], s{S_T0} offen offset:{64*t}')
        a(f'v_mov_b32 v{V_C}, s{S_KA+8}')
        a(f'v_mov_b32 v{V_D}, s{S_KA+10}')
        a(f'v_cndmask_b32 v{V_C}, v{V_C}, v{V_D}, vcc')
        a(f'v_mov_b32 v{V_D}, s{S_KA+9}')
        a(f'v_mov_b32 v{V_G}, s{S_KA+11}')
        a(f'v_cndmask_b32 v{V_D}, v{V_D}, v{V_G}, vcc')
        a(f's_lshr_b32 s{S_T1}, s2, 4')
        a(f's_lshl_b32 s{S_T1}, s{S_T1}, 9')
        a(f'v_add_u32 v{V_E}, s{S_T1}, v{V_E}')
        a(f'v_add_co_u32 v{V_C}, vcc, v{V_C}, v{V_E}')
        a('s_nop 1')
        a(f'v_addc_co_u32 v{V_D}, vcc, 0, v{V_D}, vcc')
        for t in range(8):
            a(f'global_load_dwordx4 v[{64+4*t}:{67+4*t}], v[{V_C}:{V_C+1}], off offset:{64*t}')
        a(f'{dn}:')

    def late_consts(self):
        a = self.a; o = self.o
        k = S_KA
        self.srd(S_WS, k+16, WS_SIZE)
        self.srd(S_X, k+0, 5120000+4096, shift=4096)
        self.srd(S_W, k+6, 524288)
        self.srd(S_DST, k+4, 640000)
        self.srd(S_SRC, k+2, 640000)
        self.srd(S_OUT, k+12, 5120000)
        a(f'v_and_b32 v{V_A}, 15, v{V_LANE}')
        a(f'v_lshrrev_b32 v{V_B}, 4, v{V_LANE}')
        a(f's_lshr_b32 s{S_HF}, s{S_W3}, 1')
        a(f's_mul_i32 s{S_RING}, s{S_WAVE}, {RINGW}')
        a(f's_and_b32 s{S_T0}, s{S_W3}, 1')
        a(f's_lshl_b32 s{S_T1}, s{S_SET}, 1')
        a(f's_add_u32 s{S_SLICE}, s{S_T0}, s{S_T1}')
        a(f'v_lshrrev_b32 v{V_C}, 3, v{V_A}')
        a(f'v_and_b32 v{V_D}, 1, v{V_B}')
        a(f'v_lshl_or_b32 v{V_C}, v{V_D}, 1, v{V_C}')
        a(f'v_lshrrev_b32 v{V_D}, 2, v{V_A}')
        a(f'v_lshlrev_b32 v{V_D}, 7, v{V_D}')
        a(f'v_lshl_add_u32 v{V_D}, v{V_B}, 10, v{V_D}')
        a(f'v_bfe_u32 v{V_E}, v{V_A}, 1, 1')
        a(f'v_lshl_add_u32 v{V_D}, v{V_E}, 4, v{V_D}')
        a(f'v_and_b32 v{V_E}, 1, v{V_A}')
        a(f'v_lshl_add_u32 v{V_D}, v{V_E}, 3, v{V_D}')
        a(f'v_add_u32 v{V_D}, s{S_RING}, v{V_D}')
        for j in range(4):
            a(f'v_xor_b32 v{V_E}, {j}, v{V_C}')
            a(f'v_lshl_add_u32 v{V_TR+j}, v{V_E}, 5, v{V_D}')
        a(f'v_lshlrev_b32 v{V_WE}, 4, v{V_LANE}')
        a(f'v_add_u32 v{V_AW}, {AP}, v{V_WE}')
        a(f'v_mov_b32 v{V_LB}, {LIST}')
        a(f'v_lshrrev_b32 v{V_C}, 3, v{V_LANE}')
        a(f'v_lshl_add_u32 v{V_LST}, v{V_C}, 4, v{V_LB}')
        a(f'v_and_b32 v{V_D}, 2, v{V_C}')
        a(f'v_and_b32 v{V_E}, 7, v{V_LANE}')
        a(f'v_xor_b32 v{V_E}, v{V_E}, v{V_D}')
        a(f'v_lshlrev_b32 v{V_SWE}, 4, v{V_E}')
        a(f'v_xor_b32 v{V_SWO}, 64, v{V_SWE}')
        a(f's_mov_b32 s{S_M}, 0xfffffe00')
        a(f's_lshl_b32 s{S_T0}, s{S_SLICE}, 7')
        for c in range(4):
            a(f's_add_u32 s{S_XSO+c}, s{S_T0}, {4096 - c*1024}')
        a(f's_mov_b32 s{S_C3}, {(-(R-1)*4096) & 0xffffffff}')
        a(f's_lshl_b32 s{S_WB}, s{S_WAVE}, 16')
        a(f's_add_u32 s{S_WB}, s{S_WB}, {WS_WSW}')
        a(f's_lshl_b32 s{S_T0}, s{S_SET}, 5')
        a(f's_add_u32 s{S_SYO}, s{S_T0}, {M_SYNC}')
        a(f's_xor_b32 s{S_T0}, s{S_T0}, 32')
        a(f's_add_u32 s{S_SYX}, s{S_T0}, {M_SYNC}')
        self.lds_reset()

    def lds_reset(self):
        a = self.a
        for i in range(4): a(f'v_mov_b32 v{104+i}, 0')
        self.fill(AP, 40960, 104, 103)
        a(f'v_lshlrev_b32 v103, 4, v{V_TID}')
        a(f'v_add_u32 v103, {GCNT}, v103')
        a(f'v_cmpx_gt_u32 vcc, 4, v{V_TID}')
        a(f'ds_write_b128 v103, v[104:107]')
        a('s_mov_b64 exec, -1')
        a(f'v_lshlrev_b32 v103, 3, v{V_TID}')
        a(f'v_add_u32 v103, {M_SLOW}, v103')
        a(f'v_cmpx_gt_u32 vcc, 10, v{V_TID}')
        a(f'ds_write_b64 v103, v[104:105]')
        a('s_mov_b64 exec, -1')
        for i in range(4): a(f'v_mov_b32 v{104+i}, 0x40000000')
        self.fill(LIST, 5248, 104, 103)

    def unit_consts(self, slot, glo, ghi, rb, mask):
        a = self.a
        U = V_UN + 4*slot
        a(f'v_mov_b32 v{V_C}, s{ghi}')
        a(f'v_mov_b32 v{V_D}, s{glo}')
        a(f'v_cndmask_b32 v{V_C}, v{V_C}, v{V_D}, s[{S_EX2}:{S_EX2+1}]')
        a(f'v_and_b32 v{U}, s{mask}, v{V_LANE}')
        a(f'v_add_u32 v{U}, s{rb}, v{U}')
        a(f'v_lshlrev_b32 v{U+1}, 2, v{V_C}')
        a(f'v_add_u32 v{U+1}, {GCNT}, v{U+1}')
        a(f'v_lshl_add_u32 v{V_E}, v{V_C}, 9, v{V_LB}')
        a(f'v_lshl_add_u32 v{U+2}, v{U}, 2, v{V_E}')
        a(f'v_lshlrev_b32 v{V_E}, 12, v{V_C}')
        a(f'v_lshrrev_b32 v{V_D}, 5, v{U}')
        a(f'v_lshl_add_u32 v{V_E}, v{V_D}, 10, v{V_E}')
        a(f'v_and_b32 v{V_D}, 3, v{U}')
        a(f'v_lshl_add_u32 v{V_E}, v{V_D}, 8, v{V_E}')
        a(f'v_bfe_u32 v{V_D}, v{U}, 2, 3')
        a(f'v_lshl_add_u32 v{V_E}, v{V_D}, 1, v{V_E}')
        a(f'v_add_u32 v{U+3}, {AP}, v{V_E}')

    def unit_setup(self):
        a = self.a
        a(f'v_cmp_gt_u32 vcc, 32, v{V_LANE}')
        a(f's_mov_b64 s[{S_EX2}:{S_EX2+1}], vcc')
        a(f's_mov_b32 s{S_U2}, 0')
        a(f's_mov_b32 s{S_U3}, 63')
        self.unit_consts(0, S_WAVE, S_WAVE, S_U2, S_U3)
        a(f's_add_u32 s{S_T0}, s{S_WAVE}, 8')
        a(f's_lshl_b32 s{S_T1}, s{S_WAVE}, 1')
        a(f's_sub_u32 s{S_T1}, s{S_T1}, 4')
        a(f's_add_u32 s{S_T2}, s{S_T1}, 1')
        a(f's_cmp_lt_u32 s{S_WAVE}, 2')
        a(f's_cselect_b32 s{S_C0}, s{S_T0}, s{S_T1}')
        a(f's_cselect_b32 s{S_C1}, s{S_T0}, s{S_T2}')
        a(f's_cselect_b32 s{S_U2}, 0, 64')
        a(f's_cselect_b32 s{S_U3}, 63, 31')
        a(f's_cmp_eq_u32 s{S_WAVE}, 7')
        a(f's_cselect_b32 s{S_C0}, 0, s{S_C0}')
        a(f's_cselect_b32 s{S_C1}, 0, s{S_C1}')
        a(f's_cselect_b32 s{S_U2}, 0x200, s{S_U2}')
        self.unit_consts(1, S_C0, S_C1, S_U2, S_U3)

    def read_tags(self):
        a = self.a
        a(f'v_mov_b32 v{V_A}, {M_NONCE}')
        a(f'ds_read_b64 v[{V_C}:{V_C+1}], v{V_A}')
        a('s_waitcnt lgkmcnt(0)')
        a(f'v_readfirstlane_b32 s{S_T0}, v{V_C}')
        a(f'v_readfirstlane_b32 s{S_T1}, v{V_C+1}')
        a('s_nop 1')
        a(f's_and_b32 s{S_T}, s{S_T0}, 0xfff')
        a(f's_bfe_u32 s{S_T+1}, s{S_T0}, 0xc000c')
        a(f's_bfe_u32 s{S_T+2}, s{S_T0}, 0x70018')
        a(f's_lshl_b32 s{S_T0}, s{S_T1}, 7')
        a(f's_or_b32 s{S_T+2}, s{S_T+2}, s{S_T0}')
        a(f's_bfe_u32 s{S_T+3}, s{S_T1}, 0xc0005')
        for k, (mul, add) in enumerate(((5, 0x123), (9, 0x456), (13, 0x789))):
            a(f's_mul_i32 s{S_T0}, s{S_T}, {mul}')
            a(f's_add_u32 s{S_T+1+k}, s{S_T+1+k}, s{S_T0}')
            a(f's_add_u32 s{S_T+1+k}, s{S_T+1+k}, {add}')
            a(f's_and_b32 s{S_T+1+k}, s{S_T+1+k}, 0xfff')

    def xrows(self):
        a = self.a
        sk = a.label('nox')
        a(f's_cmp_eq_u32 s{S_WAVE}, 7')
        a(f's_cbranch_scc1 {sk}')
        self.srd(S_X, S_KA+0, 5120000+4096, shift=4096)
        a(f's_mul_i32 s{S_T0}, s2, 40')
        a(f's_and_b32 s{S_T1}, s{S_WAVE}, 3')
        a(f's_lshl_b32 s{S_T1}, s{S_T1}, 4')
        a(f's_add_u32 s{S_T0}, s{S_T0}, s{S_T1}')
        a(f's_lshl_b32 s{S_T0}, s{S_T0}, 9')
        a(f's_add_u32 s{S_T0}, s{S_T0}, 4096')
        a(f'v_and_b32 v{V_A}, 15, v{V_LANE}')
        a(f'v_lshlrev_b32 v{V_A}, 9, v{V_A}')
        a(f'v_lshrrev_b32 v{V_B}, 4, v{V_LANE}')
        a(f'v_lshl_add_u32 v{V_A}, v{V_B}, 4, v{V_A}')
        for t in range(8):
            a(f'buffer_load_dwordx4 v[{40+4*t}:{43+4*t}], v{V_A}, s[{S_X}:{S_X+3}], s{S_T0} offen offset:{64*t}')
        a(f'{sk}:')

    def t1_set0(self):
        a = self.a; o = self.o
        a('s_waitcnt vmcnt(1)')
        sk = a.label('w0only')
        a(f's_cmp_eq_u32 s{S_WAVE}, 0')
        a(f's_cbranch_scc1 {sk}')
        a('s_waitcnt vmcnt(0)')
        a(f'{sk}:')
        self.ts('ld1')
        a(f's_mov_b32 s{S_C0}, -40')
        a(f's_mov_b32 s{S_C1}, {CNT}')
        a(f's_mov_b32 s{S_C2}, {IMG}')
        a(f'v_mov_b32 v{V_G}, 1')
        def rnd(vd, vs, t):
            a(f'v_mul_u32_u24 v{t}, 0xcccd, v{vd}')
            a(f'v_lshrrev_b32 v{t}, 21, v{t}')
            a(f'v_mad_i32_i24 v{t+1}, v{t}, s{S_C0}, v{vd}')
            a(f'v_lshlrev_b32 v{t+2}, 18, v{vs}')
            a(f'v_lshl_or_b32 v{t+1}, v{t+1}, 12, v{t+2}')
            a(f'v_lshl_add_u32 v{t+3}, v{t}, 2, s{S_C1}')
            a(f'v_lshl_add_u32 v{t+2}, v{t}, 6, s{S_C2}')
            a(f'ds_add_rtn_u32 v{t+3}, v{t+3}, v{V_G}')
        def wr(t):
            a(f'v_cmpx_gt_u32 vcc, 16, v{t+3}')
            a(f'v_lshl_add_u32 v{t+2}, v{t+3}, 2, v{t+2}')
            a(f'ds_write_b32 v{t+2}, v{t+1}')
            a('s_mov_b64 exec, -1')
        rnd(32, 34, 40); rnd(33, 35, 44)
        a(f's_cmp_lt_u32 s{S_WAVE}, 2')
        a(f's_cselect_b64 s[{S_EX2}:{S_EX2+1}], -1, 0')
        a(f's_mov_b64 exec, s[{S_EX2}:{S_EX2+1}]')
        rnd(36, 37, 48)
        a('s_mov_b64 exec, -1')
        a('s_waitcnt lgkmcnt(0)')
        wr(40); wr(44)
        a(f's_mov_b64 exec, s[{S_EX2}:{S_EX2+1}]')
        wr(48)
        self.ts('t1done')
        sk = a.label('nop1'); rt = a.label('nretry'); ok = a.label('nok')
        a(f's_cmp_lg_u32 s{S_WAVE}, 0')
        a(f's_cbranch_scc1 {sk}')
        def chk():
            a('s_waitcnt vmcnt(0)')
            a(f'v_readfirstlane_b32 s{S_T0}, v38')
            a(f'v_readfirstlane_b32 s{S_T1}, v39')
            a('s_nop 1')
            a(f's_and_b32 s{S_T0}, s{S_T0}, s{S_T1}')
            a(f's_bitcmp1_b32 s{S_T0}, 31')
        chk()
        a(f's_cbranch_scc0 {rt}')
        a(f'{ok}:')
        def blk():
            a(f'{rt}:')
            a(f's_add_u32 s{S_POLL}, s{S_POLL}, 1')
            a(f's_cmp_gt_u32 s{S_POLL}, {POLL_MAX}')
            a(f's_cbranch_scc1 {ok}')
            a(f'buffer_load_dwordx2 v[38:39], off, s[{S_DBG}:{S_DBG+3}], 0 sc1')
            chk()
            a(f's_cbranch_scc0 {rt}')
            a(f's_branch {ok}')
        self.deferred.append(blk)
        self.ts('nonce')
        if o.get('ts'): a(f'v_writelane_b32 v{V_TSR}, s{S_POLL}, 30')
        a(f'v_mov_b32 v{V_A}, {M_NONCE}')
        a(f'ds_write_b64 v{V_A}, v[38:39]')
        a(f'{sk}:')
        a('s_waitcnt lgkmcnt(0)')
        a('s_barrier')
        self.ts('B1')
        self.read_tags()
        self.unit_setup()
        a('s_barrier')

    def t1_set1(self):
        a = self.a; o = self.o
        sk = a.label('nou2')
        a(f's_cmp_lg_u32 s{S_U0}, 3')
        a(f's_cbranch_scc1 {sk}')
        a('s_cmp_ge_u32 s2, 64')
        a(f's_cbranch_scc1 {sk}')
        a('s_waitcnt vmcnt(0)')
        self.ts('ld1')
        for t in range(8):
            c = '0' if t == 0 else 'v[96:99]'
            a(f'v_mfma_f32_16x16x32_bf16 v[96:99], v[{32+4*t}:{35+4*t}], v[{64+4*t}:{67+4*t}], {c}')
        a('s_nop 7')
        for r in range(96, 100): a(f'v_mul_f32 v{r}, 0x3fb8aa3b, v{r}')
        for r in range(96, 100): a(f'v_add_u32 v{r}, 0x800, v{r}')
        a(f'{sk}:')
        sk = a.label('not3b')
        a(f's_sub_u32 s{S_U1}, s2, 64')
        a(f's_cmp_ge_u32 s{S_U1}, 128')
        a(f's_cbranch_scc1 {sk}')
        a(f's_lshl_b32 s{S_T0}, s{S_U1}, 12')
        a(f's_lshl_b32 s{S_T1}, s{S_U0}, 10')
        a(f's_add_u32 s{S_T0}, s{S_T0}, s{S_T1}')
        a(f's_add_u32 s{S_T0}, s{S_T0}, {WS_WSW}')
        a('s_waitcnt vmcnt(0)')
        for r in range(4): a(f'v_lshl_or_b32 v{96+r}, v{92+r}, 16, v{96+r}')
        a(f'buffer_store_dwordx4 v[96:99], v{V_WE}, s[{S_WS}:{S_WS+3}], s{S_T0} offen sc1')
        a('s_waitcnt vmcnt(0)')
        a(f'{sk}:')
        self.ts('t1done')
        a('s_waitcnt lgkmcnt(0)')
        a('s_barrier')
        self.ts('B1')
        self.read_tags()
        a(f's_mov_b32 s{S_C0}, 0xfffff000')
        sk = a.label('nou3')
        a(f's_cmp_lg_u32 s{S_U0}, 3')
        a(f's_cbranch_scc1 {sk}')
        a('s_cmp_ge_u32 s2, 64')
        a(f's_cbranch_scc1 {sk}')
        for k in range(4): a(f'v_and_b32 v{96+k}, s{S_C0}, v{96+k}')
        for k in range(4): a(f'v_or_b32 v{96+k}, s{S_T+k}, v{96+k}')
        a(f'v_and_b32 v{V_A}, 15, v{V_LANE}')
        a(f'v_lshrrev_b32 v{V_B}, 4, v{V_LANE}')
        a(f'v_lshl_add_u32 v{V_B}, v{V_A}, 2, v{V_B}')
        a(f'v_lshlrev_b32 v{V_B}, 4, v{V_B}')
        a(f's_lshl_b32 s{S_T0}, s2, 7')
        a(f's_add_u32 s{S_T0}, s{S_T0}, {WS_UTAB}')
        a(f'v_cmpx_gt_u32 vcc, 2, v{V_A}')
        a(f'buffer_store_dwordx4 v[96:99], v{V_B}, s[{S_WS}:{S_WS+3}], s{S_T0} offen sc1')
        a('s_mov_b64 exec, -1')
        self.ts('ust')
        a(f'{sk}:')
        a(f'v_subrev_u32 v{V_F}, 256, v{V_TID}')
        a(f'v_lshlrev_b32 v{V_A}, 4, v{V_F}')
        a(f'v_add_u32 v{V_A}, {IMG}, v{V_A}')
        a(f'v_lshrrev_b32 v{V_B}, 2, v{V_F}')
        a(f'v_lshlrev_b32 v{V_C}, 2, v{V_B}')
        a(f'v_add_u32 v{V_C}, {CNT}, v{V_C}')
        for i in range(4):
            a(f'ds_read_b128 v[{76+4*i}:{79+4*i}], v{V_A} offset:{4096*i}')
            a(f'ds_read_b32 v{92+i}, v{V_C} offset:{256*i}')
        a(f'v_mul_u32_u24 v{V_B}, 16000, v{V_B}')
        a(f'v_and_b32 v{V_D}, 3, v{V_F}')
        a(f'v_lshl_add_u32 v{V_B}, v{V_D}, 4, v{V_B}')
        a(f'v_cmp_eq_u32 s[{S_EX2}:{S_EX2+1}], 3, v{V_D}')
        a(f'v_mov_b32 v{V_E}, 0xffffe000')
        a(f's_lshl_b32 s{S_C1}, s2, 6')
        a('s_waitcnt lgkmcnt(0)')
        for i in range(4):
            a(f'v_cmp_lt_u32 vcc, 16, v{92+i}')
            a(f's_and_b64 vcc, vcc, s[{S_EX2}:{S_EX2+1}]')
            for k in range(3): a(f'v_or_b32 v{76+4*i+k}, s{S_T+k}, v{76+4*i+k}')
            a(f'v_cndmask_b32 v{79+4*i}, v{79+4*i}, v{V_E}, vcc')
            a(f'v_or_b32 v{79+4*i}, s{S_T+3}, v{79+4*i}')
            if i == 3: a(f'v_cmpx_gt_u32 vcc, 232, v{V_F}')
            a(f'buffer_store_dwordx4 v[{76+4*i}:{79+4*i}], v{V_B}, s[{S_WS}:{S_WS+3}], s{S_C1} offen sc1')
            if i == 3: a('s_mov_b64 exec, -1')
            else: a(f's_add_u32 s{S_C1}, s{S_C1}, 1024000')
        self.ts('p3')
        self.unit_setup()
        a('s_waitcnt vmcnt(0)')
        self.ts('tack')
        a('s_barrier')

    def middle(self):
        a = self.a; o = self.o
        E = 72
        a(f'v_and_b32 v{V_A}, 255, v{V_TID}')
        a(f'v_lshrrev_b32 v{V_B}, 8, v{V_TID}')
        a(f'v_lshlrev_b32 v{V_E}, 6, v{V_A}')
        a(f'v_lshl_add_u32 v{V_E}, v{V_B}, 4, v{V_E}')
        a(f's_mul_i32 s{S_C2}, s2, 16000')
        a(f'v_cmp_gt_u32 vcc, 250, v{V_A}')
        a(f's_mov_b64 s[{S_EX2}:{S_EX2+1}], vcc')
        for i in range(8): a(f'v_mov_b32 v{E+i}, {EMPTY}')
        a(f'v_lshlrev_b32 v{V_F}, 4, v{V_TID}')
        a(f's_mov_b32 s{S_C0}, {WS_UTAB}')
        for _ in range(o.get('edelay', 0)): a('s_sleep 2')
        self.ts('eld')
        def eload():
            a(f's_mov_b64 exec, s[{S_EX2}:{S_EX2+1}]')
            a(f'buffer_load_dwordx4 v[{E}:{E+3}], v{V_E}, s[{S_WS}:{S_WS+3}], s{S_C2} offen sc1')
            a(f'buffer_load_dwordx4 v[{E+4}:{E+7}], v{V_E}, s[{S_WS}:{S_WS+3}], s{S_C2} offen offset:32 sc1')
        def uload():
            a(f'buffer_load_dwordx4 v[84:87], v{V_F}, s[{S_WS}:{S_WS+3}], s{S_C0} offen sc1')
        eload(); a('s_mov_b64 exec, -1')
        uload()
        a('s_barrier')
        sk = a.label('nox1')
        a(f's_cmp_eq_u32 s{S_SET}, 0')
        a(f's_cbranch_scc1 {sk}')
        self.xrows()
        a(f'{sk}:')
        if o.get('sweep', 1): self.sweep(0, 11)
        else: a(f'buffer_load_dword v255, off, s[{S_WS}:{S_WS+3}], 0 sc1')
        w46 = a.label('w46'); w46e = a.label('w46e')
        a(f's_sub_u32 s{S_U0}, s{S_WAVE}, 4')
        a(f's_cmp_le_u32 s{S_U0}, 2')
        a(f's_cbranch_scc1 {w46}')
        a('s_waitcnt vmcnt(1)')
        a(f'{w46e}:')
        def blk():
            a(f'{w46}:')
            a('s_waitcnt vmcnt(9)')
            a(f's_branch {w46e}')
        self.deferred.append(blk)
        self.tagcheck(84, V_A, True, V_B, V_C)
        def ure():
            uload(); a('s_waitcnt vmcnt(0)'); self.tagcheck(84, V_A, True, V_B, V_C)
        self.poll_check(V_A, ure, 'u')
        self.ts('uval')
        a(f's_mov_b32 s{S_C0}, 0xfffff000')
        for i in range(4): a(f'v_and_b32 v{84+i}, s{S_C0}, v{84+i}')
        a(f'v_bfe_u32 v{V_A}, v{V_TID}, 2, 1')
        a(f'v_lshrrev_b32 v{V_B}, 7, v{V_TID}')
        a('v_cvt_pk_bf16_f32 v84, v84, v85')
        a('v_cvt_pk_bf16_f32 v85, v86, v87')
        a(f'v_lshl_add_u32 v{V_A}, v{V_A}, 2, v{V_B}')
        a(f'v_mul_u32_u24 v{V_A}, 528, v{V_A}')
        a(f'v_bfe_u32 v{V_B}, v{V_TID}, 3, 4')
        a(f'v_lshl_add_u32 v{V_A}, v{V_B}, 5, v{V_A}')
        a(f'v_and_b32 v{V_B}, 3, v{V_TID}')
        a(f'v_lshl_add_u32 v{V_A}, v{V_B}, 3, v{V_A}')
        a(f'v_add_u32 v{V_A}, {UT}, v{V_A}')
        a(f'ds_write_b64 v{V_A}, v[84:85]')
        a('s_waitcnt lgkmcnt(0)')
        a('s_barrier')
        self.ts('B2')
        a(f's_mov_b64 exec, s[{S_EX2}:{S_EX2+1}]')
        def echeck():
            self.tagcheck(E, V_A, True, V_B, V_C); self.tagcheck(E+4, V_A, False, V_B, V_C)
        echeck()
        def ere():
            eload(); a('s_waitcnt vmcnt(0)'); echeck()
        self.poll_check(V_A, ere, 'e')
        self.ts('eval')
        a(f's_mov_b32 s{S_C0}, 0xfffc0000')
        a(f's_mov_b32 s{S_C1}, {GCNT}')
        a(f's_movk_i32 s{S_U1}, 0x1e00')
        a(f'v_mov_b32 v{V_G}, 1')
        def sort4(k0):
            for k in range(k0, k0+4):
                a(f'v_cmpx_gt_u32 vcc, s{S_C0}, v{E+k}')
                a(f'v_lshrrev_b32 v{V_A}, 12, v{E+k}')
                a(f'v_and_or_b32 v{V_A}, v{V_A}, 60, s{S_C1}')
                a(f'ds_add_rtn_u32 v{80+(k&3)}, v{V_A}, v{V_G}')
            a(f's_mov_b64 exec, s[{S_EX2}:{S_EX2+1}]')
            a('s_waitcnt lgkmcnt(0)')
            for k in range(k0, k0+4):
                a(f'v_cmpx_gt_u32 vcc, s{S_C0}, v{E+k}')
                a(f'v_lshrrev_b32 v{V_A}, 5, v{E+k}')
                a(f'v_and_or_b32 v{V_A}, v{V_A}, s{S_U1}, v{V_LB}')
                a(f'v_lshl_add_u32 v{V_A}, v{80+(k&3)}, 2, v{V_A}')
                a(f'v_lshrrev_b32 v{V_B}, 9, v{E+k}')
                a(f'ds_write_b32 v{V_A}, v{V_B}')
            a(f's_mov_b64 exec, s[{S_EX2}:{S_EX2+1}]')
        sort4(0)
        rare = a.label('rare'); back = a.label('rareb')
        a(f'v_cmp_gt_u32 vcc, s{S_C0}, v{E+4}')
        a(f's_cbranch_vccnz {rare}')
        a(f'{back}:')
        def blk():
            a(f'{rare}:')
            sort4(4)
            a(f'v_lshrrev_b32 v{V_A}, 12, v{E+7}')
            a(f'v_cmpx_eq_u32 vcc, 0xffffe, v{V_A}')
            a(f'v_mov_b32 v{V_A}, {M_SLOW}')
            a(f'ds_write_b32 v{V_A}, v{V_G}')
            a(f's_mov_b64 exec, s[{S_EX2}:{S_EX2+1}]')
            a(f's_branch {back}')
        self.deferred.append(blk)
        a('s_mov_b64 exec, -1')
        a('s_waitcnt lgkmcnt(0)')
        a('s_barrier')
        self.ts('B3')
        sk = a.label('nos')
        a(f's_sub_u32 s{S_U0}, s{S_WAVE}, 4')
        a(f's_cmp_gt_u32 s{S_U0}, 2')
        a(f's_cbranch_scc1 {sk}')
        a(f's_mov_b32 s{S_C0}, 0xfffff000')
        a(f'v_and_b32 v{V_A}, 7, v{V_LANE}')
        a(f'v_mul_u32_u24 v{V_A}, 528, v{V_A}')
        a(f'v_lshrrev_b32 v{V_B}, 4, v{V_LANE}')
        a(f'v_lshl_add_u32 v{V_A}, v{V_B}, 4, v{V_A}')
        a(f'v_add_u32 v{V_A}, {UT}, v{V_A}')
        UF = 208
        for t in range(8):
            a(f'ds_read_b128 v[{UF+4*t}:{UF+4*t+3}], v{V_A} offset:{64*t}')
        a(f'v_and_b32 v{V_A}, 15, v{V_LANE}')
        a(f's_lshl_b32 s{S_T0}, s{S_U0}, 4')
        a(f'v_add_u32 v{V_A}, s{S_T0}, v{V_A}')
        a(f'v_cmp_gt_u32 s[{S_EX}:{S_EX+1}], 40, v{V_A}')
        a(f'v_lshlrev_b32 v{V_C}, 4, v{V_A}')
        a(f's_mul_i32 s{S_T1}, s2, 640')
        a(f's_add_u32 s{S_T1}, s{S_T1}, {WS_STAB}')
        a(f'v_add_u32 v{V_D}, {SDST}, v{V_C}')
        a('s_waitcnt vmcnt(1) lgkmcnt(0)')
        self.ts('sfr')
        for t in range(8):
            c = '0' if t == 0 else 'v[88:91]'
            a(f'v_mfma_f32_16x16x32_bf16 v[88:91], v[{UF+4*t}:{UF+4*t+3}], v[{40+4*t}:{43+4*t}], {c}')
        a(f'v_cmp_eq_u32 vcc, 0, v{V_B}')
        a(f's_and_b64 s[{S_T0+1}:{S_T0+2}], vcc, s[{S_EX}:{S_EX+1}]')
        a(f'v_cmp_eq_u32 vcc, 1, v{V_B}')
        a(f's_and_b64 vcc, vcc, s[{S_EX}:{S_EX+1}]')
        a('s_nop 3')
        for k in range(4): a(f'v_add_u32 v{92+k}, 0x800, v{88+k}')
        for k in range(4): a(f'v_and_b32 v{92+k}, s{S_C0}, v{92+k}')
        for k in range(4): a(f'v_or_b32 v{92+k}, s{S_T+k}, v{92+k}')
        a('s_mov_b64 exec, vcc')
        a(f'ds_write_b128 v{V_D}, v[88:91]')
        a(f's_mov_b64 exec, s[{S_T0+1}:{S_T0+2}]')
        a(f's_mul_i32 s{S_T1}, s2, 640')
        a(f's_add_u32 s{S_T1}, s{S_T1}, {WS_STAB}')
        a(f'buffer_store_dwordx4 v[92:95], v{V_C}, s[{S_WS}:{S_WS+3}], s{S_T1} offen sc1')
        a('s_mov_b64 exec, -1')
        self.ts('sst')
        a(f'{sk}:')
        self.steptab_read()
        a('s_waitcnt lgkmcnt(0)')
        self.steptab()
        self.xprologue()
        self.ts('xp')
        a('s_waitcnt lgkmcnt(0)')
        a('s_barrier')
        self.ts('B3u')
        for t in range(NA - NBB): self.wload(t)
        for u in range(2):
            U = V_UN + 4*u
            a(f'ds_read_b32 v{34+u}, v{U+1}')
            a(f'ds_read_b32 v{32+u}, v{U+2}')
        a(f's_mov_b32 s{S_C0}, {WS_STAB}')
        a(f's_movk_i32 s{S_U1}, 0x3f0')
        a(f'v_mov_b32 v{V_F}, {SDST}')
        a('s_waitcnt lgkmcnt(0)')
        self.unit_loads(0); self.unit_loads(1)
        self.ts('sld')
        a('s_waitcnt vmcnt(0) lgkmcnt(0)')
        def scheck():
            a(f'v_mov_b32 v{V_F}, 0')
            for u in range(2):
                a(f'v_cmpx_gt_u32 vcc, v{34+u}, v{V_UN+4*u}')
                self.tagcheck(40+4*u, V_F, False, V_B, V_C)
                a('s_mov_b64 exec, -1')
        scheck()
        def sre():
            a(f's_mov_b32 s{S_C0}, {WS_STAB}')
            for u in range(2):
                a(f'v_cmpx_gt_u32 vcc, v{34+u}, v{V_UN+4*u}')
                a(f'buffer_load_dwordx4 v[{40+4*u}:{43+4*u}], v{36+u}, s[{S_WS}:{S_WS+3}], s{S_C0} offen sc1')
                a('s_mov_b64 exec, -1')
            a('s_waitcnt vmcnt(0)')
            scheck()
        self.poll_check(V_F, sre, 's')
        self.ts('sval')
        for t in range(NA - NBB, NA): self.wload(t)
        a(f's_mov_b32 s{S_C0}, 0xfffff000')
        for u in range(2): self.unit_weights(u)
        self.rare_c_units()
        self.tail_consts()
        a('s_waitcnt lgkmcnt(0)')
        a('s_barrier')
        self.ts('B4')

    def unit_loads(self, u):
        a = self.a
        U = V_UN + 4*u
        a(f'v_cmpx_gt_u32 vcc, v{34+u}, v{U}')
        a(f'v_lshrrev_b32 v{V_A}, 5, v{32+u}')
        a(f'v_and_b32 v{36+u}, 0x3fff0, v{V_A}')
        a(f'v_lshlrev_b32 v{V_A}, 1, v{32+u}')
        a(f'v_and_or_b32 v{38+u}, v{V_A}, s{S_U1}, v{V_F}')
        a(f'buffer_load_dwordx4 v[{40+4*u}:{43+4*u}], v{36+u}, s[{S_WS}:{S_WS+3}], s{S_C0} offen sc1')
        a(f'ds_read_b128 v[{48+4*u}:{51+4*u}], v{38+u}')
        a('s_mov_b64 exec, -1')

    def unit_weights(self, u):
        a = self.a
        U = V_UN + 4*u; sv = 40+4*u; dv = 48+4*u; le = 32+u
        a(f'v_cmpx_gt_u32 vcc, v{34+u}, v{U}')
        for h in range(4): a(f'v_and_b32 v{sv+h}, s{S_C0}, v{sv+h}')
        for h in (0, 2): a(f'v_pk_add_f32 v[{sv+h}:{sv+h+1}], v[{sv+h}:{sv+h+1}], v[{dv+h}:{dv+h+1}]')
        for h in range(4): a(f'v_mul_f32 v{dv+h}, 0x3e4ccccd, v{sv+h}')
        for h in range(4): a(f'v_max_f32 v{sv+h}, v{sv+h}, v{dv+h}')
        for h in range(4): a(f'v_exp_f32 v{sv+h}, v{sv+h}')
        a(f'v_bfe_u32 v{V_A}, v{le}, 3, 2')
        a(f'v_lshl_add_u32 v{V_A}, v{V_A}, 6, v{U+3}')
        a(f'v_cvt_pk_bf16_f32 v{dv}, v{sv}, v{sv+1}')
        a(f'v_cvt_pk_bf16_f32 v{dv+1}, v{sv+2}, v{sv+3}')
        a(f'ds_write_b16 v{V_A}, v{dv}')
        a(f'ds_write_b16_d16_hi v{V_A}, v{dv} offset:16')
        a(f'ds_write_b16 v{V_A}, v{dv+1} offset:32')
        a(f'ds_write_b16_d16_hi v{V_A}, v{dv+1} offset:48')
        a('s_mov_b64 exec, -1')

    def rare_c_units(self):
        a = self.a
        rare = a.label('rareC'); back = a.label('rareCb')
        a(f's_cmp_lg_u32 s{S_AOFF}, 0')
        a(f's_cbranch_scc1 {rare}')
        a(f'{back}:')
        def blk():
            a(f'{rare}:')
            a(f's_cmp_gt_u32 s{S_WAVE}, 4')
            a(f's_cbranch_scc1 {back}')
            a(f'v_cmp_gt_u32 vcc, 32, v{V_LANE}')
            a(f's_mov_b64 s[{S_EX2}:{S_EX2+1}], vcc')
            a(f's_lshl_b32 s{S_U0}, s{S_WAVE}, 1')
            a(f's_add_u32 s{S_U1}, s{S_U0}, 1')
            a(f's_mov_b32 s{S_U2}, 96'); a(f's_mov_b32 s{S_U3}, 31')
            self.unit_consts(0, S_U0, S_U1, S_U2, S_U3)
            a(f'ds_read_b32 v34, v{V_UN+1}')
            a(f'ds_read_b32 v32, v{V_UN+2}')
            a(f's_mov_b32 s{S_C0}, {WS_STAB}')
            a(f's_movk_i32 s{S_U1}, 0x3f0')
            a(f'v_mov_b32 v{V_F}, {SDST}')
            a('s_waitcnt lgkmcnt(0)')
            self.unit_loads(0)
            a('s_waitcnt vmcnt(0) lgkmcnt(0)')
            def chk():
                a(f'v_mov_b32 v{V_F}, 0')
                a(f'v_cmpx_gt_u32 vcc, v34, v{V_UN}')
                self.tagcheck(40, V_F, False, V_B, V_C)
                a('s_mov_b64 exec, -1')
                a(f'v_and_b32 v{V_F}, 0xfff, v{V_F}')
                a(f'v_cmp_ne_u32 vcc, 0, v{V_F}')
            lp = a.label('cpoll'); dn = a.label('cdone')
            a(f'{lp}:')
            chk()
            a(f's_cbranch_vccz {dn}')
            a(f's_add_u32 s{S_POLL}, s{S_POLL}, 1')
            a(f's_cmp_gt_u32 s{S_POLL}, {POLL_MAX}')
            a(f's_cbranch_scc1 {dn}')
            a(f'v_cmpx_gt_u32 vcc, v34, v{V_UN}')
            a(f'buffer_load_dwordx4 v[40:43], v36, s[{S_WS}:{S_WS+3}], s{S_C0} offen sc1')
            a('s_mov_b64 exec, -1')
            a('s_waitcnt vmcnt(0)')
            a(f's_branch {lp}')
            a(f'{dn}:')
            a(f's_mov_b32 s{S_C0}, 0xfffff000')
            self.unit_weights(0)
            a(f's_branch {back}')
        self.deferred.append(blk)

    def steptab_read(self):
        a = self.a
        a(f'v_lshlrev_b32 v{V_A}, 2, v{V_LANE}')
        a(f'v_add_u32 v{V_A}, {GCNT}, v{V_A}')
        a(f'v_mov_b32 v{V_B}, {M_SLOW}')
        a(f'ds_read_b32 v84, v{V_A}')
        a(f'ds_read_b32 v85, v{V_B}')

    def steptab(self):
        a = self.a
        a('v_cmp_lt_u32 vcc, 0x80, v84')
        a(f's_and_b32 s{S_T0}, vcc_lo, 0x3ff')
        a(f'v_readfirstlane_b32 s{S_T1}, v85')
        a('v_cmp_lt_u32 vcc, 0x60, v84')
        a(f's_and_b32 s{S_AOFF}, vcc_lo, 0x3ff')
        a(f's_or_b32 s{S_T0}, s{S_T0}, s{S_T1}')
        a(f's_cmp_lg_u32 s{S_T0}, 0')
        a('s_cbranch_scc1 L_slow')
        a(f'v_add_u32 v84, 31, v84')
        a(f'v_lshrrev_b32 v84, 5, v84')
        a(f's_mul_i32 s{S_T2}, s{S_HF}, 5')
        a(f's_mov_b32 s{S_T1}, s{S_T2}')
        N = (S_U0, S_U1, S_U2, S_U3, S_C0)
        for g in range(5):
            a(f'v_readlane_b32 s{N[g]}, v84, s{S_T1}')
            if g < 4: a(f's_add_u32 s{S_T1}, s{S_T1}, 1')
        a(f's_lshl_b32 s{S_T2}, s{S_T2}, 9')
        a(f'v_mov_b32 v{V_TAB}, 5120')
        a(f's_mov_b32 s{S_T0}, 0')
        for g in range(5):
            a(f'v_subrev_u32 v{V_A}, s{S_T0}, v{V_LANE}')
            a(f'v_lshlrev_b32 v{V_A}, 7, v{V_A}')
            a(f'v_cmp_le_u32 vcc, s{S_T0}, v{V_LANE}')
            a(f'v_add_u32 v{V_A}, s{S_T2}, v{V_A}')
            a(f's_add_u32 s{S_T0}, s{S_T0}, s{N[g]}')
            a(f's_add_u32 s{S_T2}, s{S_T2}, 512')
            a(f'v_cndmask_b32 v{V_TAB}, v{V_TAB}, v{V_A}, vcc')
        a(f'v_mov_b32 v{V_A}, 5120')
        a(f'v_cmp_le_u32 vcc, s{S_T0}, v{V_LANE}')
        a(f's_mov_b32 s{S_TOT}, s{S_T0}')
        a(f's_lshl_b32 s{S_NPK}, s{N[4]}, 4')
        for g in (3, 2, 1, 0):
            a(f's_or_b32 s{S_NPK}, s{S_NPK}, s{N[g]}')
            if g: a(f's_lshl_b32 s{S_NPK}, s{S_NPK}, 4')
        a(f'v_cndmask_b32 v{V_TAB}, v{V_TAB}, v{V_A}, vcc')

    def idx_read(self):
        a = self.a
        a(f'v_readlane_b32 s{S_T0}, v{V_TAB}, s{S_J}')
        a(f's_add_u32 s{S_J}, s{S_J}, 1')
        a('s_nop 0')
        a(f'v_add_u32 v{V_G}, s{S_T0}, v{V_LST}')
        a(f'ds_read_b128 v[{V_IDX}:{V_IDX+3}], v{V_G}')

    def xprologue(self):
        a = self.a
        T = 92
        a('s_nop 0')
        for j in range(R):
            a(f'v_readlane_b32 s{S_T0}, v{V_TAB}, {j}')
            a('s_nop 1')
            a(f'v_add_u32 v{V_G}, s{S_T0}, v{V_LST}')
            a(f'ds_read_b128 v[{T+4*j}:{T+4*j+3}], v{V_G}')
        a(f's_mov_b32 s{S_J}, {R}')
        a(f's_mov_b32 s{S_SLOT}, 0')
        a('s_waitcnt lgkmcnt(0)')
        for j in range(R):
            a(f's_add_u32 m0, s{S_RING}, {j*4096}')
            for c in range(4):
                sw = V_SWE if c % 2 == 0 else V_SWO
                a(f'v_and_or_b32 v{T+4*j+c}, v{T+4*j+c}, s{S_M}, v{sw}')
            for c in range(4):
                a(f'buffer_load_dwordx4 v{T+4*j+c}, s[{S_X}:{S_X+3}], s{S_XSO+c} offen offset:{c*1024} lds')
        self.idx_read()

    def sweep(self, base, shift, dst=255, tmp=254):
        a = self.a
        a(f's_lshr_b32 s{S_T0}, s2, 3')
        a(f's_lshl_b32 s{S_T0}, s{S_T0}, 3')
        a(f's_add_u32 s{S_T0}, s{S_T0}, s{S_WAVE}')
        a(f's_lshl_b32 s{S_T0}, s{S_T0}, {shift}')
        a(f's_add_u32 s{S_T0}, s{S_T0}, {WS_WSW + base}')
        a(f'v_lshlrev_b32 v{tmp}, 7, v{V_LANE}')
        a(f'v_cmpx_gt_u32 vcc, {(1 << shift) >> 7}, v{V_LANE}')
        a(f'buffer_load_dword v{dst}, v{tmp}, s[{S_WS}:{S_WS+3}], s{S_T0} offen sc1')
        a('s_mov_b64 exec, -1')

    def wflag_load(self, dst):
        a = self.a
        a(f's_lshl_b32 s{S_T1}, s{S_WAVE}, 10')
        a(f's_add_u32 s{S_T1}, s{S_T1}, {WS_WFLG}')
        a(f'buffer_load_dwordx4 v[{dst}:{dst+3}], v{V_WE}, s[{S_WS}:{S_WS+3}], s{S_T1} offen sc1')

    def wload(self, t):
        a = self.a
        dst = V_W + 16*(t % NPRE)
        a(f's_add_u32 s{S_T1}, s{S_WB}, {t*4096}')
        for j in range(4):
            a(f'buffer_load_dwordx4 v[{dst+4*j}:{dst+4*j+3}], v{V_WE}, s[{S_WS}:{S_WS+3}], s{S_T1} offen offset:{j*1024} {self.o.get("wfl", "sc1")}')

    def group_end_math(self):
        a = self.a
        for h in range(4): a(f'v_fmaak_f32 v{V_DEN+h}, 4.0, v{V_DEN+h}, 0x3189705f')
        for h in range(4): a(f'v_rcp_f32 v{V_DEN+h}, v{V_DEN+h}')
        a('s_nop 0')
        for j in range(4):
            for h in (0, 2):
                r = V_ACC + 4*j + h
                a(f'v_pk_mul_f32 v[{r}:{r+1}], v[{r}:{r+1}], v[{V_DEN+h}:{V_DEN+h+1}]')
        if self.o.get('cvtidx', 1):
            a(f's_set_gpr_idx_on s{S_T0}, gpr_idx(DST)')
            a('s_nop 0')
            for j in range(4):
                for h in (0, 2):
                    r = V_ACC + 4*j + h
                    a(f'v_cvt_pk_bf16_f32 v{V_PK + 2*j + h//2}, v{r}, v{r+1}')
            a('s_set_gpr_idx_off')
        else:
            for j in range(4):
                for h in (0, 2):
                    r = V_ACC + 4*j + h
                    a(f'v_cvt_pk_bf16_f32 v{92 + 2*j + h//2}, v{r}, v{r+1}')
            a(f's_set_gpr_idx_on s{S_T0}, gpr_idx(DST)')
            a('s_nop 0')
            for k in range(8): a(f'v_mov_b32 v{V_PK+k}, v{92+k}')
            a('s_set_gpr_idx_off')
        for i in range(0, 20, 2): a(f'v_mov_b64 v[{V_ACC+i}:{V_ACC+i+1}], 0')

    def aggregate(self):
        a = self.a; o = self.o
        for i in range(0, 20, 2): a(f'v_mov_b64 v[{V_ACC+i}:{V_ACC+i+1}], 0')
        for i in range(4): a(f'v_mov_b32 v{V_ONE+i}, 0x3f803f80')
        if o.get('aprio'):
            sk = a.label('aprio')
            a(f's_cmp_eq_u32 s{S_SET}, 0')
            a(f's_cbranch_scc1 {sk}')
            a(f's_setprio {o["aprio"]}')
            a(f'{sk}:')
            if o.get('lprio'):
                sk = a.label('lprio')
                a(f's_cmp_eq_u32 s{S_SET}, 1')
                a(f's_cbranch_scc1 {sk}')
                a(f's_setprio {o["lprio"]}')
                a(f'{sk}:')
        a(f's_movk_i32 s{S_C2}, 0x1000')
        a(f's_mov_b32 s{S_G}, 0')
        a(f's_mov_b32 s{S_JC}, 0')
        def addr():
            a(f'v_readlane_b32 s{S_T1}, v{V_TAB}, s{S_JC}')
            a(f's_add_u32 s{S_JC}, s{S_JC}, 1')
            a(f's_lshl_b32 s{S_T1}, s{S_T1}, 3')
            a(f'v_add_u32 v{V_TW}, s{S_T1}, v{V_AW}')
        def reads():
            a(f'ds_read_b128 v[{V_AF}:{V_AF+3}], v{V_TW}')
            for j in range(4):
                a(f'ds_read_b64_tr_b16 v[{V_BF+4*j}:{V_BF+4*j+1}], v{V_TR+j}')
                a(f'ds_read_b64_tr_b16 v[{V_BF+4*j+2}:{V_BF+4*j+3}], v{V_TR+j} offset:512')
        def rowwait():
            a(f's_waitcnt vmcnt({4*(R-1)})')
        a(f's_and_b32 s{S_LEFT}, s{S_NPK}, 15')
        a(f's_lshr_b32 s{S_NPK}, s{S_NPK}, 4')
        addr()
        rowwait()
        reads()
        Lt = a.label('agg_top'); Le = a.label('agg_ge'); Ld = a.label('agg_done'); Ltail = a.label('agg_tail'); Lc = a.label('agg_ctl')
        a(f's_cmp_eq_u32 s{S_LEFT}, 0')
        a(f's_cbranch_scc1 {Le}')
        sw = lambda c: V_SWE if c % 2 == 0 else V_SWO
        mf = lambda d, b: a(f'v_mfma_f32_16x16x32_bf16 v[{d}:{d+3}], v[{V_AF}:{V_AF+3}], v[{b}:{b+3}], v[{d}:{d+3}]')
        dma = lambda c: a(f'buffer_load_dwordx4 v{V_IDX+c}, s[{S_X}:{S_X+3}], s{S_XSO+c} offen offset:{c*1024} lds')
        def advance():
            a(f's_add_u32 s{S_SLOT}, s{S_SLOT}, 4096')
            a(f's_cmp_eq_u32 s{S_SLOT}, {R*4096}')
            a(f's_cselect_b32 s{S_SLOT}, 0, s{S_SLOT}')
            a(f's_cselect_b32 s{S_DELTA}, s{S_C3}, s{S_C2}')
            addr()
            for j in range(4): a(f'v_add_u32 v{V_TR+j}, s{S_DELTA}, v{V_TR+j}')
        a(f'{Lt}:')
        a(f's_cmp_gt_u32 s{S_J}, s{S_TOT}')
        a(f's_cbranch_scc1 {Ltail}')
        a('s_waitcnt lgkmcnt(0)')
        mf(V_DEN, V_ONE)
        for c in range(4): a(f'v_and_or_b32 v{V_IDX+c}, v{V_IDX+c}, s{S_M}, v{sw(c)}')
        a(f's_add_u32 m0, s{S_RING}, s{S_SLOT}')
        mf(V_ACC, V_BF)
        dma(0)
        mf(V_ACC+4, V_BF+4)
        dma(1)
        mf(V_ACC+8, V_BF+8)
        dma(2)
        mf(V_ACC+12, V_BF+12)
        dma(3)
        a(f'v_readlane_b32 s{S_T0}, v{V_TAB}, s{S_J}')
        advance()
        a(f's_add_u32 s{S_J}, s{S_J}, 1')
        a(f'v_add_u32 v{V_G}, s{S_T0}, v{V_LST}')
        rowwait()
        reads()
        a(f'ds_read_b128 v[{V_IDX}:{V_IDX+3}], v{V_G}')
        a(f'{Lc}:')
        a(f's_sub_u32 s{S_LEFT}, s{S_LEFT}, 1')
        a(f's_cmp_lg_u32 s{S_LEFT}, 0')
        a(f's_cbranch_scc1 {Lt}')
        a(f'{Le}:')
        a(f's_lshl_b32 s{S_T0}, s{S_G}, 3')
        a(f's_add_u32 s{S_G}, s{S_G}, 1')
        self.group_end_math()
        a(f's_cmp_eq_u32 s{S_G}, 5')
        a(f's_cbranch_scc1 {Ld}')
        a(f's_and_b32 s{S_LEFT}, s{S_NPK}, 15')
        a(f's_lshr_b32 s{S_NPK}, s{S_NPK}, 4')
        a(f's_cmp_lg_u32 s{S_LEFT}, 0')
        a(f's_cbranch_scc1 {Lt}')
        a(f's_branch {Le}')
        a(f'{Ltail}:')
        a('s_waitcnt lgkmcnt(0)')
        mf(V_DEN, V_ONE)
        for j in range(4): mf(V_ACC+4*j, V_BF+4*j)
        advance()
        a('s_waitcnt vmcnt(0)')
        reads()
        a(f's_branch {Lc}')
        a(f'{Ld}:')

    def tail_consts(self):
        a = self.a
        a(f'v_and_b32 v{V_C}, 15, v{V_LANE}')
        a(f'v_lshrrev_b32 v92, 4, v{V_LANE}')
        a(f'v_bfe_u32 v{V_D}, v{V_C}, 1, 2')
        a(f'v_lshrrev_b32 v{V_E}, 3, v{V_C}')
        a(f'v_lshl_add_u32 v93, v{V_E}, 2, v{V_D}')
        a(f'v_and_b32 v{V_G}, 1, v{V_C}')
        a(f'v_lshlrev_b32 v{V_G}, 3, v{V_G}')
        a(f's_mul_i32 s{S_T0}, s{S_SET}, {4*RINGW}')
        a(f's_and_b32 s{S_T1}, s{S_SLICE}, 1')
        a(f's_lshl_b32 s{S_T2}, s{S_T1}, 13')
        a(f's_add_u32 s{S_T2}, s{S_T2}, s{S_T0}')
        a(f's_lshl_b32 s{S_T1}, s{S_T1}, 12')
        a(f's_add_u32 s{S_T1}, s{S_T1}, s{S_T0}')
        a(f'v_lshl_add_u32 v94, v{V_D}, 8, v{V_G}')
        a(f'v_lshl_add_u32 v94, v{V_E}, 10, v94')
        a(f'v_add_u32 v94, s{S_T2}, v94')
        a(f'v_lshl_add_u32 v95, v{V_D}, 7, v{V_G}')
        a(f'v_lshl_add_u32 v95, v{V_E}, 9, v95')
        a(f'v_add_u32 v95, s{S_T1}, v95')
        a(f'v_lshrrev_b32 v{V_B}, 4, v{V_LANE}')
        for par in range(2):
            a(f'v_add_u32 v{V_TW}, {4*par}, v{V_B}')
            a(f'v_xor_b32 v{V_D}, v{V_C}, v{V_TW}')
            a(f'v_lshlrev_b32 v{V_D}, 4, v{V_D}')
            a(f'v_lshl_add_u32 v{V_D}, v{V_B}, 8, v{V_D}')
            a(f'v_add_u32 v{104+par}, s{S_T0}, v{V_D}')
            a(f'v_and_b32 v{V_D}, 7, v{V_C}')
            a(f'v_xor_b32 v{V_D}, v{V_D}, v{V_TW}')
            a(f'v_lshlrev_b32 v{V_D}, 4, v{V_D}')
            a(f'v_lshl_add_u32 v{V_D}, v{V_B}, 7, v{V_D}')
            a(f'v_add_u32 v{106+par}, s{S_T0}, v{V_D}')

    def agg_write(self):
        a = self.a
        a('L_aggw:')
        if self.o.get('lprio') and self.o.get('gp1', -1) < 0:
            sk = a.label('gp0')
            a(f's_cmp_eq_u32 s{S_SET}, 0')
            a(f's_cbranch_scc1 {sk}')
            a('s_setprio 0')
            a(f'{sk}:')
        a('s_waitcnt vmcnt(0) lgkmcnt(0)')
        self.ts('aggdone')
        self.signal(1)
        for k in range(NA, min(NA+2, NPRE)): self.wload(k)
        self.waitfor(1, have=True)
        self.ts('B5')
        end = a.label('aggw_end'); h1 = a.label('aggw_h1')
        a(f's_cmp_eq_u32 s{S_HF}, 1')
        a(f's_cbranch_scc1 {h1}')
        for hf in range(2):
            if hf == 1: a(f'{h1}:')
            for gg in range(5):
                node0 = 20*hf + 4*gg
                mt, mb = node0 >> 4, node0 & 15
                TS = 1024 if mt < 2 else 512
                ad = V_AF + (gg & 1)
                a(f'v_add_u32 v{ad}, {mb}, v92')
                a(f'v_xor_b32 v{ad}, v{ad}, v93')
                a(f'v_lshl_add_u32 v{ad}, v{ad}, 4, v{94 if mt < 2 else 95}')
                for j in range(4):
                    pk = V_PK + 8*gg + 2*j
                    a(f'ds_write_b64 v{ad}, v[{pk}:{pk+1}] offset:{mt*16384 + 2*j*TS}')
            if hf == 0: a(f's_branch {end}')
        a(f'{end}:')
        if NA+2 < NPRE: self.wload(NA+2)
        self.setsync(2)
        self.ts('B6')

    def gemm(self):
        a = self.a
        n = NPRE
        AB = [80, 92]
        def aggread(t):
            buf = AB[t & 1]; par = t & 1
            for mt in range(2):
                a(f'ds_read_b128 v[{buf+4*mt}:{buf+4*mt+3}], v{104+par} offset:{mt*16384 + t*1024}')
            a(f'ds_read_b128 v[{buf+8}:{buf+11}], v{106+par} offset:{32768 + t*512}')
        if self.o.get('gp1', -1) >= 0:
            sk = a.label('gpa'); sk2 = a.label('gpb')
            a(f's_cmp_eq_u32 s{S_SET}, 0')
            a(f's_cbranch_scc1 {sk}')
            a(f's_setprio {self.o["gp1"]}')
            a(f's_branch {sk2}')
            a(f'{sk}:')
            a(f's_setprio {self.o["gp0"]}')
            a(f'{sk2}:')
        if self.o.get('gprio'):
            sk = a.label('gprio')
            a(f's_cmp_eq_u32 s{S_SET}, 0')
            a(f's_cbranch_scc1 {sk}')
            a(f's_setprio {self.o["gprio"]}')
            a(f'{sk}:')
        def aggread_list(t):
            buf = AB[t & 1]; par = t & 1
            return [f'ds_read_b128 v[{buf+4*mt}:{buf+4*mt+3}], v{104+par} offset:{mt*16384 + t*1024}' for mt in range(2)] + \
                   [f'ds_read_b128 v[{buf+8}:{buf+11}], v{106+par} offset:{32768 + t*512}']
        def wload_list(t):
            dst = V_W + 16*(t % n)
            return [f's_add_u32 s{S_T1}, s{S_WB}, {t*4096}'] + \
                   [f'buffer_load_dwordx4 v[{dst+4*j}:{dst+4*j+3}], v{V_WE}, s[{S_WS}:{S_WS+3}], s{S_T1} offen offset:{j*1024} {self.o.get("wfl", "sc1")}' for j in range(4)]
        zc = self.o.get('zcol', 0)
        if zc:
            for r in (AB[0]+8, AB[1]+8):
                for k in range(4): a(f'v_mov_b32 v{r+k}, 0')
            a(f's_mov_b32 s{S_EX2}, 0x00ff00ff')
            a(f's_mov_b32 s{S_EX2+1}, 0x00ff00ff')
        def masked(lst):
            if not zc: return lst
            return lst[:2] + [f's_mov_b64 exec, s[{S_EX2}:{S_EX2+1}]\n' + lst[2] + '\ns_mov_b64 exec, -1']
        for x in masked(aggread_list(0)): a(x)
        nxt = min(NA+3, NPRE)
        for t in range(16):
            waits = []
            if t >= NA: waits.append(f'vmcnt({4*(nxt - 1 - t)})')
            waits.append('lgkmcnt(0)')
            a('s_waitcnt ' + ' '.join(waits))
            fill = []
            if t + 1 < 16: fill += masked(aggread_list(t+1))
            if nxt < 16 and nxt - n <= t - 1:
                fill += wload_list(nxt); nxt += 1
            w = V_W + 16*(t % n); b = AB[t & 1]
            k = 0
            for mt in range(3):
                for j in range(4):
                    acc = V_ACC + 16*mt + 4*j
                    c = '0' if t == 0 else f'v[{acc}:{acc+3}]'
                    a(f'v_mfma_f32_16x16x32_bf16 v[{acc}:{acc+3}], v[{w+4*j}:{w+4*j+3}], v[{b+4*mt}:{b+4*mt+3}], {c}')
                    if k < len(fill): a(fill[k]); k += 1
            if t in (3, 7, 11): self.ts(f'g{t}')
        self.ts('gemm1')

    def finish(self):
        a = self.a
        P = V_W
        a(f's_mul_i32 s{S_T0}, s{S_W3}, {RINGW}')
        a(f's_add_u32 s{S_T0}, s{S_T0}, {4*RINGW}')
        a(f'v_add_u32 v{V_D}, s{S_T0}, v{V_WE}')
        s0 = a.label('fin0')
        a(f's_cmp_eq_u32 s{S_SET}, 0')
        a(f's_cbranch_scc1 {s0}')
        a('s_setprio 0')
        self.setsync(3)
        for i in range(12):
            a(f'ds_write_b128 v{V_D}, v[{V_ACC+4*i}:{V_ACC+4*i+3}] offset:{1024*i}')
        self.signal(4)
        a('s_branch L_fin')
        a(f'{s0}:')
        a(f'v_and_b32 v{V_A}, 15, v{V_LANE}')
        a(f'v_lshrrev_b32 v{V_B}, 4, v{V_LANE}')
        a(f'v_and_b32 v{V_C}, 1, v{V_B}')
        a(f'v_lshrrev_b32 v{V_G}, 1, v{V_B}')
        a(f'v_lshlrev_b32 v{V_C}, 5, v{V_C}')
        a(f'v_lshl_add_u32 v{V_C}, v{V_G}, 4, v{V_C}')
        a(f'v_lshl_add_u32 v{V_C}, v{V_A}, 9, v{V_C}')
        a(f's_mul_i32 s{S_T0}, s2, {40*512}')
        a(f's_lshl_b32 s{S_T1}, s{S_W3}, 7')
        a(f's_add_u32 s{S_T0}, s{S_T0}, s{S_T1}')
        a(f'v_cmp_gt_u32 s[{S_EX2}:{S_EX2+1}], 8, v{V_A}')
        self.waitfor(4, own=False)
        for i in range(12):
            a(f'ds_read_b128 v[{P+4*i}:{P+4*i+3}], v{V_D} offset:{1024*i}')
        fl = self.o.get('fline', 0)
        if fl:
            a(f'v_and_b32 v{V_G}, 0x3f, v{V_C}')
            a(f'v_mul_u32_u24 v{V_B}, 144, v{V_A}')
            a(f'v_add_u32 v{V_B}, v{V_B}, v{V_G}')
            a(f's_mul_i32 s{S_T1}, s{S_W3}, {RINGW}')
            a(f's_add_u32 s{S_T1}, s{S_T1}, {4*RINGW}')
            a(f'v_add_u32 v{V_B}, s{S_T1}, v{V_B}')
            a(f'v_lshrrev_b32 v{V_G}, 3, v{V_LANE}')
            a(f'v_and_b32 v{V_E}, 7, v{V_LANE}')
            a(f'v_mul_u32_u24 v{V_F}, 144, v{V_G}')
            a(f'v_lshl_add_u32 v{V_F}, v{V_E}, 4, v{V_F}')
            a(f'v_add_u32 v{V_F}, s{S_T1}, v{V_F}')
            a(f'v_lshlrev_b32 v{V_G}, 9, v{V_G}')
            a(f'v_lshl_add_u32 v{V_G}, v{V_E}, 4, v{V_G}')
        for mt in range(3):
            a(f's_waitcnt lgkmcnt({8-4*mt})') if not fl or mt == 0 else None
            if fl and mt == 0: a('s_waitcnt lgkmcnt(0)')
            for j in range(4):
                acc = V_ACC + 16*mt + 4*j; p = P + 16*mt + 4*j
                for h in (0, 2):
                    a(f'v_pk_add_f32 v[{acc+h}:{acc+h+1}], v[{acc+h}:{acc+h+1}], v[{p+h}:{p+h+1}]')
            for jp in range(2):
                R0 = P + 16*mt + 4*jp
                for jj in range(2):
                    acc = V_ACC + 16*mt + 4*(2*jp+jj)
                    a(f'v_cvt_pk_bf16_f32 v{R0+2*jj}, v{acc}, v{acc+1}')
                    a(f'v_cvt_pk_bf16_f32 v{R0+2*jj+1}, v{acc+2}, v{acc+3}')
            a(f's_add_u32 s{S_T1}, s{S_T0}, {mt*16*512}')
            a('s_nop 0')
            for jp in range(2):
                R0 = P + 16*mt + 4*jp
                a(f'v_permlane16_swap_b32 v{R0}, v{R0+2}')
                a(f'v_permlane16_swap_b32 v{R0+1}, v{R0+3}')
            if fl:
                for jp in range(2):
                    R0 = P + 16*mt + 4*jp
                    a(f'ds_write_b128 v{V_B}, v[{R0}:{R0+3}] offset:{mt*16*144 + 64*jp}')
                continue
            if mt == 2: a(f's_mov_b64 exec, s[{S_EX2}:{S_EX2+1}]')
            for jp in range(2):
                R0 = P + 16*mt + 4*jp
                a(f'buffer_store_dwordx4 v[{R0}:{R0+3}], v{V_C}, s[{S_OUT}:{S_OUT+3}], s{S_T1} offen offset:{64*jp} {self.o.get("ofl", "")}')
        if fl:
            a('s_waitcnt lgkmcnt(0)')
            for i in range(5):
                a(f'ds_read_b128 v[{V_ACC+4*i}:{V_ACC+4*i+3}], v{V_F} offset:{i*8*144}')
            for i in range(5):
                a(f's_add_u32 s{S_T1}, s{S_T0}, {i*8*512}')
                a(f's_waitcnt lgkmcnt({4-i})')
                a(f'buffer_store_dwordx4 v[{V_ACC+4*i}:{V_ACC+4*i+3}], v{V_G}, s[{S_OUT}:{S_OUT+3}], s{S_T1} offen {self.o.get("ofl", "")}')
        a('L_fin:')
        a('s_mov_b64 exec, -1')
        self.ts('end')
        if self.o.get('ts') == 1:
            a(f's_lshl_b32 s{S_T0}, s2, 3')
            a(f's_add_u32 s{S_T0}, s{S_T0}, s{S_WAVE}')
            a(f's_lshl_b32 s{S_T0}, s{S_T0}, 7')
            a(f's_add_u32 s{S_T0}, s{S_T0}, {WS_TS}')
            a(f'v_writelane_b32 v{V_TSR}, s{S_POLL}, 31')
            a(f'v_lshlrev_b32 v{V_A}, 2, v{V_LANE}')
            a(f'v_cmpx_gt_u32 vcc, 32, v{V_LANE}')
            a(f'buffer_store_dword v{V_TSR}, v{V_A}, s[{S_WS}:{S_WS+3}], s{S_T0} offen')
            a('s_mov_b64 exec, -1')

    def slow_path(self):
        from slowpath import emit_slow
        emit_slow(self)

    def build(self):
        a = self.a; o = self.o
        a(f'; @launch grid=({NB},1,1) block=(512,1,1) lds={LDS_SIZE}')
        a('.amdgcn_target "amdgcn-amd-amdhsa--gfx950"')
        a('.text')
        a(f'.globl {KNAME}')
        a('.p2align 8')
        a(f'.type {KNAME},@function')
        a(f'{KNAME}:')
        self.prologue()
        self.issue_loads()
        self.ts('issue')
        self.srd(S_DBG, S_KA+14, 256)
        a('s_barrier')
        self.ts('B0')
        self.late_consts()
        sk = a.label('nop0')
        a(f's_cmp_lg_u32 s{S_WAVE}, 0')
        a(f's_cbranch_scc1 {sk}')
        a(f'buffer_load_dwordx2 v[38:39], off, s[{S_DBG}:{S_DBG+3}], 0 sc1')
        a(f'{sk}:')
        a(f's_cmp_eq_u32 s{S_SET}, 1')
        a('s_cbranch_scc1 L_set1')
        self.t1_set0()
        a('s_branch L_mid')
        a('L_set1:')
        self.t1_set1()
        a('L_mid:')
        self.middle()
        self.aggregate()
        self.agg_write()
        self.gemm()
        self.finish()
        a('s_branch L_end')
        for fn in list(self.deferred): fn()
        a('L_hot_end:')
        n0 = len(self.deferred)
        self.slow_path()
        for fn in self.deferred[n0:]: fn()
        a('L_end:')
        if not o.get('noendwait'): a('s_waitcnt vmcnt(0)')
        a('s_endpgm')
        a('.section .rodata,"a"')
        a('.p2align 6')
        a(f'.amdhsa_kernel {KNAME}')
        a('  .amdhsa_next_free_vgpr 256')
        a('  .amdhsa_next_free_sgpr 102')
        a('  .amdhsa_accum_offset 256')
        a('  .amdhsa_group_segment_fixed_size 0')
        a('  .amdhsa_kernarg_size 72')
        a('  .amdhsa_user_sgpr_count 2')
        a('  .amdhsa_user_sgpr_kernarg_segment_ptr 1')
        a('  .amdhsa_system_sgpr_workgroup_id_x 1')
        a('  .amdhsa_float_denorm_mode_32 3')
        a('  .amdhsa_float_denorm_mode_16_64 3')
        a('.end_amdhsa_kernel')
        return a


def generate(path, **opt):
    global NA, NBB
    NA = opt.get('na', 2); NBB = opt.get('nb', 0)
    g = Gen(opt)
    a = g.build()
    probs = check(a.lines)
    open(path, 'w').write(a.text())
    json.dump(g.tsn, open(path + '.ts.json', 'w'))
    return probs

if __name__ == '__main__':
    ap = argparse.ArgumentParser()
    ap.add_argument('out')
    for name, dflt in (('ts', 0), ('cpf', 1), ('sweep', 1), ('edelay', 0), ('prio', 0), ('cvtidx', 1), ('sweep2', 1), ('gprio', 0), ('na', 2), ('nowb', 0), ('aprio', 0), ('touch', 0), ('tw', 7), ('lprio', 0), ('gp1', -1), ('gp0', 0), ('cpfw', 0), ('slowdbg', 0), ('zcol', 0), ('noendwait', 0), ('fline', 0), ('nb', 0)):
        ap.add_argument('--' + name, type=int, default=dflt)
    ap.add_argument('--tsf', default='')
    ap.add_argument('--wfl', default='sc1')
    ap.add_argument('--ofl', default='')
    args = ap.parse_args()
    o = vars(args); out = o.pop('out')
    if o['wfl'] == 'plain': o['wfl'] = ''
    o['ofl'] = o['ofl'].replace('_', ' ')
    p = generate(out, **o)
    print('hazards:', len(p))
```

```python
import sys, argparse, json
from asmcore import Asm, check

KNAME = 'gather_scatter__graph_attention_gat__graph_kernel'
NB = 250
WS_TABLE = 0
WS_UTAB = 0x400000
WS_STAB = 0x410000
WS_WFLG = 0x440000
WS_WSW = 0x480000
WS_TS = 0x500000
WS_SIZE = 0x600000
RINGW = 12288
R = 3
NPRE = 8
NA = 2
NBB = 0
IMG = 4*RINGW
CNT = IMG + 16384
AP = 8*RINGW
XCH = AP
SDST = AP + 40960
GCNT = SDST + 1024
UT = SDST + 2048
MISC = GCNT + 64
LIST = AP + 49152
LDS_SIZE = LIST + 5248
assert LIST % 8192 == 0 and SDST % 1024 == 0 and GCNT % 64 == 0 and LDS_SIZE <= 163840
M_NONCE = MISC
M_SLOW = MISC + 8
M_SCNT = MISC + 12
M_SYNC = MISC + 16
S_X, S_W, S_WS, S_SRC, S_DST, S_DBG, S_OUT = 4, 8, 12, 16, 20, 32, 36
S_WB = 3
S_TOT = 24
S_FIRST = 24
S_RET = 26
S_SYO, S_SYX = 28, 29
S_WAVE, S_SET, S_W3, S_HF = 40, 41, 42, 43
S_T = 44
S_SLICE, S_NPK = 48, 49
S_XSO = 52
S_RING, S_SLOT, S_J, S_DELTA = 56, 57, 58, 59
S_N = 60
S_G, S_LEFT, S_JC, S_AOFF = 60, 61, 62, 63
S_T0, S_T1, S_T2 = 65, 66, 67
S_EX, S_EX2 = 68, 70
S_KA = 72
S_TS = 90
S_C0, S_C1, S_C2, S_C3 = 92, 93, 94, 95
S_POLL, S_M = 96, 97
S_U0, S_U1, S_U2, S_U3 = 98, 99, 100, 101
V_TID, V_LANE = 0, 1
V_TR = 2
V_AW, V_LB, V_LST = 6, 7, 8
V_SWE, V_SWO = 9, 10
V_TAB = 11
V_IDX = 12
V_AF = 16
V_MF = 20
V_A, V_B, V_C, V_D, V_E, V_F, V_G = 24, 25, 26, 27, 28, 29, 30
V_ONE = 24
V_TSR = 31
V_ACC = 32
V_DEN = 48
V_PK = 52
V_TW, V_WE = 100, 23
V_UN = 104
V_W = 112
V_BF = 240

POLL_MAX = 200000
EMPTY = 0xfffff000


class Gen:
    def __init__(self, opt):
        self.o = opt
        self.a = Asm()
        self.tsn = {}
        self.deferred = []

    def ts(self, name):
        if not self.o.get('ts'): return
        tsf = self.o.get('tsf')
        if tsf and name != 'start' and name not in tsf.split(','): return
        a = self.a
        if name not in self.tsn: self.tsn[name] = len(self.tsn)
        idx = self.tsn[name]
        assert idx < 28
        a(f's_memrealtime s[{S_TS}:{S_TS+1}]')
        a('s_waitcnt lgkmcnt(0)')
        a(f'v_writelane_b32 v{V_TSR}, s{S_TS}, {idx}')

    def srd(self, r, base, size, shift=0):
        a = self.a
        if shift:
            a(f's_sub_u32 s{r}, s{base}, {shift}')
            a(f's_subb_u32 s{r+1}, s{base+1}, 0')
            a(f's_and_b32 s{r+1}, s{r+1}, 0xffff')
        else:
            a(f's_mov_b32 s{r}, s{base}')
            a(f's_and_b32 s{r+1}, s{base+1}, 0xffff')
        a(f's_mov_b32 s{r+2}, {size}')
        a(f's_mov_b32 s{r+3}, 0x20000')

    def tagcheck(self, base, acc, first, t0, t1):
        a = self.a
        if first:
            a(f'v_xor_b32 v{acc}, s{S_T}, v{base}')
            a(f'v_xor_b32 v{t0}, s{S_T+1}, v{base+1}')
            a(f'v_xor_b32 v{t1}, s{S_T+2}, v{base+2}')
            a(f'v_or3_b32 v{acc}, v{acc}, v{t0}, v{t1}')
            a(f'v_xor_b32 v{t0}, s{S_T+3}, v{base+3}')
            a(f'v_or_b32 v{acc}, v{acc}, v{t0}')
        else:
            a(f'v_xor_b32 v{t0}, s{S_T}, v{base}')
            a(f'v_xor_b32 v{t1}, s{S_T+1}, v{base+1}')
            a(f'v_or3_b32 v{acc}, v{acc}, v{t0}, v{t1}')
            a(f'v_xor_b32 v{t0}, s{S_T+2}, v{base+2}')
            a(f'v_xor_b32 v{t1}, s{S_T+3}, v{base+3}')
            a(f'v_or3_b32 v{acc}, v{acc}, v{t0}, v{t1}')

    def poll_check(self, acc, reload_fn, name):
        a = self.a
        rt = a.label(name + '_retry'); ok = a.label(name + '_ok')
        a(f'v_and_b32 v{acc}, 0xfff, v{acc}')
        a(f'v_cmp_ne_u32 vcc, 0, v{acc}')
        a(f's_cbranch_vccnz {rt}')
        a(f'{ok}:')
        def blk():
            a(f'{rt}:')
            a(f's_add_u32 s{S_POLL}, s{S_POLL}, 1')
            a(f's_cmp_gt_u32 s{S_POLL}, {POLL_MAX}')
            a(f's_cbranch_scc1 {ok}')
            a('s_sleep 2')
            reload_fn()
            a(f'v_and_b32 v{acc}, 0xfff, v{acc}')
            a(f'v_cmp_ne_u32 vcc, 0, v{acc}')
            a(f's_cbranch_vccnz {rt}')
            a(f's_branch {ok}')
        self.deferred.append(blk)

    def signal(self, k, own=True):
        a = self.a
        a(f'v_mov_b32 v{V_E}, s{S_SYO if own else S_SYX}')
        a(f'v_mov_b32 v{V_F}, 1')
        a('s_waitcnt lgkmcnt(0)')
        a('s_mov_b64 exec, 1')
        a(f'ds_add_u32 v{V_E}, v{V_F} offset:{4*k}')
        a('s_mov_b64 exec, -1')

    def waitfor(self, k, own=True, n=4, have=False):
        a = self.a
        if not have: a(f'v_mov_b32 v{V_E}, s{S_SYO if own else S_SYX}')
        lp = a.label('sync'); dn = a.label('syncd')
        a(f'{lp}:')
        a(f'ds_read_b32 v{V_F}, v{V_E} offset:{4*k}')
        a('s_waitcnt lgkmcnt(0)')
        a(f'v_cmp_gt_u32 vcc, {n}, v{V_F}')
        a(f's_cbranch_vccz {dn}')
        a(f's_add_u32 s{S_POLL}, s{S_POLL}, 1')
        a(f's_cmp_lt_u32 s{S_POLL}, {POLL_MAX*8}')
        a(f's_cbranch_scc1 {lp}')
        a(f'{dn}:')

    def setsync(self, k):
        self.signal(k); self.waitfor(k, have=True)

    def fill(self, base, nbytes, vq, vaddr):
        a = self.a
        n = nbytes // 16
        a(f'v_lshlrev_b32 v{vaddr}, 4, v{V_TID}')
        a(f'v_add_u32 v{vaddr}, {base}, v{vaddr}')
        r = 0
        while n > 0:
            if n >= 512:
                a(f'ds_write_b128 v{vaddr}, v[{vq}:{vq+3}] offset:{r*8192}')
            else:
                a(f'v_cmpx_gt_u32 vcc, {n}, v{V_TID}')
                a(f'ds_write_b128 v{vaddr}, v[{vq}:{vq+3}] offset:{r*8192}')
                a('s_mov_b64 exec, -1')
            n -= 512; r += 1

    def prologue(self):
        a = self.a; o = self.o
        a(f's_cmp_ge_u32 s2, {NB}')
        a('s_cbranch_scc1 L_end')
        a(f's_load_dwordx16 s[{S_KA}:{S_KA+15}], s[0:1], 0')
        a(f's_load_dwordx2 s[{S_KA+16}:{S_KA+17}], s[0:1], 64')
        if o.get('cpf', 1):
            a(f's_getpc_b64 s[{S_U0}:{S_U0+1}]')
            a('L_pc:')
            a('v_lshlrev_b32 v254, 6, v0')
            a('v_min_u32 v254, L_hot_end-L_pc, v254')
            a(f'global_load_dword v255, v254, s[{S_U0}:{S_U0+1}]')
            if o.get('cpfw') == 1: a('s_waitcnt vmcnt(0)')
        a('s_memrealtime s[50:51]')
        a(f'v_lshrrev_b32 v{V_A}, 6, v0')
        a(f'v_and_b32 v{V_LANE}, 63, v0')
        if o.get('ts'): a(f'v_mov_b32 v{V_TSR}, 0')
        a(f'v_readfirstlane_b32 s{S_WAVE}, v{V_A}')
        if not o.get('initlate'): self.img_init()
        a(f's_lshr_b32 s{S_SET}, s{S_WAVE}, 2')
        a(f's_and_b32 s{S_W3}, s{S_WAVE}, 3')
        a(f's_mov_b32 s{S_POLL}, 0')
        a(f'v_and_b32 v{V_C}, 15, v{V_LANE}')
        a(f'v_lshrrev_b32 v{V_E}, 4, v{V_LANE}')
        a(f'v_lshlrev_b32 v{V_E}, 4, v{V_E}')
        a(f'v_lshl_add_u32 v{V_F}, v{V_C}, 9, v{V_E}')
        a(f'v_and_b32 v{V_C}, 1, v{V_LANE}')
        a(f'v_cmp_eq_u32 vcc, 1, v{V_C}')
        a(f'v_lshlrev_b32 v{V_A}, 3, v{V_TID}')
        a(f'v_lshlrev_b32 v{V_B}, 2, v{V_TID}')
        a('s_waitcnt lgkmcnt(0)')
        if o.get('cpfw') == 2: a('s_waitcnt vmcnt(0)')
        self.ts('start')

    def tlb_touch(self):
        a = self.a; o = self.o
        k = S_KA
        sk = a.label('notouch')
        a(f's_cmp_lg_u32 s{S_WAVE}, {o.get("tw", 7)}')
        a(f's_cbranch_scc1 {sk}')
        if o['touch'] == 1:
            a(f's_lshr_b32 s{S_T0}, s2, 3')
            a(f's_cmp_lg_u32 s{S_T0}, 30')
            a(f's_cbranch_scc1 {sk}')
        pages = [(0, 0), (0, 1), (0, 2), (2, 0), (4, 0), (6, 0), (8, 0), (10, 0), (12, 0), (12, 1), (12, 2), (14, 0), (16, 0), (16, 1), (16, 2)]
        a(f'v_mov_b32 v250, s{k}')
        a(f'v_mov_b32 v251, s{k+1}')
        for l, (p, n) in enumerate(pages):
            if l == 0: continue
            if n:
                a(f's_add_u32 s{S_T0}, s{k+p}, {n*0x200000}')
                a(f's_addc_u32 s{S_T1}, s{k+p+1}, 0')
                a(f'v_writelane_b32 v250, s{S_T0}, {l}')
                a(f'v_writelane_b32 v251, s{S_T1}, {l}')
            else:
                a(f'v_writelane_b32 v250, s{k+p}, {l}')
                a(f'v_writelane_b32 v251, s{k+p+1}, {l}')
        a(f's_mov_b64 exec, {(1 << len(pages)) - 1}')
        a('global_load_dword v252, v[250:251], off')
        a('s_mov_b64 exec, -1')
        a(f'{sk}:')

    def img_init(self):
        a = self.a
        for i in range(4): a(f'v_mov_b32 v{104+i}, {EMPTY}')
        a(f'v_lshlrev_b32 v103, 4, v{V_TID}')
        a(f'v_add_u32 v103, {IMG}, v103')
        a('ds_write_b128 v103, v[104:107]')
        a('ds_write_b128 v103, v[104:107] offset:8192')
        for i in range(4): a(f'v_mov_b32 v{108+i}, 0')
        a(f'v_cmpx_gt_u32 vcc, 64, v{V_TID}')
        a('ds_write_b128 v103, v[108:111] offset:16384')
        a('s_mov_b64 exec, -1')

    def issue_loads(self):
        a = self.a
        if self.o.get('touch'): self.tlb_touch()
        s1 = a.label('iss1'); dn = a.label('issdone')
        k = S_KA
        a(f's_cmp_eq_u32 s{S_SET}, 1')
        a(f's_cbranch_scc1 {s1}')
        self.srd(S_DST, k+4, 640000)
        self.srd(S_SRC, k+2, 640000)
        a(f's_mul_i32 s{S_T0}, s2, 2560')
        a(f'buffer_load_dwordx2 v[32:33], v{V_A}, s[{S_DST}:{S_DST+3}], s{S_T0} offen')
        a(f'buffer_load_dwordx2 v[34:35], v{V_A}, s[{S_SRC}:{S_SRC+3}], s{S_T0} offen')
        a(f's_cmp_lt_u32 s{S_WAVE}, 2')
        a('s_cselect_b64 exec, -1, 0')
        a(f'buffer_load_dword v36, v{V_B}, s[{S_DST}:{S_DST+3}], s{S_T0} offen offset:2048')
        a(f'buffer_load_dword v37, v{V_B}, s[{S_SRC}:{S_SRC+3}], s{S_T0} offen offset:2048')
        self.srd(S_DBG, k+14, 256)
        a(f's_or_b32 s{S_T0}, s2, s{S_WAVE}')
        a('s_bitset1_b32 s50, 31')
        a('s_bitset1_b32 s51, 31')
        a('v_mov_b32 v38, s50')
        a('v_mov_b32 v39, s51')
        a(f's_cmp_eq_u32 s{S_T0}, 0')
        a('s_cselect_b32 exec_lo, 1, 0')
        a('s_mov_b32 exec_hi, 0')
        a(f'buffer_store_dwordx2 v[38:39], off, s[{S_DBG}:{S_DBG+3}], 0 sc1')
        a('s_mov_b64 exec, -1')
        a(f's_branch {dn}')
        a(f'{s1}:')
        a(f's_sub_u32 s{S_U0}, s{S_WAVE}, 4')
        self.srd(S_W, k+6, 524288)
        t3 = a.label('not3')
        a(f's_sub_u32 s{S_U1}, s2, 64')
        a(f's_cmp_ge_u32 s{S_U1}, 128')
        a(f's_cbranch_scc1 {t3}')
        a(f's_lshr_b32 s{S_T0}, s{S_U1}, 6')
        a(f's_lshl_b32 s{S_T0}, s{S_T0}, 16')
        a(f's_and_b32 s{S_T1}, s{S_U1}, 15')
        a(f's_lshl_b32 s{S_T1}, s{S_T1}, 12')
        a(f's_add_u32 s{S_T0}, s{S_T0}, s{S_T1}')
        a(f's_bfe_u32 s{S_T1}, s{S_U1}, 0x20004')
        a(f's_lshl_b32 s{S_T1}, s{S_T1}, 7')
        a(f's_add_u32 s{S_T0}, s{S_T0}, s{S_T1}')
        a(f's_lshl_b32 s{S_T1}, s{S_U0}, 5')
        a(f's_add_u32 s{S_T0}, s{S_T0}, s{S_T1}')
        a(f'v_and_b32 v{V_C}, 15, v{V_LANE}')
        a(f'v_lshlrev_b32 v{V_C}, 1, v{V_C}')
        a(f'v_lshl_add_u32 v{V_C}, v{V_E}, 6, v{V_C}')
        for i in range(8):
            a(f's_add_u32 s{S_T1}, s{S_T0}, {(i & 3)*131072}')
            a(f'buffer_load_ushort v{(96 if i % 2 == 0 else 92) + (i >> 1)}, v{V_C}, s[{S_W}:{S_W+3}], s{S_T1} offen offset:{(i >> 2)*512}')
        a(f's_branch {dn}')
        a(f'{t3}:')
        a(f's_cmp_lg_u32 s{S_U0}, 3')
        a(f's_cbranch_scc1 {dn}')
        a('s_cmp_ge_u32 s2, 64')
        a(f's_cbranch_scc1 {dn}')
        a(f's_lshl_b32 s{S_T0}, s2, 13')
        for t in range(8):
            a(f'buffer_load_dwordx4 v[{32+4*t}:{35+4*t}], v{V_F}, s[{S_W}:{S_W+3}], s{S_T0} offen offset:{64*t}')
        a(f'v_mov_b32 v{V_C}, s{S_KA+8}')
        a(f'v_mov_b32 v{V_D}, s{S_KA+10}')
        a(f'v_cndmask_b32 v{V_C}, v{V_C}, v{V_D}, vcc')
        a(f'v_mov_b32 v{V_D}, s{S_KA+9}')
        a(f'v_mov_b32 v{V_G}, s{S_KA+11}')
        a(f'v_cndmask_b32 v{V_D}, v{V_D}, v{V_G}, vcc')
        a(f's_lshr_b32 s{S_T1}, s2, 4')
        a(f's_lshl_b32 s{S_T1}, s{S_T1}, 9')
        a(f'v_add_u32 v{V_E}, s{S_T1}, v{V_E}')
        a(f'v_add_co_u32 v{V_C}, vcc, v{V_C}, v{V_E}')
        a('s_nop 1')
        a(f'v_addc_co_u32 v{V_D}, vcc, 0, v{V_D}, vcc')
        for t in range(8):
            a(f'global_load_dwordx4 v[{64+4*t}:{67+4*t}], v[{V_C}:{V_C+1}], off offset:{64*t}')
        a(f'{dn}:')

    def late_consts(self):
        a = self.a; o = self.o
        k = S_KA
        self.srd(S_WS, k+16, WS_SIZE)
        self.srd(S_X, k+0, 5120000+4096, shift=4096)
        self.srd(S_W, k+6, 524288)
        self.srd(S_DST, k+4, 640000)
        self.srd(S_SRC, k+2, 640000)
        self.srd(S_OUT, k+12, 5120000)
        a(f'v_and_b32 v{V_A}, 15, v{V_LANE}')
        a(f'v_lshrrev_b32 v{V_B}, 4, v{V_LANE}')
        a(f's_lshr_b32 s{S_HF}, s{S_W3}, 1')
        a(f's_mul_i32 s{S_RING}, s{S_WAVE}, {RINGW}')
        a(f's_and_b32 s{S_T0}, s{S_W3}, 1')
        a(f's_lshl_b32 s{S_T1}, s{S_SET}, 1')
        a(f's_add_u32 s{S_SLICE}, s{S_T0}, s{S_T1}')
        a(f'v_lshrrev_b32 v{V_C}, 3, v{V_A}')
        a(f'v_and_b32 v{V_D}, 1, v{V_B}')
        a(f'v_lshl_or_b32 v{V_C}, v{V_D}, 1, v{V_C}')
        a(f'v_lshrrev_b32 v{V_D}, 2, v{V_A}')
        a(f'v_lshlrev_b32 v{V_D}, 7, v{V_D}')
        a(f'v_lshl_add_u32 v{V_D}, v{V_B}, 10, v{V_D}')
        a(f'v_bfe_u32 v{V_E}, v{V_A}, 1, 1')
        a(f'v_lshl_add_u32 v{V_D}, v{V_E}, 4, v{V_D}')
        a(f'v_and_b32 v{V_E}, 1, v{V_A}')
        a(f'v_lshl_add_u32 v{V_D}, v{V_E}, 3, v{V_D}')
        a(f'v_add_u32 v{V_D}, s{S_RING}, v{V_D}')
        for j in range(4):
            a(f'v_xor_b32 v{V_E}, {j}, v{V_C}')
            a(f'v_lshl_add_u32 v{V_TR+j}, v{V_E}, 5, v{V_D}')
        a(f'v_lshlrev_b32 v{V_WE}, 4, v{V_LANE}')
        a(f'v_add_u32 v{V_AW}, {AP}, v{V_WE}')
        a(f'v_mov_b32 v{V_LB}, {LIST}')
        a(f'v_lshrrev_b32 v{V_C}, 3, v{V_LANE}')
        a(f'v_lshl_add_u32 v{V_LST}, v{V_C}, 4, v{V_LB}')
        a(f'v_and_b32 v{V_D}, 2, v{V_C}')
        a(f'v_and_b32 v{V_E}, 7, v{V_LANE}')
        a(f'v_xor_b32 v{V_E}, v{V_E}, v{V_D}')
        a(f'v_lshlrev_b32 v{V_SWE}, 4, v{V_E}')
        a(f'v_xor_b32 v{V_SWO}, 64, v{V_SWE}')
        a(f's_mov_b32 s{S_M}, 0xfffffe00')
        a(f's_lshl_b32 s{S_T0}, s{S_SLICE}, 7')
        for c in range(4):
            a(f's_add_u32 s{S_XSO+c}, s{S_T0}, {4096 - c*1024}')
        a(f's_mov_b32 s{S_C3}, {(-(R-1)*4096) & 0xffffffff}')
        a(f's_lshl_b32 s{S_WB}, s{S_WAVE}, 16')
        a(f's_add_u32 s{S_WB}, s{S_WB}, {WS_WSW}')
        a(f's_lshl_b32 s{S_T0}, s{S_SET}, 5')
        a(f's_add_u32 s{S_SYO}, s{S_T0}, {M_SYNC}')
        a(f's_xor_b32 s{S_T0}, s{S_T0}, 32')
        a(f's_add_u32 s{S_SYX}, s{S_T0}, {M_SYNC}')
        self.lds_reset()

    def lds_reset(self):
        a = self.a
        for i in range(4): a(f'v_mov_b32 v{104+i}, 0')
        self.fill(AP, 40960, 104, 103)
        a(f'v_lshlrev_b32 v103, 4, v{V_TID}')
        a(f'v_add_u32 v103, {GCNT}, v103')
        a(f'v_cmpx_gt_u32 vcc, 4, v{V_TID}')
        a(f'ds_write_b128 v103, v[104:107]')
        a('s_mov_b64 exec, -1')
        a(f'v_lshlrev_b32 v103, 3, v{V_TID}')
        a(f'v_add_u32 v103, {M_SLOW}, v103')
        a(f'v_cmpx_gt_u32 vcc, 10, v{V_TID}')
        a(f'ds_write_b64 v103, v[104:105]')
        a('s_mov_b64 exec, -1')
        for i in range(4): a(f'v_mov_b32 v{104+i}, 0x40000000')
        self.fill(LIST, 5248, 104, 103)

    def unit_consts(self, slot, glo, ghi, rb, mask):
        a = self.a
        U = V_UN + 4*slot
        a(f'v_mov_b32 v{V_C}, s{ghi}')
        a(f'v_mov_b32 v{V_D}, s{glo}')
        a(f'v_cndmask_b32 v{V_C}, v{V_C}, v{V_D}, s[{S_EX2}:{S_EX2+1}]')
        a(f'v_and_b32 v{U}, s{mask}, v{V_LANE}')
        a(f'v_add_u32 v{U}, s{rb}, v{U}')
        a(f'v_lshlrev_b32 v{U+1}, 2, v{V_C}')
        a(f'v_add_u32 v{U+1}, {GCNT}, v{U+1}')
        a(f'v_lshl_add_u32 v{V_E}, v{V_C}, 9, v{V_LB}')
        a(f'v_lshl_add_u32 v{U+2}, v{U}, 2, v{V_E}')
        a(f'v_lshlrev_b32 v{V_E}, 12, v{V_C}')
        a(f'v_lshrrev_b32 v{V_D}, 5, v{U}')
        a(f'v_lshl_add_u32 v{V_E}, v{V_D}, 10, v{V_E}')
        a(f'v_and_b32 v{V_D}, 3, v{U}')
        a(f'v_lshl_add_u32 v{V_E}, v{V_D}, 8, v{V_E}')
        a(f'v_bfe_u32 v{V_D}, v{U}, 2, 3')
        a(f'v_lshl_add_u32 v{V_E}, v{V_D}, 1, v{V_E}')
        a(f'v_add_u32 v{U+3}, {AP}, v{V_E}')

    def unit_setup(self):
        a = self.a
        a(f'v_cmp_gt_u32 vcc, 32, v{V_LANE}')
        a(f's_mov_b64 s[{S_EX2}:{S_EX2+1}], vcc')
        a(f's_mov_b32 s{S_U2}, 0')
        a(f's_mov_b32 s{S_U3}, 63')
        self.unit_consts(0, S_WAVE, S_WAVE, S_U2, S_U3)
        a(f's_add_u32 s{S_T0}, s{S_WAVE}, 8')
        a(f's_lshl_b32 s{S_T1}, s{S_WAVE}, 1')
        a(f's_sub_u32 s{S_T1}, s{S_T1}, 4')
        a(f's_add_u32 s{S_T2}, s{S_T1}, 1')
        a(f's_cmp_lt_u32 s{S_WAVE}, 2')
        a(f's_cselect_b32 s{S_C0}, s{S_T0}, s{S_T1}')
        a(f's_cselect_b32 s{S_C1}, s{S_T0}, s{S_T2}')
        a(f's_cselect_b32 s{S_U2}, 0, 64')
        a(f's_cselect_b32 s{S_U3}, 63, 31')
        a(f's_cmp_eq_u32 s{S_WAVE}, 7')
        a(f's_cselect_b32 s{S_C0}, 0, s{S_C0}')
        a(f's_cselect_b32 s{S_C1}, 0, s{S_C1}')
        a(f's_cselect_b32 s{S_U2}, 0x200, s{S_U2}')
        self.unit_consts(1, S_C0, S_C1, S_U2, S_U3)

    def read_tags(self):
        a = self.a
        a(f'v_mov_b32 v{V_A}, {M_NONCE}')
        a(f'ds_read_b64 v[{V_C}:{V_C+1}], v{V_A}')
        a('s_waitcnt lgkmcnt(0)')
        a(f'v_readfirstlane_b32 s{S_T0}, v{V_C}')
        a(f'v_readfirstlane_b32 s{S_T1}, v{V_C+1}')
        a('s_nop 1')
        a(f's_and_b32 s{S_T}, s{S_T0}, 0xfff')
        a(f's_bfe_u32 s{S_T+1}, s{S_T0}, 0xc000c')
        a(f's_bfe_u32 s{S_T+2}, s{S_T0}, 0x70018')
        a(f's_lshl_b32 s{S_T0}, s{S_T1}, 7')
        a(f's_or_b32 s{S_T+2}, s{S_T+2}, s{S_T0}')
        a(f's_bfe_u32 s{S_T+3}, s{S_T1}, 0xc0005')
        for k, (mul, add) in enumerate(((5, 0x123), (9, 0x456), (13, 0x789))):
            a(f's_mul_i32 s{S_T0}, s{S_T}, {mul}')
            a(f's_add_u32 s{S_T+1+k}, s{S_T+1+k}, s{S_T0}')
            a(f's_add_u32 s{S_T+1+k}, s{S_T+1+k}, {add}')
            a(f's_and_b32 s{S_T+1+k}, s{S_T+1+k}, 0xfff')

    def xrows(self):
        a = self.a
        sk = a.label('nox')
        a(f's_cmp_eq_u32 s{S_WAVE}, 7')
        a(f's_cbranch_scc1 {sk}')
        self.srd(S_X, S_KA+0, 5120000+4096, shift=4096)
        a(f's_mul_i32 s{S_T0}, s2, 40')
        a(f's_and_b32 s{S_T1}, s{S_WAVE}, 3')
        a(f's_lshl_b32 s{S_T1}, s{S_T1}, 4')
        a(f's_add_u32 s{S_T0}, s{S_T0}, s{S_T1}')
        a(f's_lshl_b32 s{S_T0}, s{S_T0}, 9')
        a(f's_add_u32 s{S_T0}, s{S_T0}, 4096')
        a(f'v_and_b32 v{V_A}, 15, v{V_LANE}')
        a(f'v_lshlrev_b32 v{V_A}, 9, v{V_A}')
        a(f'v_lshrrev_b32 v{V_B}, 4, v{V_LANE}')
        a(f'v_lshl_add_u32 v{V_A}, v{V_B}, 4, v{V_A}')
        for t in range(8):
            a(f'buffer_load_dwordx4 v[{40+4*t}:{43+4*t}], v{V_A}, s[{S_X}:{S_X+3}], s{S_T0} offen offset:{64*t}')
        a(f'{sk}:')

    def t1_set0(self):
        a = self.a; o = self.o
        a('s_waitcnt vmcnt(1)')
        sk = a.label('w0only')
        a(f's_cmp_eq_u32 s{S_WAVE}, 0')
        a(f's_cbranch_scc1 {sk}')
        a('s_waitcnt vmcnt(0)')
        a(f'{sk}:')
        self.ts('ld1')
        a(f's_mov_b32 s{S_C0}, -40')
        a(f's_mov_b32 s{S_C1}, {CNT}')
        a(f's_mov_b32 s{S_C2}, {IMG}')
        a(f'v_mov_b32 v{V_G}, 1')
        def rnd(vd, vs, t):
            a(f'v_mul_u32_u24 v{t}, 0xcccd, v{vd}')
            a(f'v_lshrrev_b32 v{t}, 21, v{t}')
            a(f'v_mad_i32_i24 v{t+1}, v{t}, s{S_C0}, v{vd}')
            a(f'v_lshlrev_b32 v{t+2}, 18, v{vs}')
            a(f'v_lshl_or_b32 v{t+1}, v{t+1}, 12, v{t+2}')
            a(f'v_lshl_add_u32 v{t+3}, v{t}, 2, s{S_C1}')
            a(f'v_lshl_add_u32 v{t+2}, v{t}, 6, s{S_C2}')
            a(f'ds_add_rtn_u32 v{t+3}, v{t+3}, v{V_G}')
        def wr(t):
            a(f'v_cmpx_gt_u32 vcc, 16, v{t+3}')
            a(f'v_lshl_add_u32 v{t+2}, v{t+3}, 2, v{t+2}')
            a(f'ds_write_b32 v{t+2}, v{t+1}')
            a('s_mov_b64 exec, -1')
        rnd(32, 34, 40); rnd(33, 35, 44)
        a(f's_cmp_lt_u32 s{S_WAVE}, 2')
        a(f's_cselect_b64 s[{S_EX2}:{S_EX2+1}], -1, 0')
        a(f's_mov_b64 exec, s[{S_EX2}:{S_EX2+1}]')
        rnd(36, 37, 48)
        a('s_mov_b64 exec, -1')
        a('s_waitcnt lgkmcnt(0)')
        wr(40); wr(44)
        a(f's_mov_b64 exec, s[{S_EX2}:{S_EX2+1}]')
        wr(48)
        self.ts('t1done')
        sk = a.label('nop1'); rt = a.label('nretry'); ok = a.label('nok')
        a(f's_cmp_lg_u32 s{S_WAVE}, 0')
        a(f's_cbranch_scc1 {sk}')
        def chk():
            a('s_waitcnt vmcnt(0)')
            a(f'v_readfirstlane_b32 s{S_T0}, v38')
            a(f'v_readfirstlane_b32 s{S_T1}, v39')
            a('s_nop 1')
            a(f's_and_b32 s{S_T0}, s{S_T0}, s{S_T1}')
            a(f's_bitcmp1_b32 s{S_T0}, 31')
        chk()
        a(f's_cbranch_scc0 {rt}')
        a(f'{ok}:')
        def blk():
            a(f'{rt}:')
            a(f's_add_u32 s{S_POLL}, s{S_POLL}, 1')
            a(f's_cmp_gt_u32 s{S_POLL}, {POLL_MAX}')
            a(f's_cbranch_scc1 {ok}')
            a(f'buffer_load_dwordx2 v[38:39], off, s[{S_DBG}:{S_DBG+3}], 0 sc1')
            chk()
            a(f's_cbranch_scc0 {rt}')
            a(f's_branch {ok}')
        self.deferred.append(blk)
        self.ts('nonce')
        if o.get('ts'): a(f'v_writelane_b32 v{V_TSR}, s{S_POLL}, 30')
        a(f'v_mov_b32 v{V_A}, {M_NONCE}')
        a(f'ds_write_b64 v{V_A}, v[38:39]')
        a(f'{sk}:')
        a('s_waitcnt lgkmcnt(0)')
        a('s_barrier')
        self.ts('B1')
        self.read_tags()
        self.unit_setup()
        a('s_barrier')

    def t1_set1(self):
        a = self.a; o = self.o
        sk = a.label('nou2')
        a(f's_cmp_lg_u32 s{S_U0}, 3')
        a(f's_cbranch_scc1 {sk}')
        a('s_cmp_ge_u32 s2, 64')
        a(f's_cbranch_scc1 {sk}')
        a('s_waitcnt vmcnt(0)')
        self.ts('ld1')
        for t in range(8):
            c = '0' if t == 0 else 'v[96:99]'
            a(f'v_mfma_f32_16x16x32_bf16 v[96:99], v[{32+4*t}:{35+4*t}], v[{64+4*t}:{67+4*t}], {c}')
        a('s_nop 7')
        for r in range(96, 100): a(f'v_mul_f32 v{r}, 0x3fb8aa3b, v{r}')
        for r in range(96, 100): a(f'v_add_u32 v{r}, 0x800, v{r}')
        a(f'{sk}:')
        sk = a.label('not3b')
        a(f's_sub_u32 s{S_U1}, s2, 64')
        a(f's_cmp_ge_u32 s{S_U1}, 128')
        a(f's_cbranch_scc1 {sk}')
        a(f's_lshl_b32 s{S_T0}, s{S_U1}, 12')
        a(f's_lshl_b32 s{S_T1}, s{S_U0}, 10')
        a(f's_add_u32 s{S_T0}, s{S_T0}, s{S_T1}')
        a(f's_add_u32 s{S_T0}, s{S_T0}, {WS_WSW}')
        a('s_waitcnt vmcnt(0)')
        for r in range(4): a(f'v_lshl_or_b32 v{96+r}, v{92+r}, 16, v{96+r}')
        a(f'buffer_store_dwordx4 v[96:99], v{V_WE}, s[{S_WS}:{S_WS+3}], s{S_T0} offen sc1')
        a('s_waitcnt vmcnt(0)')
        a(f'{sk}:')
        self.ts('t1done')
        a('s_waitcnt lgkmcnt(0)')
        a('s_barrier')
        self.ts('B1')
        self.read_tags()
        a(f's_mov_b32 s{S_C0}, 0xfffff000')
        sk = a.label('nou3')
        a(f's_cmp_lg_u32 s{S_U0}, 3')
        a(f's_cbranch_scc1 {sk}')
        a('s_cmp_ge_u32 s2, 64')
        a(f's_cbranch_scc1 {sk}')
        for k in range(4): a(f'v_and_b32 v{96+k}, s{S_C0}, v{96+k}')
        for k in range(4): a(f'v_or_b32 v{96+k}, s{S_T+k}, v{96+k}')
        a(f'v_and_b32 v{V_A}, 15, v{V_LANE}')
        a(f'v_lshrrev_b32 v{V_B}, 4, v{V_LANE}')
        a(f'v_lshl_add_u32 v{V_B}, v{V_A}, 2, v{V_B}')
        a(f'v_lshlrev_b32 v{V_B}, 4, v{V_B}')
        a(f's_lshl_b32 s{S_T0}, s2, 7')
        a(f's_add_u32 s{S_T0}, s{S_T0}, {WS_UTAB}')
        a(f'v_cmpx_gt_u32 vcc, 2, v{V_A}')
        a(f'buffer_store_dwordx4 v[96:99], v{V_B}, s[{S_WS}:{S_WS+3}], s{S_T0} offen sc1')
        a('s_mov_b64 exec, -1')
        self.ts('ust')
        a(f'{sk}:')
        a(f'v_subrev_u32 v{V_F}, 256, v{V_TID}')
        a(f'v_lshlrev_b32 v{V_A}, 4, v{V_F}')
        a(f'v_add_u32 v{V_A}, {IMG}, v{V_A}')
        a(f'v_lshrrev_b32 v{V_B}, 2, v{V_F}')
        a(f'v_lshlrev_b32 v{V_C}, 2, v{V_B}')
        a(f'v_add_u32 v{V_C}, {CNT}, v{V_C}')
        for i in range(4):
            a(f'ds_read_b128 v[{76+4*i}:{79+4*i}], v{V_A} offset:{4096*i}')
            a(f'ds_read_b32 v{92+i}, v{V_C} offset:{256*i}')
        a(f'v_mul_u32_u24 v{V_B}, 16000, v{V_B}')
        a(f'v_and_b32 v{V_D}, 3, v{V_F}')
        a(f'v_lshl_add_u32 v{V_B}, v{V_D}, 4, v{V_B}')
        a(f'v_cmp_eq_u32 s[{S_EX2}:{S_EX2+1}], 3, v{V_D}')
        a(f'v_mov_b32 v{V_E}, 0xffffe000')
        a(f's_lshl_b32 s{S_C1}, s2, 6')
        a('s_waitcnt lgkmcnt(0)')
        for i in range(4):
            a(f'v_cmp_lt_u32 vcc, 16, v{92+i}')
            a(f's_and_b64 vcc, vcc, s[{S_EX2}:{S_EX2+1}]')
            for k in range(3): a(f'v_or_b32 v{76+4*i+k}, s{S_T+k}, v{76+4*i+k}')
            a(f'v_cndmask_b32 v{79+4*i}, v{79+4*i}, v{V_E}, vcc')
            a(f'v_or_b32 v{79+4*i}, s{S_T+3}, v{79+4*i}')
            if i == 3: a(f'v_cmpx_gt_u32 vcc, 232, v{V_F}')
            a(f'buffer_store_dwordx4 v[{76+4*i}:{79+4*i}], v{V_B}, s[{S_WS}:{S_WS+3}], s{S_C1} offen sc1')
            if i == 3: a('s_mov_b64 exec, -1')
            else: a(f's_add_u32 s{S_C1}, s{S_C1}, 1024000')
        self.ts('p3')
        self.unit_setup()
        a('s_waitcnt vmcnt(0)')
        self.ts('tack')
        a('s_barrier')

    def middle(self):
        a = self.a; o = self.o
        E = 72
        a(f'v_and_b32 v{V_A}, 255, v{V_TID}')
        a(f'v_lshrrev_b32 v{V_B}, 8, v{V_TID}')
        a(f'v_lshlrev_b32 v{V_E}, 6, v{V_A}')
        a(f'v_lshl_add_u32 v{V_E}, v{V_B}, 4, v{V_E}')
        a(f's_mul_i32 s{S_C2}, s2, 16000')
        a(f'v_cmp_gt_u32 vcc, 250, v{V_A}')
        a(f's_mov_b64 s[{S_EX2}:{S_EX2+1}], vcc')
        for i in range(8): a(f'v_mov_b32 v{E+i}, {EMPTY}')
        a(f'v_lshlrev_b32 v{V_F}, 4, v{V_TID}')
        a(f's_mov_b32 s{S_C0}, {WS_UTAB}')
        for _ in range(o.get('edelay', 0)): a('s_sleep 2')
        self.ts('eld')
        def eload():
            a(f's_mov_b64 exec, s[{S_EX2}:{S_EX2+1}]')
            a(f'buffer_load_dwordx4 v[{E}:{E+3}], v{V_E}, s[{S_WS}:{S_WS+3}], s{S_C2} offen sc1')
            a(f'buffer_load_dwordx4 v[{E+4}:{E+7}], v{V_E}, s[{S_WS}:{S_WS+3}], s{S_C2} offen offset:32 sc1')
        def uload():
            a(f'buffer_load_dwordx4 v[84:87], v{V_F}, s[{S_WS}:{S_WS+3}], s{S_C0} offen sc1')
        eload(); a('s_mov_b64 exec, -1')
        uload()
        a('s_barrier')
        sk = a.label('nox1')
        a(f's_cmp_eq_u32 s{S_SET}, 0')
        a(f's_cbranch_scc1 {sk}')
        self.xrows()
        a(f'{sk}:')
        if o.get('sweep', 1): self.sweep(0, 11)
        else: a(f'buffer_load_dword v255, off, s[{S_WS}:{S_WS+3}], 0 sc1')
        w46 = a.label('w46'); w46e = a.label('w46e')
        a(f's_sub_u32 s{S_U0}, s{S_WAVE}, 4')
        a(f's_cmp_le_u32 s{S_U0}, 2')
        a(f's_cbranch_scc1 {w46}')
        a('s_waitcnt vmcnt(1)')
        a(f'{w46e}:')
        def blk():
            a(f'{w46}:')
            a('s_waitcnt vmcnt(9)')
            a(f's_branch {w46e}')
        self.deferred.append(blk)
        self.tagcheck(84, V_A, True, V_B, V_C)
        def ure():
            uload(); a('s_waitcnt vmcnt(0)'); self.tagcheck(84, V_A, True, V_B, V_C)
        self.poll_check(V_A, ure, 'u')
        self.ts('uval')
        a(f's_mov_b32 s{S_C0}, 0xfffff000')
        for i in range(4): a(f'v_and_b32 v{84+i}, s{S_C0}, v{84+i}')
        a(f'v_bfe_u32 v{V_A}, v{V_TID}, 2, 1')
        a(f'v_lshrrev_b32 v{V_B}, 7, v{V_TID}')
        a('v_cvt_pk_bf16_f32 v84, v84, v85')
        a('v_cvt_pk_bf16_f32 v85, v86, v87')
        a(f'v_lshl_add_u32 v{V_A}, v{V_A}, 2, v{V_B}')
        a(f'v_mul_u32_u24 v{V_A}, 528, v{V_A}')
        a(f'v_bfe_u32 v{V_B}, v{V_TID}, 3, 4')
        a(f'v_lshl_add_u32 v{V_A}, v{V_B}, 5, v{V_A}')
        a(f'v_and_b32 v{V_B}, 3, v{V_TID}')
        a(f'v_lshl_add_u32 v{V_A}, v{V_B}, 3, v{V_A}')
        a(f'v_add_u32 v{V_A}, {UT}, v{V_A}')
        a(f'ds_write_b64 v{V_A}, v[84:85]')
        a('s_waitcnt lgkmcnt(0)')
        a('s_barrier')
        self.ts('B2')
        a(f's_mov_b64 exec, s[{S_EX2}:{S_EX2+1}]')
        def echeck():
            self.tagcheck(E, V_A, True, V_B, V_C); self.tagcheck(E+4, V_A, False, V_B, V_C)
        echeck()
        def ere():
            eload(); a('s_waitcnt vmcnt(0)'); echeck()
        self.poll_check(V_A, ere, 'e')
        self.ts('eval')
        a(f's_mov_b32 s{S_C0}, 0xfffc0000')
        a(f's_mov_b32 s{S_C1}, {GCNT}')
        a(f's_movk_i32 s{S_U1}, 0x1e00')
        a(f'v_mov_b32 v{V_G}, 1')
        def sort4(k0):
            for k in range(k0, k0+4):
                a(f'v_cmpx_gt_u32 vcc, s{S_C0}, v{E+k}')
                a(f'v_lshrrev_b32 v{V_A}, 12, v{E+k}')
                a(f'v_and_or_b32 v{V_A}, v{V_A}, 60, s{S_C1}')
                a(f'ds_add_rtn_u32 v{80+(k&3)}, v{V_A}, v{V_G}')
            a(f's_mov_b64 exec, s[{S_EX2}:{S_EX2+1}]')
            a('s_waitcnt lgkmcnt(0)')
            for k in range(k0, k0+4):
                a(f'v_cmpx_gt_u32 vcc, s{S_C0}, v{E+k}')
                a(f'v_lshrrev_b32 v{V_A}, 5, v{E+k}')
                a(f'v_and_or_b32 v{V_A}, v{V_A}, s{S_U1}, v{V_LB}')
                a(f'v_lshl_add_u32 v{V_A}, v{80+(k&3)}, 2, v{V_A}')
                a(f'v_lshrrev_b32 v{V_B}, 9, v{E+k}')
                a(f'ds_write_b32 v{V_A}, v{V_B}')
            a(f's_mov_b64 exec, s[{S_EX2}:{S_EX2+1}]')
        sort4(0)
        rare = a.label('rare'); back = a.label('rareb')
        a(f'v_cmp_gt_u32 vcc, s{S_C0}, v{E+4}')
        a(f's_cbranch_vccnz {rare}')
        a(f'{back}:')
        def blk():
            a(f'{rare}:')
            sort4(4)
            a(f'v_lshrrev_b32 v{V_A}, 12, v{E+7}')
            a(f'v_cmpx_eq_u32 vcc, 0xffffe, v{V_A}')
            a(f'v_mov_b32 v{V_A}, {M_SLOW}')
            a(f'ds_write_b32 v{V_A}, v{V_G}')
            a(f's_mov_b64 exec, s[{S_EX2}:{S_EX2+1}]')
            a(f's_branch {back}')
        self.deferred.append(blk)
        a('s_mov_b64 exec, -1')
        a('s_waitcnt lgkmcnt(0)')
        a('s_barrier')
        self.ts('B3')
        sk = a.label('nos')
        a(f's_sub_u32 s{S_U0}, s{S_WAVE}, 4')
        a(f's_cmp_gt_u32 s{S_U0}, 2')
        a(f's_cbranch_scc1 {sk}')
        a(f's_mov_b32 s{S_C0}, 0xfffff000')
        a(f'v_and_b32 v{V_A}, 7, v{V_LANE}')
        a(f'v_mul_u32_u24 v{V_A}, 528, v{V_A}')
        a(f'v_lshrrev_b32 v{V_B}, 4, v{V_LANE}')
        a(f'v_lshl_add_u32 v{V_A}, v{V_B}, 4, v{V_A}')
        a(f'v_add_u32 v{V_A}, {UT}, v{V_A}')
        UF = 208
        for t in range(8):
            a(f'ds_read_b128 v[{UF+4*t}:{UF+4*t+3}], v{V_A} offset:{64*t}')
        a(f'v_and_b32 v{V_A}, 15, v{V_LANE}')
        a(f's_lshl_b32 s{S_T0}, s{S_U0}, 4')
        a(f'v_add_u32 v{V_A}, s{S_T0}, v{V_A}')
        a(f'v_cmp_gt_u32 s[{S_EX}:{S_EX+1}], 40, v{V_A}')
        a(f'v_lshlrev_b32 v{V_C}, 4, v{V_A}')
        a(f's_mul_i32 s{S_T1}, s2, 640')
        a(f's_add_u32 s{S_T1}, s{S_T1}, {WS_STAB}')
        a(f'v_add_u32 v{V_D}, {SDST}, v{V_C}')
        a('s_waitcnt vmcnt(1) lgkmcnt(0)')
        self.ts('sfr')
        for t in range(8):
            c = '0' if t == 0 else 'v[88:91]'
            a(f'v_mfma_f32_16x16x32_bf16 v[88:91], v[{UF+4*t}:{UF+4*t+3}], v[{40+4*t}:{43+4*t}], {c}')
        a(f'v_cmp_eq_u32 vcc, 0, v{V_B}')
        a(f's_and_b64 s[{S_T0+1}:{S_T0+2}], vcc, s[{S_EX}:{S_EX+1}]')
        a(f'v_cmp_eq_u32 vcc, 1, v{V_B}')
        a(f's_and_b64 vcc, vcc, s[{S_EX}:{S_EX+1}]')
        a('s_nop 3')
        for k in range(4): a(f'v_add_u32 v{92+k}, 0x800, v{88+k}')
        for k in range(4): a(f'v_and_b32 v{92+k}, s{S_C0}, v{92+k}')
        for k in range(4): a(f'v_or_b32 v{92+k}, s{S_T+k}, v{92+k}')
        a('s_mov_b64 exec, vcc')
        a(f'ds_write_b128 v{V_D}, v[88:91]')
        a(f's_mov_b64 exec, s[{S_T0+1}:{S_T0+2}]')
        a(f's_mul_i32 s{S_T1}, s2, 640')
        a(f's_add_u32 s{S_T1}, s{S_T1}, {WS_STAB}')
        a(f'buffer_store_dwordx4 v[92:95], v{V_C}, s[{S_WS}:{S_WS+3}], s{S_T1} offen sc1')
        a('s_mov_b64 exec, -1')
        self.ts('sst')
        a(f'{sk}:')
        self.steptab_read()
        a('s_waitcnt lgkmcnt(0)')
        self.steptab()
        self.xprologue()
        self.ts('xp')
        a('s_waitcnt lgkmcnt(0)')
        a('s_barrier')
        self.ts('B3u')
        for t in range(NA - NBB): self.wload(t)
        for u in range(2):
            U = V_UN + 4*u
            a(f'ds_read_b32 v{34+u}, v{U+1}')
            a(f'ds_read_b32 v{32+u}, v{U+2}')
        a(f's_mov_b32 s{S_C0}, {WS_STAB}')
        a(f's_movk_i32 s{S_U1}, 0x3f0')
        a(f'v_mov_b32 v{V_F}, {SDST}')
        a('s_waitcnt lgkmcnt(0)')
        self.unit_loads(0); self.unit_loads(1)
        self.ts('sld')
        a('s_waitcnt vmcnt(0) lgkmcnt(0)')
        def scheck():
            a(f'v_mov_b32 v{V_F}, 0')
            for u in range(2):
                a(f'v_cmpx_gt_u32 vcc, v{34+u}, v{V_UN+4*u}')
                self.tagcheck(40+4*u, V_F, False, V_B, V_C)
                a('s_mov_b64 exec, -1')
        scheck()
        def sre():
            a(f's_mov_b32 s{S_C0}, {WS_STAB}')
            for u in range(2):
                a(f'v_cmpx_gt_u32 vcc, v{34+u}, v{V_UN+4*u}')
                a(f'buffer_load_dwordx4 v[{40+4*u}:{43+4*u}], v{36+u}, s[{S_WS}:{S_WS+3}], s{S_C0} offen sc1')
                a('s_mov_b64 exec, -1')
            a('s_waitcnt vmcnt(0)')
            scheck()
        self.poll_check(V_F, sre, 's')
        self.ts('sval')
        for t in range(NA - NBB, NA): self.wload(t)
        a(f's_mov_b32 s{S_C0}, 0xfffff000')
        for u in range(2): self.unit_weights(u)
        self.rare_c_units()
        self.tail_consts()
        a('s_waitcnt lgkmcnt(0)')
        a('s_barrier')
        self.ts('B4')

    def unit_loads(self, u):
        a = self.a
        U = V_UN + 4*u
        a(f'v_cmpx_gt_u32 vcc, v{34+u}, v{U}')
        a(f'v_lshrrev_b32 v{V_A}, 5, v{32+u}')
        a(f'v_and_b32 v{36+u}, 0x3fff0, v{V_A}')
        a(f'v_lshlrev_b32 v{V_A}, 1, v{32+u}')
        a(f'v_and_or_b32 v{38+u}, v{V_A}, s{S_U1}, v{V_F}')
        a(f'buffer_load_dwordx4 v[{40+4*u}:{43+4*u}], v{36+u}, s[{S_WS}:{S_WS+3}], s{S_C0} offen sc1')
        a(f'ds_read_b128 v[{48+4*u}:{51+4*u}], v{38+u}')
        a('s_mov_b64 exec, -1')

    def unit_weights(self, u):
        a = self.a
        U = V_UN + 4*u; sv = 40+4*u; dv = 48+4*u; le = 32+u
        a(f'v_cmpx_gt_u32 vcc, v{34+u}, v{U}')
        for h in range(4): a(f'v_and_b32 v{sv+h}, s{S_C0}, v{sv+h}')
        for h in (0, 2): a(f'v_pk_add_f32 v[{sv+h}:{sv+h+1}], v[{sv+h}:{sv+h+1}], v[{dv+h}:{dv+h+1}]')
        for h in range(4): a(f'v_mul_f32 v{dv+h}, 0x3e4ccccd, v{sv+h}')
        for h in range(4): a(f'v_max_f32 v{sv+h}, v{sv+h}, v{dv+h}')
        for h in range(4): a(f'v_exp_f32 v{sv+h}, v{sv+h}')
        a(f'v_bfe_u32 v{V_A}, v{le}, 3, 2')
        a(f'v_lshl_add_u32 v{V_A}, v{V_A}, 6, v{U+3}')
        a(f'v_cvt_pk_bf16_f32 v{dv}, v{sv}, v{sv+1}')
        a(f'v_cvt_pk_bf16_f32 v{dv+1}, v{sv+2}, v{sv+3}')
        a(f'ds_write_b16 v{V_A}, v{dv}')
        a(f'ds_write_b16_d16_hi v{V_A}, v{dv} offset:16')
        a(f'ds_write_b16 v{V_A}, v{dv+1} offset:32')
        a(f'ds_write_b16_d16_hi v{V_A}, v{dv+1} offset:48')
        a('s_mov_b64 exec, -1')

    def rare_c_units(self):
        a = self.a
        rare = a.label('rareC'); back = a.label('rareCb')
        a(f's_cmp_lg_u32 s{S_AOFF}, 0')
        a(f's_cbranch_scc1 {rare}')
        a(f'{back}:')
        def blk():
            a(f'{rare}:')
            a(f's_cmp_gt_u32 s{S_WAVE}, 4')
            a(f's_cbranch_scc1 {back}')
            a(f'v_cmp_gt_u32 vcc, 32, v{V_LANE}')
            a(f's_mov_b64 s[{S_EX2}:{S_EX2+1}], vcc')
            a(f's_lshl_b32 s{S_U0}, s{S_WAVE}, 1')
            a(f's_add_u32 s{S_U1}, s{S_U0}, 1')
            a(f's_mov_b32 s{S_U2}, 96'); a(f's_mov_b32 s{S_U3}, 31')
            self.unit_consts(0, S_U0, S_U1, S_U2, S_U3)
            a(f'ds_read_b32 v34, v{V_UN+1}')
            a(f'ds_read_b32 v32, v{V_UN+2}')
            a(f's_mov_b32 s{S_C0}, {WS_STAB}')
            a(f's_movk_i32 s{S_U1}, 0x3f0')
            a(f'v_mov_b32 v{V_F}, {SDST}')
            a('s_waitcnt lgkmcnt(0)')
            self.unit_loads(0)
            a('s_waitcnt vmcnt(0) lgkmcnt(0)')
            def chk():
                a(f'v_mov_b32 v{V_F}, 0')
                a(f'v_cmpx_gt_u32 vcc, v34, v{V_UN}')
                self.tagcheck(40, V_F, False, V_B, V_C)
                a('s_mov_b64 exec, -1')
                a(f'v_and_b32 v{V_F}, 0xfff, v{V_F}')
                a(f'v_cmp_ne_u32 vcc, 0, v{V_F}')
            lp = a.label('cpoll'); dn = a.label('cdone')
            a(f'{lp}:')
            chk()
            a(f's_cbranch_vccz {dn}')
            a(f's_add_u32 s{S_POLL}, s{S_POLL}, 1')
            a(f's_cmp_gt_u32 s{S_POLL}, {POLL_MAX}')
            a(f's_cbranch_scc1 {dn}')
            a(f'v_cmpx_gt_u32 vcc, v34, v{V_UN}')
            a(f'buffer_load_dwordx4 v[40:43], v36, s[{S_WS}:{S_WS+3}], s{S_C0} offen sc1')
            a('s_mov_b64 exec, -1')
            a('s_waitcnt vmcnt(0)')
            a(f's_branch {lp}')
            a(f'{dn}:')
            a(f's_mov_b32 s{S_C0}, 0xfffff000')
            self.unit_weights(0)
            a(f's_branch {back}')
        self.deferred.append(blk)

    def steptab_read(self):
        a = self.a
        a(f'v_lshlrev_b32 v{V_A}, 2, v{V_LANE}')
        a(f'v_add_u32 v{V_A}, {GCNT}, v{V_A}')
        a(f'v_mov_b32 v{V_B}, {M_SLOW}')
        a(f'ds_read_b32 v84, v{V_A}')
        a(f'ds_read_b32 v85, v{V_B}')

    def steptab(self):
        a = self.a
        a('v_cmp_lt_u32 vcc, 0x80, v84')
        a(f's_and_b32 s{S_T0}, vcc_lo, 0x3ff')
        a(f'v_readfirstlane_b32 s{S_T1}, v85')
        a('v_cmp_lt_u32 vcc, 0x60, v84')
        a(f's_and_b32 s{S_AOFF}, vcc_lo, 0x3ff')
        a(f's_or_b32 s{S_T0}, s{S_T0}, s{S_T1}')
        a(f's_cmp_lg_u32 s{S_T0}, 0')
        a('s_cbranch_scc1 L_slow')
        a(f'v_add_u32 v84, 31, v84')
        a(f'v_lshrrev_b32 v84, 5, v84')
        a(f's_mul_i32 s{S_T2}, s{S_HF}, 5')
        a(f's_mov_b32 s{S_T1}, s{S_T2}')
        N = (S_U0, S_U1, S_U2, S_U3, S_C0)
        for g in range(5):
            a(f'v_readlane_b32 s{N[g]}, v84, s{S_T1}')
            if g < 4: a(f's_add_u32 s{S_T1}, s{S_T1}, 1')
        a(f's_lshl_b32 s{S_T2}, s{S_T2}, 9')
        a(f'v_mov_b32 v{V_TAB}, 5120')
        a(f's_mov_b32 s{S_T0}, 0')
        for g in range(5):
            a(f'v_subrev_u32 v{V_A}, s{S_T0}, v{V_LANE}')
            a(f'v_lshlrev_b32 v{V_A}, 7, v{V_A}')
            a(f'v_cmp_le_u32 vcc, s{S_T0}, v{V_LANE}')
            a(f'v_add_u32 v{V_A}, s{S_T2}, v{V_A}')
            a(f's_add_u32 s{S_T0}, s{S_T0}, s{N[g]}')
            a(f's_add_u32 s{S_T2}, s{S_T2}, 512')
            a(f'v_cndmask_b32 v{V_TAB}, v{V_TAB}, v{V_A}, vcc')
        a(f'v_mov_b32 v{V_A}, 5120')
        a(f'v_cmp_le_u32 vcc, s{S_T0}, v{V_LANE}')
        a(f's_mov_b32 s{S_TOT}, s{S_T0}')
        a(f's_lshl_b32 s{S_NPK}, s{N[4]}, 4')
        for g in (3, 2, 1, 0):
            a(f's_or_b32 s{S_NPK}, s{S_NPK}, s{N[g]}')
            if g: a(f's_lshl_b32 s{S_NPK}, s{S_NPK}, 4')
        a(f'v_cndmask_b32 v{V_TAB}, v{V_TAB}, v{V_A}, vcc')

    def idx_read(self):
        a = self.a
        a(f'v_readlane_b32 s{S_T0}, v{V_TAB}, s{S_J}')
        a(f's_add_u32 s{S_J}, s{S_J}, 1')
        a('s_nop 0')
        a(f'v_add_u32 v{V_G}, s{S_T0}, v{V_LST}')
        a(f'ds_read_b128 v[{V_IDX}:{V_IDX+3}], v{V_G}')

    def xprologue(self):
        a = self.a
        T = 92
        a('s_nop 0')
        for j in range(R):
            a(f'v_readlane_b32 s{S_T0}, v{V_TAB}, {j}')
            a('s_nop 1')
            a(f'v_add_u32 v{V_G}, s{S_T0}, v{V_LST}')
            a(f'ds_read_b128 v[{T+4*j}:{T+4*j+3}], v{V_G}')
        a(f's_mov_b32 s{S_J}, {R}')
        a(f's_mov_b32 s{S_SLOT}, 0')
        a('s_waitcnt lgkmcnt(0)')
        for j in range(R):
            a(f's_add_u32 m0, s{S_RING}, {j*4096}')
            for c in range(4):
                sw = V_SWE if c % 2 == 0 else V_SWO
                a(f'v_and_or_b32 v{T+4*j+c}, v{T+4*j+c}, s{S_M}, v{sw}')
            for c in range(4):
                a(f'buffer_load_dwordx4 v{T+4*j+c}, s[{S_X}:{S_X+3}], s{S_XSO+c} offen offset:{c*1024} lds')
        self.idx_read()

    def sweep(self, base, shift, dst=255, tmp=254):
        a = self.a
        a(f's_lshr_b32 s{S_T0}, s2, 3')
        a(f's_lshl_b32 s{S_T0}, s{S_T0}, 3')
        a(f's_add_u32 s{S_T0}, s{S_T0}, s{S_WAVE}')
        a(f's_lshl_b32 s{S_T0}, s{S_T0}, {shift}')
        a(f's_add_u32 s{S_T0}, s{S_T0}, {WS_WSW + base}')
        a(f'v_lshlrev_b32 v{tmp}, 7, v{V_LANE}')
        a(f'v_cmpx_gt_u32 vcc, {(1 << shift) >> 7}, v{V_LANE}')
        a(f'buffer_load_dword v{dst}, v{tmp}, s[{S_WS}:{S_WS+3}], s{S_T0} offen sc1')
        a('s_mov_b64 exec, -1')

    def wflag_load(self, dst):
        a = self.a
        a(f's_lshl_b32 s{S_T1}, s{S_WAVE}, 10')
        a(f's_add_u32 s{S_T1}, s{S_T1}, {WS_WFLG}')
        a(f'buffer_load_dwordx4 v[{dst}:{dst+3}], v{V_WE}, s[{S_WS}:{S_WS+3}], s{S_T1} offen sc1')

    def wload(self, t):
        a = self.a
        dst = V_W + 16*(t % NPRE)
        a(f's_add_u32 s{S_T1}, s{S_WB}, {t*4096}')
        for j in range(4):
            a(f'buffer_load_dwordx4 v[{dst+4*j}:{dst+4*j+3}], v{V_WE}, s[{S_WS}:{S_WS+3}], s{S_T1} offen offset:{j*1024} {self.o.get("wfl", "sc1")}')

    def group_end_math(self):
        a = self.a
        for h in range(4): a(f'v_fmaak_f32 v{V_DEN+h}, 4.0, v{V_DEN+h}, 0x3189705f')
        for h in range(4): a(f'v_rcp_f32 v{V_DEN+h}, v{V_DEN+h}')
        a('s_nop 0')
        for j in range(4):
            for h in (0, 2):
                r = V_ACC + 4*j + h
                a(f'v_pk_mul_f32 v[{r}:{r+1}], v[{r}:{r+1}], v[{V_DEN+h}:{V_DEN+h+1}]')
        if self.o.get('cvtidx', 1):
            a(f's_set_gpr_idx_on s{S_T0}, gpr_idx(DST)')
            a('s_nop 0')
            for j in range(4):
                for h in (0, 2):
                    r = V_ACC + 4*j + h
                    a(f'v_cvt_pk_bf16_f32 v{V_PK + 2*j + h//2}, v{r}, v{r+1}')
            a('s_set_gpr_idx_off')
        else:
            for j in range(4):
                for h in (0, 2):
                    r = V_ACC + 4*j + h
                    a(f'v_cvt_pk_bf16_f32 v{92 + 2*j + h//2}, v{r}, v{r+1}')
            a(f's_set_gpr_idx_on s{S_T0}, gpr_idx(DST)')
            a('s_nop 0')
            for k in range(8): a(f'v_mov_b32 v{V_PK+k}, v{92+k}')
            a('s_set_gpr_idx_off')
        for i in range(0, 20, 2): a(f'v_mov_b64 v[{V_ACC+i}:{V_ACC+i+1}], 0')

    def aggregate(self):
        a = self.a; o = self.o
        for i in range(0, 20, 2): a(f'v_mov_b64 v[{V_ACC+i}:{V_ACC+i+1}], 0')
        for i in range(4): a(f'v_mov_b32 v{V_ONE+i}, 0x3f803f80')
        if o.get('aprio'):
            sk = a.label('aprio')
            a(f's_cmp_eq_u32 s{S_SET}, 0')
            a(f's_cbranch_scc1 {sk}')
            a(f's_setprio {o["aprio"]}')
            a(f'{sk}:')
            if o.get('lprio'):
                sk = a.label('lprio')
                a(f's_cmp_eq_u32 s{S_SET}, 1')
                a(f's_cbranch_scc1 {sk}')
                a(f's_setprio {o["lprio"]}')
                a(f'{sk}:')
        a(f's_movk_i32 s{S_C2}, 0x1000')
        a(f's_mov_b32 s{S_G}, 0')
        a(f's_mov_b32 s{S_JC}, 0')
        def addr():
            a(f'v_readlane_b32 s{S_T1}, v{V_TAB}, s{S_JC}')
            a(f's_add_u32 s{S_JC}, s{S_JC}, 1')
            a(f's_lshl_b32 s{S_T1}, s{S_T1}, 3')
            a(f'v_add_u32 v{V_TW}, s{S_T1}, v{V_AW}')
        def reads():
            a(f'ds_read_b128 v[{V_AF}:{V_AF+3}], v{V_TW}')
            for j in range(4):
                a(f'ds_read_b64_tr_b16 v[{V_BF+4*j}:{V_BF+4*j+1}], v{V_TR+j}')
                a(f'ds_read_b64_tr_b16 v[{V_BF+4*j+2}:{V_BF+4*j+3}], v{V_TR+j} offset:512')
        def rowwait():
            a(f's_waitcnt vmcnt({4*(R-1)})')
        a(f's_and_b32 s{S_LEFT}, s{S_NPK}, 15')
        a(f's_lshr_b32 s{S_NPK}, s{S_NPK}, 4')
        addr()
        rowwait()
        reads()
        Lt = a.label('agg_top'); Le = a.label('agg_ge'); Ld = a.label('agg_done'); Ltail = a.label('agg_tail'); Lc = a.label('agg_ctl')
        a(f's_cmp_eq_u32 s{S_LEFT}, 0')
        a(f's_cbranch_scc1 {Le}')
        sw = lambda c: V_SWE if c % 2 == 0 else V_SWO
        mf = lambda d, b: a(f'v_mfma_f32_16x16x32_bf16 v[{d}:{d+3}], v[{V_AF}:{V_AF+3}], v[{b}:{b+3}], v[{d}:{d+3}]')
        dma = lambda c: a(f'buffer_load_dwordx4 v{V_IDX+c}, s[{S_X}:{S_X+3}], s{S_XSO+c} offen offset:{c*1024} lds')
        def advance():
            a(f's_add_u32 s{S_SLOT}, s{S_SLOT}, 4096')
            a(f's_cmp_eq_u32 s{S_SLOT}, {R*4096}')
            a(f's_cselect_b32 s{S_SLOT}, 0, s{S_SLOT}')
            a(f's_cselect_b32 s{S_DELTA}, s{S_C3}, s{S_C2}')
            addr()
            for j in range(4): a(f'v_add_u32 v{V_TR+j}, s{S_DELTA}, v{V_TR+j}')
        a(f'{Lt}:')
        a(f's_cmp_gt_u32 s{S_J}, s{S_TOT}')
        a(f's_cbranch_scc1 {Ltail}')
        a('s_waitcnt lgkmcnt(0)')
        mf(V_DEN, V_ONE)
        for c in range(4): a(f'v_and_or_b32 v{V_IDX+c}, v{V_IDX+c}, s{S_M}, v{sw(c)}')
        a(f's_add_u32 m0, s{S_RING}, s{S_SLOT}')
        mf(V_ACC, V_BF)
        dma(0)
        mf(V_ACC+4, V_BF+4)
        dma(1)
        mf(V_ACC+8, V_BF+8)
        dma(2)
        mf(V_ACC+12, V_BF+12)
        dma(3)
        a(f'v_readlane_b32 s{S_T0}, v{V_TAB}, s{S_J}')
        advance()
        a(f's_add_u32 s{S_J}, s{S_J}, 1')
        a(f'v_add_u32 v{V_G}, s{S_T0}, v{V_LST}')
        rowwait()
        reads()
        a(f'ds_read_b128 v[{V_IDX}:{V_IDX+3}], v{V_G}')
        a(f'{Lc}:')
        a(f's_sub_u32 s{S_LEFT}, s{S_LEFT}, 1')
        a(f's_cmp_lg_u32 s{S_LEFT}, 0')
        a(f's_cbranch_scc1 {Lt}')
        a(f'{Le}:')
        a(f's_lshl_b32 s{S_T0}, s{S_G}, 3')
        a(f's_add_u32 s{S_G}, s{S_G}, 1')
        self.group_end_math()
        a(f's_cmp_eq_u32 s{S_G}, 5')
        a(f's_cbranch_scc1 {Ld}')
        a(f's_and_b32 s{S_LEFT}, s{S_NPK}, 15')
        a(f's_lshr_b32 s{S_NPK}, s{S_NPK}, 4')
        a(f's_cmp_lg_u32 s{S_LEFT}, 0')
        a(f's_cbranch_scc1 {Lt}')
        a(f's_branch {Le}')
        a(f'{Ltail}:')
        a('s_waitcnt lgkmcnt(0)')
        mf(V_DEN, V_ONE)
        for j in range(4): mf(V_ACC+4*j, V_BF+4*j)
        advance()
        a('s_waitcnt vmcnt(0)')
        reads()
        a(f's_branch {Lc}')
        a(f'{Ld}:')

    def tail_consts(self):
        a = self.a
        a(f'v_and_b32 v{V_C}, 15, v{V_LANE}')
        a(f'v_lshrrev_b32 v92, 4, v{V_LANE}')
        a(f'v_bfe_u32 v{V_D}, v{V_C}, 1, 2')
        a(f'v_lshrrev_b32 v{V_E}, 3, v{V_C}')
        a(f'v_lshl_add_u32 v93, v{V_E}, 2, v{V_D}')
        a(f'v_and_b32 v{V_G}, 1, v{V_C}')
        a(f'v_lshlrev_b32 v{V_G}, 3, v{V_G}')
        a(f's_mul_i32 s{S_T0}, s{S_SET}, {4*RINGW}')
        a(f's_and_b32 s{S_T1}, s{S_SLICE}, 1')
        a(f's_lshl_b32 s{S_T2}, s{S_T1}, 13')
        a(f's_add_u32 s{S_T2}, s{S_T2}, s{S_T0}')
        a(f's_lshl_b32 s{S_T1}, s{S_T1}, 12')
        a(f's_add_u32 s{S_T1}, s{S_T1}, s{S_T0}')
        a(f'v_lshl_add_u32 v94, v{V_D}, 8, v{V_G}')
        a(f'v_lshl_add_u32 v94, v{V_E}, 10, v94')
        a(f'v_add_u32 v94, s{S_T2}, v94')
        a(f'v_lshl_add_u32 v95, v{V_D}, 7, v{V_G}')
        a(f'v_lshl_add_u32 v95, v{V_E}, 9, v95')
        a(f'v_add_u32 v95, s{S_T1}, v95')
        a(f'v_lshrrev_b32 v{V_B}, 4, v{V_LANE}')
        for par in range(2):
            a(f'v_add_u32 v{V_TW}, {4*par}, v{V_B}')
            a(f'v_xor_b32 v{V_D}, v{V_C}, v{V_TW}')
            a(f'v_lshlrev_b32 v{V_D}, 4, v{V_D}')
            a(f'v_lshl_add_u32 v{V_D}, v{V_B}, 8, v{V_D}')
            a(f'v_add_u32 v{104+par}, s{S_T0}, v{V_D}')
            a(f'v_and_b32 v{V_D}, 7, v{V_C}')
            a(f'v_xor_b32 v{V_D}, v{V_D}, v{V_TW}')
            a(f'v_lshlrev_b32 v{V_D}, 4, v{V_D}')
            a(f'v_lshl_add_u32 v{V_D}, v{V_B}, 7, v{V_D}')
            a(f'v_add_u32 v{106+par}, s{S_T0}, v{V_D}')

    def agg_write(self):
        a = self.a
        a('L_aggw:')
        if self.o.get('lprio') and self.o.get('gp1', -1) < 0:
            sk = a.label('gp0')
            a(f's_cmp_eq_u32 s{S_SET}, 0')
            a(f's_cbranch_scc1 {sk}')
            a('s_setprio 0')
            a(f'{sk}:')
        a('s_waitcnt vmcnt(0) lgkmcnt(0)')
        self.ts('aggdone')
        self.signal(1)
        for k in range(NA, min(NA+2, NPRE)): self.wload(k)
        self.waitfor(1, have=True)
        self.ts('B5')
        end = a.label('aggw_end'); h1 = a.label('aggw_h1')
        a(f's_cmp_eq_u32 s{S_HF}, 1')
        a(f's_cbranch_scc1 {h1}')
        for hf in range(2):
            if hf == 1: a(f'{h1}:')
            for gg in range(5):
                node0 = 20*hf + 4*gg
                mt, mb = node0 >> 4, node0 & 15
                TS = 1024 if mt < 2 else 512
                ad = V_AF + (gg & 1)
                a(f'v_add_u32 v{ad}, {mb}, v92')
                a(f'v_xor_b32 v{ad}, v{ad}, v93')
                a(f'v_lshl_add_u32 v{ad}, v{ad}, 4, v{94 if mt < 2 else 95}')
                for j in range(4):
                    pk = V_PK + 8*gg + 2*j
                    a(f'ds_write_b64 v{ad}, v[{pk}:{pk+1}] offset:{mt*16384 + 2*j*TS}')
            if hf == 0: a(f's_branch {end}')
        a(f'{end}:')
        if NA+2 < NPRE: self.wload(NA+2)
        self.setsync(2)
        self.ts('B6')

    def gemm(self):
        a = self.a
        n = NPRE
        AB = [80, 92]
        def aggread(t):
            buf = AB[t & 1]; par = t & 1
            for mt in range(2):
                a(f'ds_read_b128 v[{buf+4*mt}:{buf+4*mt+3}], v{104+par} offset:{mt*16384 + t*1024}')
            a(f'ds_read_b128 v[{buf+8}:{buf+11}], v{106+par} offset:{32768 + t*512}')
        if self.o.get('gp1', -1) >= 0:
            sk = a.label('gpa'); sk2 = a.label('gpb')
            a(f's_cmp_eq_u32 s{S_SET}, 0')
            a(f's_cbranch_scc1 {sk}')
            a(f's_setprio {self.o["gp1"]}')
            a(f's_branch {sk2}')
            a(f'{sk}:')
            a(f's_setprio {self.o["gp0"]}')
            a(f'{sk2}:')
        if self.o.get('gprio'):
            sk = a.label('gprio')
            a(f's_cmp_eq_u32 s{S_SET}, 0')
            a(f's_cbranch_scc1 {sk}')
            a(f's_setprio {self.o["gprio"]}')
            a(f'{sk}:')
        def aggread_list(t):
            buf = AB[t & 1]; par = t & 1
            return [f'ds_read_b128 v[{buf+4*mt}:{buf+4*mt+3}], v{104+par} offset:{mt*16384 + t*1024}' for mt in range(2)] + \
                   [f'ds_read_b128 v[{buf+8}:{buf+11}], v{106+par} offset:{32768 + t*512}']
        def wload_list(t):
            dst = V_W + 16*(t % n)
            return [f's_add_u32 s{S_T1}, s{S_WB}, {t*4096}'] + \
                   [f'buffer_load_dwordx4 v[{dst+4*j}:{dst+4*j+3}], v{V_WE}, s[{S_WS}:{S_WS+3}], s{S_T1} offen offset:{j*1024} {self.o.get("wfl", "sc1")}' for j in range(4)]
        zc = self.o.get('zcol', 0)
        if zc:
            for r in (AB[0]+8, AB[1]+8):
                for k in range(4): a(f'v_mov_b32 v{r+k}, 0')
            a(f's_mov_b32 s{S_EX2}, 0x00ff00ff')
            a(f's_mov_b32 s{S_EX2+1}, 0x00ff00ff')
        def masked(lst):
            if not zc: return lst
            return lst[:2] + [f's_mov_b64 exec, s[{S_EX2}:{S_EX2+1}]\n' + lst[2] + '\ns_mov_b64 exec, -1']
        if self.o.get('gloop'):
            D = NA + 3
            assert D <= 7
            for i in range(0, 48, 2): a(f'v_mov_b64 v[{V_ACC+i}:{V_ACC+i+1}], 0')
            a(f's_add_u32 s{S_JC}, s{S_WB}, {D*4096}')
            a(f's_add_u32 s{S_J}, s{S_WB}, {16*4096}')
            a(f's_mov_b32 s{S_LEFT}, 0x7ff00000')
            a(f's_mov_b32 s{S_G}, 2')
            for x in masked(aggread_list(0)): a(x)
            lp = a.label('gemm_loop')
            a(f'{lp}:')
            for t in range(8):
                a(f's_waitcnt vmcnt({4*(D-1)}) lgkmcnt(0)')
                dst = V_W + 16*((t + D) % 8)
                fill = masked(aggread_list(t+1))
                fill += [f's_cmp_lt_u32 s{S_JC}, s{S_J}\ns_cselect_b32 s{S_T1}, s{S_JC}, s{S_LEFT}\ns_add_u32 s{S_JC}, s{S_JC}, 4096']
                fill += [f'buffer_load_dwordx4 v[{dst+4*j}:{dst+4*j+3}], v{V_WE}, s[{S_WS}:{S_WS+3}], s{S_T1} offen offset:{j*1024} {self.o.get("wfl", "sc1")}' for j in range(4)]
                if t == 7:
                    fill = [f'v_add_u32 v104, 8192, v104\nv_add_u32 v106, 4096, v106'] + \
                           [x.replace(f'offset:{8*1024}', 'offset:0').replace(f'offset:{16384 + 8*1024}', 'offset:16384').replace(f'offset:{32768 + 8*512}', 'offset:32768') for x in masked(aggread_list(8))] + \
                           [f'v_add_u32 v105, 8192, v105\nv_add_u32 v107, 4096, v107'] + fill[3:]
                w = V_W + 16*t; b = AB[t & 1]
                k = 0
                for mt in range(3):
                    for j in range(4):
                        acc = V_ACC + 16*mt + 4*j
                        a(f'v_mfma_f32_16x16x32_bf16 v[{acc}:{acc+3}], v[{w+4*j}:{w+4*j+3}], v[{b+4*mt}:{b+4*mt+3}], v[{acc}:{acc+3}]')
                        if k < len(fill): a(fill[k]); k += 1
            a(f's_sub_u32 s{S_G}, s{S_G}, 1')
            a(f's_cmp_lg_u32 s{S_G}, 0')
            a(f's_cbranch_scc1 {lp}')
            a('s_waitcnt vmcnt(0) lgkmcnt(0)')
            self.ts('gemm1')
            return
        for x in masked(aggread_list(0)): a(x)
        nxt = min(NA+3, NPRE)
        for t in range(16):
            waits = []
            if t >= NA: waits.append(f'vmcnt({4*(nxt - 1 - t)})')
            waits.append('lgkmcnt(0)')
            a('s_waitcnt ' + ' '.join(waits))
            fill = []
            if t + 1 < 16: fill += masked(aggread_list(t+1))
            if nxt < 16 and nxt - n <= t - 1:
                fill += wload_list(nxt); nxt += 1
            w = V_W + 16*(t % n); b = AB[t & 1]
            k = 0
            for mt in range(3):
                for j in range(4):
                    acc = V_ACC + 16*mt + 4*j
                    c = '0' if t == 0 else f'v[{acc}:{acc+3}]'
                    a(f'v_mfma_f32_16x16x32_bf16 v[{acc}:{acc+3}], v[{w+4*j}:{w+4*j+3}], v[{b+4*mt}:{b+4*mt+3}], {c}')
                    if k < len(fill): a(fill[k]); k += 1
            if t in (3, 7, 11): self.ts(f'g{t}')
        self.ts('gemm1')

    def finish(self):
        a = self.a
        P = V_W
        a(f's_mul_i32 s{S_T0}, s{S_W3}, {RINGW}')
        a(f's_add_u32 s{S_T0}, s{S_T0}, {4*RINGW}')
        a(f'v_add_u32 v{V_D}, s{S_T0}, v{V_WE}')
        s0 = a.label('fin0')
        a(f's_cmp_eq_u32 s{S_SET}, 0')
        a(f's_cbranch_scc1 {s0}')
        a('s_setprio 0')
        self.setsync(3)
        for i in range(12):
            a(f'ds_write_b128 v{V_D}, v[{V_ACC+4*i}:{V_ACC+4*i+3}] offset:{1024*i}')
        self.signal(4)
        a('s_branch L_fin')
        a(f'{s0}:')
        a(f'v_and_b32 v{V_A}, 15, v{V_LANE}')
        a(f'v_lshrrev_b32 v{V_B}, 4, v{V_LANE}')
        a(f'v_and_b32 v{V_C}, 1, v{V_B}')
        a(f'v_lshrrev_b32 v{V_G}, 1, v{V_B}')
        a(f'v_lshlrev_b32 v{V_C}, 5, v{V_C}')
        a(f'v_lshl_add_u32 v{V_C}, v{V_G}, 4, v{V_C}')
        a(f'v_lshl_add_u32 v{V_C}, v{V_A}, 9, v{V_C}')
        a(f's_mul_i32 s{S_T0}, s2, {40*512}')
        a(f's_lshl_b32 s{S_T1}, s{S_W3}, 7')
        a(f's_add_u32 s{S_T0}, s{S_T0}, s{S_T1}')
        a(f'v_cmp_gt_u32 s[{S_EX2}:{S_EX2+1}], 8, v{V_A}')
        self.waitfor(4, own=False)
        for i in range(12):
            a(f'ds_read_b128 v[{P+4*i}:{P+4*i+3}], v{V_D} offset:{1024*i}')
        fl = self.o.get('fline', 0)
        if fl:
            a(f'v_and_b32 v{V_G}, 0x3f, v{V_C}')
            a(f'v_mul_u32_u24 v{V_B}, 144, v{V_A}')
            a(f'v_add_u32 v{V_B}, v{V_B}, v{V_G}')
            a(f's_mul_i32 s{S_T1}, s{S_W3}, {RINGW}')
            a(f's_add_u32 s{S_T1}, s{S_T1}, {4*RINGW}')
            a(f'v_add_u32 v{V_B}, s{S_T1}, v{V_B}')
            a(f'v_lshrrev_b32 v{V_G}, 3, v{V_LANE}')
            a(f'v_and_b32 v{V_E}, 7, v{V_LANE}')
            a(f'v_mul_u32_u24 v{V_F}, 144, v{V_G}')
            a(f'v_lshl_add_u32 v{V_F}, v{V_E}, 4, v{V_F}')
            a(f'v_add_u32 v{V_F}, s{S_T1}, v{V_F}')
            a(f'v_lshlrev_b32 v{V_G}, 9, v{V_G}')
            a(f'v_lshl_add_u32 v{V_G}, v{V_E}, 4, v{V_G}')
        for mt in range(3):
            a(f's_waitcnt lgkmcnt({8-4*mt})') if not fl or mt == 0 else None
            if fl and mt == 0: a('s_waitcnt lgkmcnt(0)')
            for j in range(4):
                acc = V_ACC + 16*mt + 4*j; p = P + 16*mt + 4*j
                for h in (0, 2):
                    a(f'v_pk_add_f32 v[{acc+h}:{acc+h+1}], v[{acc+h}:{acc+h+1}], v[{p+h}:{p+h+1}]')
            for jp in range(2):
                R0 = P + 16*mt + 4*jp
                for jj in range(2):
                    acc = V_ACC + 16*mt + 4*(2*jp+jj)
                    a(f'v_cvt_pk_bf16_f32 v{R0+2*jj}, v{acc}, v{acc+1}')
                    a(f'v_cvt_pk_bf16_f32 v{R0+2*jj+1}, v{acc+2}, v{acc+3}')
            a(f's_add_u32 s{S_T1}, s{S_T0}, {mt*16*512}')
            a('s_nop 0')
            for jp in range(2):
                R0 = P + 16*mt + 4*jp
                a(f'v_permlane16_swap_b32 v{R0}, v{R0+2}')
                a(f'v_permlane16_swap_b32 v{R0+1}, v{R0+3}')
            if fl:
                for jp in range(2):
                    R0 = P + 16*mt + 4*jp
                    a(f'ds_write_b128 v{V_B}, v[{R0}:{R0+3}] offset:{mt*16*144 + 64*jp}')
                continue
            if mt == 2: a(f's_mov_b64 exec, s[{S_EX2}:{S_EX2+1}]')
            for jp in range(2):
                R0 = P + 16*mt + 4*jp
                a(f'buffer_store_dwordx4 v[{R0}:{R0+3}], v{V_C}, s[{S_OUT}:{S_OUT+3}], s{S_T1} offen offset:{64*jp} {self.o.get("ofl", "")}')
        if fl:
            a('s_waitcnt lgkmcnt(0)')
            for i in range(5):
                a(f'ds_read_b128 v[{V_ACC+4*i}:{V_ACC+4*i+3}], v{V_F} offset:{i*8*144}')
            for i in range(5):
                a(f's_add_u32 s{S_T1}, s{S_T0}, {i*8*512}')
                a(f's_waitcnt lgkmcnt({4-i})')
                a(f'buffer_store_dwordx4 v[{V_ACC+4*i}:{V_ACC+4*i+3}], v{V_G}, s[{S_OUT}:{S_OUT+3}], s{S_T1} offen {self.o.get("ofl", "")}')
        a('L_fin:')
        a('s_mov_b64 exec, -1')
        self.ts('end')
        if self.o.get('ts') == 1:
            a(f's_lshl_b32 s{S_T0}, s2, 3')
            a(f's_add_u32 s{S_T0}, s{S_T0}, s{S_WAVE}')
            a(f's_lshl_b32 s{S_T0}, s{S_T0}, 7')
            a(f's_add_u32 s{S_T0}, s{S_T0}, {WS_TS}')
            a(f'v_writelane_b32 v{V_TSR}, s{S_POLL}, 31')
            a(f'v_lshlrev_b32 v{V_A}, 2, v{V_LANE}')
            a(f'v_cmpx_gt_u32 vcc, 32, v{V_LANE}')
            a(f'buffer_store_dword v{V_TSR}, v{V_A}, s[{S_WS}:{S_WS+3}], s{S_T0} offen')
            a('s_mov_b64 exec, -1')

    def slow_path(self):
        from slowpath import emit_slow
        emit_slow(self)

    def build(self):
        a = self.a; o = self.o
        a(f'; @launch grid=({NB},1,1) block=(512,1,1) lds={LDS_SIZE}')
        a('.amdgcn_target "amdgcn-amd-amdhsa--gfx950"')
        a('.text')
        a(f'.globl {KNAME}')
        a('.p2align 8')
        a(f'.type {KNAME},@function')
        a(f'{KNAME}:')
        self.prologue()
        self.issue_loads()
        if o.get('initlate'):
            self.img_init()
            a('s_waitcnt lgkmcnt(0)')
        self.ts('issue')
        self.srd(S_DBG, S_KA+14, 256)
        a('s_barrier')
        self.ts('B0')
        self.late_consts()
        sk = a.label('nop0')
        a(f's_cmp_lg_u32 s{S_WAVE}, 0')
        a(f's_cbranch_scc1 {sk}')
        a(f'buffer_load_dwordx2 v[38:39], off, s[{S_DBG}:{S_DBG+3}], 0 sc1')
        a(f'{sk}:')
        a(f's_cmp_eq_u32 s{S_SET}, 1')
        a('s_cbranch_scc1 L_set1')
        self.t1_set0()
        a('s_branch L_mid')
        a('L_set1:')
        self.t1_set1()
        a('L_mid:')
        self.middle()
        self.aggregate()
        self.agg_write()
        self.gemm()
        self.finish()
        a('s_branch L_end')
        for fn in list(self.deferred): fn()
        a('L_hot_end:')
        n0 = len(self.deferred)
        self.slow_path()
        for fn in self.deferred[n0:]: fn()
        a('L_end:')
        if not o.get('noendwait'): a('s_waitcnt vmcnt(0)')
        a('s_endpgm')
        a('.section .rodata,"a"')
        a('.p2align 6')
        a(f'.amdhsa_kernel {KNAME}')
        a('  .amdhsa_next_free_vgpr 256')
        a('  .amdhsa_next_free_sgpr 102')
        a('  .amdhsa_accum_offset 256')
        a('  .amdhsa_group_segment_fixed_size 0')
        a('  .amdhsa_kernarg_size 72')
        a('  .amdhsa_user_sgpr_count 2')
        a('  .amdhsa_user_sgpr_kernarg_segment_ptr 1')
        a('  .amdhsa_system_sgpr_workgroup_id_x 1')
        a('  .amdhsa_float_denorm_mode_32 3')
        a('  .amdhsa_float_denorm_mode_16_64 3')
        a('.end_amdhsa_kernel')
        return a


def generate(path, **opt):
    global NA, NBB
    NA = opt.get('na', 2); NBB = opt.get('nb', 0)
    g = Gen(opt)
    a = g.build()
    probs = check(a.lines)
    open(path, 'w').write(a.text())
    json.dump(g.tsn, open(path + '.ts.json', 'w'))
    return probs

if __name__ == '__main__':
    ap = argparse.ArgumentParser()
    ap.add_argument('out')
    for name, dflt in (('ts', 0), ('cpf', 1), ('sweep', 1), ('edelay', 0), ('prio', 0), ('cvtidx', 1), ('sweep2', 1), ('gprio', 0), ('na', 2), ('nowb', 0), ('aprio', 0), ('touch', 0), ('tw', 7), ('lprio', 0), ('gp1', -1), ('gp0', 0), ('cpfw', 0), ('slowdbg', 0), ('zcol', 0), ('noendwait', 0), ('fline', 0), ('nb', 0), ('initlate', 0), ('gloop', 0)):
        ap.add_argument('--' + name, type=int, default=dflt)
    ap.add_argument('--tsf', default='')
    ap.add_argument('--wfl', default='sc1')
    ap.add_argument('--ofl', default='')
    args = ap.parse_args()
    o = vars(args); out = o.pop('out')
    if o['wfl'] == 'plain': o['wfl'] = ''
    o['ofl'] = o['ofl'].replace('_', ' ')
    p = generate(out, **o)
    print('hazards:', len(p))
```
